```python
import torch

def _softmax(x, axis=-1):
    return torch.softmax(x, dim=axis)
def _gelu(x):
    return torch.nn.functional.gelu(x, approximate="tanh")
def _silu(x):
    return torch.nn.functional.silu(x)
def _sigmoid(x):
    return torch.sigmoid(x)
def _layernorm(x, axis=-1, eps=1e-5):
    m = x.mean(dim=axis, keepdim=True)
    v = x.var(dim=axis, keepdim=True, unbiased=False)
    return (x - m) / torch.sqrt(v + eps)
def _scatter_add(tgt, idx, src, axis=0):
    return tgt.clone().index_add_(axis, idx, src)
def _segment_sum(src, seg, n):
    out = torch.zeros((n,) + src.shape[1:], dtype=src.dtype)
    return out.index_add_(0, seg, src)
def _pad(x, pw):
    flat = tuple(v for pair in reversed(pw) for v in pair)
    return torch.nn.functional.pad(x, flat)

kernel_name = 'concat_heads__gqa_block_cached__gqa_block_cached__near_ridge'

def setup_inputs():

    _w = (lambda a: (lambda t: t.to(torch.bfloat16) if t.is_floating_point() else t)(torch.as_tensor(a)))
    def _A_setup():
        B, Sq, D = 8, 80, 512
        Hq, Hkv, Sk, Dh = 32, 8, 2048, 128
        assert Hq % Hkv == 0, (Hq, Hkv)
        return {
            "x": _w((lambda *s: torch.randn(*s, dtype=torch.bfloat16) * 0.8)(B, Sq, D)),
            "k_cache": _w((lambda *s: torch.randn(*s, dtype=torch.bfloat16) * 0.8)(B, Hkv, Sk, Dh)),
            "v_cache": _w((lambda *s: torch.randn(*s, dtype=torch.bfloat16) * 0.05)(B, Hkv, Sk, Dh)),
            "wq": _w((lambda *s: torch.randn(*s, dtype=torch.bfloat16) * 0.8)(D, Hq * Dh) * (D ** -0.5)),
            "wo": _w((lambda *s: torch.randn(*s, dtype=torch.bfloat16) * 0.05)(Hq * Dh, D) * ((Hq * Dh) ** -0.5)),
        }
    _A_in = _A_setup()

    def _B_setup():
        B, Sq, D = 8, 80, 512
        Hq, Hkv, Sk, Dh = 32, 8, 2048, 128
        assert Hq % Hkv == 0, (Hq, Hkv)
        return {
            "x": _w((lambda *s: torch.randn(*s, dtype=torch.bfloat16) * 0.8)(B, Sq, D)),
            "k_cache": _w((lambda *s: torch.randn(*s, dtype=torch.bfloat16) * 0.8)(B, Hkv, Sk, Dh)),
            "v_cache": _w((lambda *s: torch.randn(*s, dtype=torch.bfloat16) * 0.05)(B, Hkv, Sk, Dh)),
            "wq": _w((lambda *s: torch.randn(*s, dtype=torch.bfloat16) * 0.8)(D, Hq * Dh) * (D ** -0.5)),
            "wo": _w((lambda *s: torch.randn(*s, dtype=torch.bfloat16) * 0.05)(Hq * Dh, D) * ((Hq * Dh) ** -0.5)),
        }
    _B_in = _B_setup()

    return {
        "A_x": _A_in["x"],
        "A_k_cache": _A_in["k_cache"],
        "A_v_cache": _A_in["v_cache"],
        "A_wq": _A_in["wq"],
        "A_wo": _A_in["wo"],
        "B_x": _B_in["x"],
        "B_k_cache": _B_in["k_cache"],
        "B_v_cache": _B_in["v_cache"],
        "B_wq": _B_in["wq"],
        "B_wo": _B_in["wo"],
    }

def reference(A_x, A_k_cache, A_v_cache, A_wq, A_wo, B_x, B_k_cache, B_v_cache, B_wq, B_wo):
    def _A_ref(x, k_cache, v_cache, wq, wo):
        B, Sq, D = x.shape
        Hq, Dh = 32, 128
        Hkv = k_cache.shape[1]
        rep = Hq // Hkv
        q = (lambda x, *d: x.permute(*d))((x @ wq).reshape(B, Sq, Hq, Dh), 0, 2, 1, 3)
        k = (lambda x, n, axis: torch.repeat_interleave(x, n, dim=axis))(k_cache, rep, axis=1)
        v = (lambda x, n, axis: torch.repeat_interleave(x, n, dim=axis))(v_cache, rep, axis=1)
        scores = torch.einsum("bhqd,bhkd->bhqk", q, k) * (Dh ** -0.5)
        p = _softmax(scores, axis=-1)
        o = torch.einsum("bhqk,bhkd->bhqd", p, v)
        return (lambda x, *d: x.permute(*d))(o, 0, 2, 1, 3).reshape(B, Sq, Hq * Dh) @ wo

    def _B_ref(x, k_cache, v_cache, wq, wo):
        B, Sq, D = x.shape
        Hq, Dh = 32, 128
        Hkv = k_cache.shape[1]
        rep = Hq // Hkv
        q = (lambda x, *d: x.permute(*d))((x @ wq).reshape(B, Sq, Hq, Dh), 0, 2, 1, 3)
        k = (lambda x, n, axis: torch.repeat_interleave(x, n, dim=axis))(k_cache, rep, axis=1)
        v = (lambda x, n, axis: torch.repeat_interleave(x, n, dim=axis))(v_cache, rep, axis=1)
        scores = torch.einsum("bhqd,bhkd->bhqk", q, k) * (Dh ** -0.5)
        p = _softmax(scores, axis=-1)
        o = torch.einsum("bhqk,bhkd->bhqd", p, v)
        return (lambda x, *d: x.permute(*d))(o, 0, 2, 1, 3).reshape(B, Sq, Hq * Dh) @ wo

    a = _A_ref(A_x, A_k_cache, A_v_cache, A_wq, A_wo)
    b = _B_ref(B_x, B_k_cache, B_v_cache, B_wq, B_wo)
    return torch.concatenate([a, b], axis=-1)
```

```python
import re

def regs(base, n=1):
    k, i = base[0], int(base[1:])
    return [f'{k}{i+j}' for j in range(n)]

def rng(base, n):
    k, i = base[0], int(base[1:])
    return base if n == 1 else f'{k}[{i}:{i+n-1}]'

class I:
    __slots__ = ('text', 'kind', 'rd', 'wr', 'c', 'tag', 'arg', 'cost')
    def __init__(s, text, kind, rd=(), wr=(), c=(), tag=None, arg=None, cost=None):
        s.text, s.kind, s.rd, s.wr, s.c, s.tag, s.arg = text, kind, list(rd), list(wr), list(c), tag, arg
        s.cost = cost
    def __repr__(s): return s.text

def isreg(x): return isinstance(x, str) and re.fullmatch(r'[vas]\d+|vcc|m0|exec', x) is not None

def mfma(d, a, b, c):
    cs = rng(c, 4) if isinstance(c, str) else str(c)
    cr = regs(c, 4) if isinstance(c, str) else []
    return I(f'v_mfma_f32_16x16x32_bf16 {rng(d,4)}, {rng(a,4)}, {rng(b,4)}, {cs}', 'mfma',
             rd=regs(a, 4) + regs(b, 4), wr=regs(d, 4), c=cr)

TRANS = ('v_exp_f32', 'v_rcp_f32', 'v_log_f32')
def valu(op, d, *srcs, w=1, mods=''):
    def f(x):
        if isinstance(x, tuple): return x[0]
        if isreg(x) and x[0] in 'va' and x not in ('vcc',): return rng(x, w)
        return str(x)
    rd = []
    for x in srcs:
        if isinstance(x, tuple): rd += x[1]
        elif isreg(x): rd += regs(x, w) if (x[0] in 'va' and x != 'vcc') else [x]
        elif isinstance(x, str) and x.startswith('-') and isreg(x[1:]): rd += [x[1:]]
    kind = 'trans' if op in TRANS else 'valu'
    wr = regs(d, w) if (d[0] in 'va' and d != 'vcc') else [d]
    if op in ('v_fmac_f32',): rd += wr
    return I(f'{op} {f(d)}, ' + ', '.join(f(x) for x in srcs) + (' ' + mods if mods else ''), kind, rd=rd, wr=wr)

def perm(op, a, b):
    return I(f'{op} {a}, {b}', 'perm', rd=[a, b], wr=[a, b])

def rfl(s, v):
    return I(f'v_readfirstlane_b32 {s}, {v}', 'rfl', rd=[v], wr=[s])

def vcmp(op, d, a, b):
    wr = ['vcc'] if d == 'vcc' else regs(d, 2)
    ds = 'vcc' if d == 'vcc' else rng(d, 2)
    return I(f'{op} {ds}, {a}, {b}', 'valu', rd=[x for x in (a, b) if isreg(x)], wr=wr)

def dsr(op, d, addr, off=0, tag=None):
    n = {'ds_read_b128': 4, 'ds_read_b64_tr_b16': 2, 'ds_read_b64': 2, 'ds_read_b32': 1}[op]
    assert 0 <= off < 65536, off
    return I(f'{op} {rng(d,n)}, {addr}' + (f' offset:{off}' if off else ''), 'dsr', rd=[addr], wr=regs(d, n), tag=tag)

def dsw(op, addr, d, off=0, tag=None):
    n = {'ds_write_b128': 4, 'ds_write_b64': 2, 'ds_write_b32': 1, 'ds_add_u32': 1}[op]
    assert 0 <= off < 65536, off
    return I(f'{op} {addr}, {rng(d,n)}' + (f' offset:{off}' if off else ''), 'dsw', rd=[addr] + regs(d, n), tag=tag)

def dma(voff, srd, soff, off=0, pol='', tag=None):
    assert 0 <= off < 4096
    return I(f'buffer_load_dwordx4 {voff}, {rng(srd,4)}, {soff} offen' + (f' offset:{off}' if off else '')
             + (f' {pol}' if pol else '') + ' lds', 'dma',
             rd=[voff, 'm0'] + regs(srd, 4) + ([soff] if isreg(soff) else []), tag=tag)

def vld(d, n, voff, srd, soff, off=0, pol='', tag=None):
    op = {1: 'buffer_load_dword', 2: 'buffer_load_dwordx2', 4: 'buffer_load_dwordx4'}[n]
    return I(f'{op} {rng(d,n)}, {voff}, {rng(srd,4)}, {soff} offen' + (f' offset:{off}' if off else '') + (f' {pol}' if pol else ''),
             'vld', rd=[voff] + regs(srd, 4) + ([soff] if isreg(soff) else []), wr=regs(d, n), tag=tag)

def vst(d, n, voff, srd, soff, off=0, pol='', tag=None):
    op = {1: 'buffer_store_dword', 2: 'buffer_store_dwordx2', 4: 'buffer_store_dwordx4'}[n]
    return I(f'{op} {rng(d,n)}, {voff}, {rng(srd,4)}, {soff} offen' + (f' offset:{off}' if off else '') + (f' {pol}' if pol else ''),
             'vst', rd=[voff] + regs(srd, 4) + regs(d, n) + ([soff] if isreg(soff) else []), tag=tag, arg=regs(d, n))

def salu(op, d, *srcs):
    def f(x): return hex(x) if isinstance(x, int) and (x > 64 or x < -16) else str(x)
    rd = [x for x in srcs if isreg(x)]
    if op.startswith('s_cmp') or op.startswith('s_bitcmp'):
        return I(f'{op} {f(d)}, ' + ', '.join(f(x) for x in srcs), 'salu', rd=rd + ([d] if isreg(d) else []), wr=['scc'])
    return I(f'{op} {d}, ' + ', '.join(f(x) for x in srcs), 'salu', rd=rd, wr=[d])

def raw(text, kind='salu', rd=(), wr=()): return I(text, kind, rd=rd, wr=wr)
def nop(n): return I(f's_nop {n}', 'nop', arg=n)
def bar(): return I('s_barrier', 'bar')
def wait(vm=None, lg=None):
    t = 's_waitcnt' + (f' vmcnt({vm})' if vm is not None else '') + (f' lgkmcnt({lg})' if lg is not None else '')
    return I(t, 'wait', arg=(vm, lg))
def need(vm=None, lg=None):
    return I('<need>', 'need', arg=(vm, lg))
def label(n): return I(f'{n}:', 'label', arg=n)
def br(op, n): return I(f'{op} {n}', 'br', arg=n)
def cmt(t): return I(f'; {t}', 'cmt')

VMK = ('dma', 'vld', 'vst')
LGK = ('dsr', 'dsw')

def resolve(seq):
    out = []
    vm, lg = [], []
    for x in seq:
        if x.kind == 'need':
            tv, tl = x.arg
            nv = nl = None
            if tv is not None:
                idx = [i for i, t in enumerate(vm) if t == tv]
                assert idx, f'vm tag {tv} never issued'
                nv = min(63, len(vm) - 1 - idx[-1])
            if tl is not None:
                idx = [i for i, t in enumerate(lg) if t == tl]
                assert idx, f'lgkm tag {tl} never issued'
                nl = min(15, len(lg) - 1 - idx[-1])
            out.append(wait(nv, nl))
            continue
        if x.kind in VMK: vm.append(x.tag)
        if x.kind in LGK: lg.append(x.tag)
        out.append(x)
    return out

COST = {'salu': 4, 'wait': 4, 'need': 4, 'nop': 4, 'bar': 4, 'dsr': 8, 'dsw': 8, 'dma': 8, 'vld': 8, 'vst': 8,
        'valu': 4, 'trans': 8, 'perm': 4, 'rfl': 4, 'cmt': 0, 'br': 4}
def cost(x): return x.cost if x.cost is not None else COST[x.kind]

def weave(mf, memq, valq, pre=None, flush=True, period=None):
    out = []
    memq, valq = list(memq), list(valq)
    pre = pre or {}
    for g, m in enumerate(mf):
        if period and g % period == 0: assert not memq or memq[0][0] >= g, ('memq spill', g, memq[0])
        out += pre.get(g, [])
        out.append(m)
        used = 0
        while memq and memq[0][0] <= g and used + cost(memq[0][1]) <= 12:
            if memq[0][1].kind == 'dma' and 'm0' in out[-1].wr: break
            x = memq.pop(0)[1]; used += cost(x); out.append(x)
        used = max(used, 4)
        while valq and valq[0][0] <= g and used + cost(valq[0][1]) <= 12:
            x = valq.pop(0)[1]; used += cost(x); out.append(x)
    if flush:
        out += [x for _, x in memq] + [x for _, x in valq]
        return out
    return out, memq, valq

def check(trace, name=''):
    errs = []
    t = 0
    lv, lt, lm, lc, ls, lst = {}, {}, {}, {}, {}, {}
    lm0 = -99
    vm, lg = [], []
    def E(i, x, msg): errs.append(f'{name}[{i}] {x.text}: {msg}')
    for i, x in enumerate(trace):
        k = x.kind
        if k in ('cmt', 'label'): continue
        assert k != 'need'
        touched = set(x.rd) | set(x.wr) | set(x.c)
        for q, nm in ((vm, 'vm'), (lg, 'lgkm')):
            for d in q:
                if d & touched: E(i, x, f'touches pending {nm} load dst {sorted(d & touched)}')
        isv = k in ('valu', 'trans', 'perm', 'rfl')
        def dist(tab, r): return t - tab[r] - 1 if r in tab else 99
        if k == 'mfma':
            for r in x.rd + x.c:
                if dist(lv, r) < 2: E(i, x, f'VALU->MFMA {r} dist {dist(lv, r)}')
            for r in x.rd:
                if r in lm and t - lm[r][0] - 1 < 8: E(i, x, f'MFMA D->A/B {r}')
            for r in x.c:
                if r in lm and lm[r][1] != x.c[0] and t - lm[r][0] - 1 < 6: E(i, x, f'MFMA D->C overlap {r}')
            for r in x.wr:
                pass
        else:
            if isv or k in VMK or k in LGK:
                for r in touched:
                    if r in lm and t - lm[r][0] - 1 < 8: E(i, x, f'MFMA D->{k} {r} dist {t - lm[r][0] - 1}')
            if isv:
                for r in x.wr:
                    if dist(lc, r) < 3: E(i, x, f'MFMA C read -> VALU write {r}')
                    if dist(lst, r) < 2: E(i, x, f'store data WAR {r}')
                if k != 'trans':
                    for r in x.rd:
                        if dist(lt, r) < 1: E(i, x, f'trans->valu {r}')
                for r in x.rd:
                    if dist(ls, r) < 2: E(i, x, f'VALU sgpr write -> VALU read {r}')
            if k in ('dsr', 'vld'):
                for r in x.wr:
                    if dist(lst, r) < 1: E(i, x, f'store data WAR {r}')
            if k == 'perm':
                for r in x.rd:
                    if dist(lv, r) < 2: E(i, x, f'VALU->permlane {r}')
            if k == 'rfl':
                for r in x.rd:
                    if dist(lv, r) < 1: E(i, x, f'VALU->readfirstlane {r}')
            if k in VMK:
                for r in x.rd:
                    if dist(ls, r) < 5: E(i, x, f'VALU sgpr write -> VMEM {r}')
            if k == 'dma' and t - lm0 - 1 < 1: E(i, x, 'm0 write -> dma')
            if k == 'salu':
                for r in x.rd:
                    if dist(ls, r) < 1: E(i, x, f'VALU sgpr write -> SALU read {r} (pad)')
        if k == 'wait':
            nv, nl = x.arg
            if nv is not None and len(vm) > nv: vm = vm[len(vm) - nv:] if nv else []
            if nl is not None and len(lg) > nl: lg = lg[len(lg) - nl:] if nl else []
        if k in VMK:
            vm.append(set(x.wr))
            if len(vm) > 63: E(i, x, 'vmcnt overflow')
        if k in LGK: lg.append(set(x.wr))
        if k == 'mfma':
            for r in x.wr: lm[r] = (t, x.wr[0])
            for r in x.c: lc[r] = t
        elif isv:
            for r in x.wr:
                if r[0] in 'va' and r != 'vcc': lv[r] = t
                else: ls[r] = t
                lm.pop(r, None)
                lt.pop(r, None)
            if k == 'trans':
                for r in x.wr: lt[r] = t
        if k == 'vst' and len(x.arg) > 2:
            for r in x.arg: lst[r] = t
        if k == 'salu' and 'm0' in x.wr: lm0 = t
        t += (x.arg + 1) if k == 'nop' else 1
    return errs

def render(seq):
    o = []
    for x in seq:
        o.append(x.text if x.kind == 'label' else '    ' + x.text)
    return '\n'.join(o) + '\n'
```

```python
import sys, math, struct
from asmlib import *

NAME = 'concat_heads__gqa_block_cached__gqa_block_cached__near_ridge'
OPT = dict(stamps=0, kvpol='nt', pf=2, stpol='', ldpol='', dbg=0)
for a in sys.argv[2:]:
    k, v = a.split('=')
    OPT[k] = int(v) if v.lstrip('-').isdigit() else v

SL = 16896
PC = 1056
UP = 4 * SL
LX = 9 * SL
def f32(x): return struct.unpack('<I', struct.pack('<f', x))[0]

SX, SA, SB, SWQ, SWO, SWS = 's4', 's8', 's12', 's16', 's20', 's24'
sKb, sVb = 's28', 's30'
sW, sB, sHKV, sHP, sBR, sCNT, sOFF, sSTEP, sLDS, sPASS, sNR, sLAST = ['s%d' % i for i in range(32, 44)]
sT0, sT1, sT2, sT3 = 's44', 's45', 's46', 's47'
sSO = 's80'
vL16 = 'v1'
vD = ['v2', 'v3', 'v4', 'v5']
vK, vK2, vVa, vVa2, vVb, vVb2 = 'v6', 'v7', 'v8', 'v9', 'v10', 'v11'
vT = ['v12', 'v13', 'v14', 'v15']
vSUM = {4: 'v16', 1: 'v17', 2: 'v18'}
vSH, vSHP = 'v19', 'v20'
t0, t1, t2 = 'v21', 'v22', 'v23'
def vr(n): return f'v{n}'
def ar(n): return f'a{n}'
def Oacc(rt, ld): return vr(24 + (rt * 4 + ld) * 4) if ld < 4 else ar((rt * 4 + ld - 4) * 4)
def Vf(b, ld): return vr(104 + 32 * b + 4 * ld)
def Sb(k, t): return vr(168 + 8 * (k % 4) + 4 * t)
def Pb(k): return vr(200 + 4 * (k % 2))
def Mn(rt): return vr(208 + 4 * rt)
def Qf(rt, c): return ar(80 + (rt * 4 + c) * 4)
def Kf(b, t, c): return ar(160 + 32 * b + (t * 4 + c) * 4)
RS = {3: 'a224', 0: 'a228'}
ONES = 'a232'
aDwo, aDkv = 240, 244
def off(r, n): return f'{r[0]}{int(r[1:]) + n}'
vDwo = ['v228', 'v229', 'v230', 'v231']
vW = ['v232', 'v233', 'v234', 'v235']
vXd = 'v236'; vXr = ['v237', 'v238']; vXr4 = ['v239', 'v240']; vPF, vPFd = 'v241', 'v242'
def Qacc(dt, rt): return vr(104 + (rt * 4 + dt) * 4)
def Wf(b, nt): return vr(184 + 16 * b + 4 * nt)
def Xf(c, rt):
    f = c * 5 + rt
    if f < 16: return ar(160 + 4 * f)
    if f < 56: return ar(4 * (f - 16))
    if f < 64: return ar(224 + 4 * (f - 56))
    return ar(160 + 4 * (f - 64))
STG = 216

stamp_n = [0]
def stamp():
    if not OPT['stamps']: return []
    i = stamp_n[0]; stamp_n[0] += 1
    return [raw(f's_memtime s[{82+2*i}:{83+2*i}]', wr=[f's{82+2*i}', f's{83+2*i}']), wait(lg=0)]

def setm0(base, const): return salu('s_add_u32', 'm0', base, const)

def kv_tile_dma(which, tile, tag):
    sig = 2 * (tile % 4) + (which == 'V')
    srd = SA if which == 'K' else SB
    q = [setm0(sLDS, sig * SL), salu('s_mov_b32', sSO, tile * 16384)]
    q += [dma(vD[k], srd, sSO, PC * k, OPT['kvpol'], tag=tag) for k in range(4)]
    return q

def setup():
    c = []
    A = c.append
    A(salu('s_cmp_ge_u32', 's2', 256)); A(br('s_cbranch_scc1', 'L_end'))
    A(raw('s_load_dwordx16 s[48:63], s[0:1], 0', wr=regs('s48', 16)))
    A(raw('s_load_dwordx4 s[64:67], s[0:1], 64', wr=regs('s64', 4)))
    A(raw('s_load_dwordx2 s[68:69], s[0:1], 96', wr=regs('s68', 2)))
    A(salu('s_and_b32', sT0, 's2', 7))
    A(salu('s_lshr_b32', sT1, 's2', 3))
    A(salu('s_lshr_b32', sBR, sT0, 2))
    A(salu('s_and_b32', sHP, sT1, 1))
    A(salu('s_and_b32', sT0, sT0, 3))
    A(salu('s_lshl_b32', sT0, sT0, 1))
    A(salu('s_bfe_u32', sT2, sT1, 0x10001))
    A(salu('s_add_u32', sHKV, sT0, sT2))
    A(salu('s_lshr_b32', sB, sT1, 2))
    L, G, Q, WV, KH, HH, RP, R4, C4 = ['v%d' % i for i in range(244, 253)]
    A(valu('v_and_b32', L, 63, 'v0'))
    A(valu('v_lshrrev_b32', WV, 6, 'v0'))
    A(valu('v_lshlrev_b32', vL16, 4, L))
    A(rfl(sW, WV))
    A(valu('v_lshrrev_b32', RP, 3, L))
    A(valu('v_and_b32', KH, 1, WV))
    A(valu('v_lshrrev_b32', HH, 1, WV))
    A(valu('v_and_b32', t0, 7, L))
    A(valu('v_and_b32', t1, 6, RP))
    A(valu('v_xor_b32', t0, t0, t1))
    A(valu('v_lshlrev_b32', t0, 4, t0))
    A(valu('v_lshrrev_b32', t1, 2, RP))
    A(valu('v_lshlrev_b32', t1, 3, t1))
    A(valu('v_and_b32', t2, 3, RP))
    A(valu('v_add_u32', t1, t1, t2))
    A(valu('v_lshlrev_b32', t1, 13, t1))
    A(valu('v_lshl_add_u32', t1, WV, 7, t1))
    A(valu('v_add_u32', vW[0], t1, t0))
    for k in range(1, 4):
        A(valu('v_add_u32', vW[k], (16 * (k % 2) + 4 * (k // 2)) * 8192 - PC * k, vW[0]))
    A(valu('v_lshlrev_b32', t1, 10, RP))
    A(valu('v_lshl_add_u32', t1, WV, 8, t1))
    A(valu('v_add_u32', vDwo[0], t1, t0))
    for k in range(1, 4):
        A(valu('v_add_u32', vDwo[k], (8192 - PC) * k, vDwo[0]))
    A(valu('v_lshrrev_b32', t1, 1, RP))
    A(valu('v_lshl_add_u32', t1, KH, 2, t1))
    A(valu('v_and_b32', t2, 7, L))
    A(valu('v_xor_b32', t1, t1, t2))
    A(valu('v_lshlrev_b32', t1, 4, t1))
    A(valu('v_lshl_add_u32', t2, KH, 3, RP))
    A(valu('v_lshl_add_u32', t1, t2, 10, t1))
    A(valu('v_lshl_add_u32', vXd, HH, 7, t1))
    A(valu('v_lshrrev_b32', t1, 2, L))
    A(valu('v_lshl_add_u32', t1, WV, 4, t1))
    A(valu('v_lshlrev_b32', t1, 13, t1))
    A(valu('v_and_b32', t2, 3, L))
    A(valu('v_lshl_add_u32', vPF, t2, 7, t1))
    A(wait(lg=0))
    A(salu('s_cmp_eq_u32', sBR, 0))
    for i in range(5):
        A(raw(f's_cselect_b64 s[{70+2*i}:{71+2*i}], s[{48+2*i}:{49+2*i}], s[{58+2*i}:{59+2*i}]'))
    def srd(s, ptr, offreg, nrec):
        A(salu('s_add_u32', s, ptr, offreg))
        A(salu('s_addc_u32', off(s, 1), off(ptr, 1), 0))
        A(salu('s_and_b32', off(s, 1), off(s, 1), 0xffff))
        A(salu('s_mov_b32', off(s, 2), nrec))
        A(salu('s_mov_b32', off(s, 3), 0x20000))
    A(salu('s_lshl_b32', sT0, sHKV, 1))
    A(salu('s_add_u32', sT0, sT0, sHP))
    A(salu('s_lshl_b32', sT1, sT0, 9))
    A(salu('s_sub_u32', sT2, 512 * 8192, sT1))
    srd(SWQ, 's76', sT1, sT2)
    A(salu('s_mul_i32', sT1, sB, 81920))
    srd(SX, 's70', sT1, 81920)
    A(salu('s_and_b32', sT1, sW, 1))
    A(salu('s_mul_i32', sT1, sT1, 8448))
    A(salu('s_lshr_b32', sT2, sW, 1))
    A(salu('s_mul_i32', sT2, sT2, 4224))
    A(salu('s_add_u32', sLDS, sT1, sT2))
    return c, (L, G, Q, WV, KH, HH, RP, R4, C4), srd

def setup2(R):
    L, G, Q, WV, KH, HH, RP, R4, C4 = R
    c = []
    A = c.append
    def srd(s, ptr, offreg, nrec):
        A(salu('s_add_u32', s, ptr, offreg))
        A(salu('s_addc_u32', off(s, 1), off(ptr, 1), 0))
        A(salu('s_and_b32', off(s, 1), off(s, 1), 0xffff))
        A(salu('s_mov_b32', off(s, 2), nrec))
        A(salu('s_mov_b32', off(s, 3), 0x20000))
    A(salu('s_lshl_b32', sT1, sB, 3))
    A(salu('s_add_u32', sT1, sT1, sHKV))
    A(salu('s_lshl_b32', sT1, sT1, 19))
    for dst, p in ((sKb, 's72'), (sVb, 's74')):
        A(salu('s_add_u32', dst, p, sT1))
        A(salu('s_addc_u32', off(dst, 1), off(p, 1), 0))
        A(salu('s_sub_u32', dst, dst, 96))
        A(salu('s_subb_u32', off(dst, 1), off(dst, 1), 0))
        A(salu('s_and_b32', off(dst, 1), off(dst, 1), 0xffff))
    c += kv_mode()
    A(salu('s_mov_b32', off(SA, 3), 0x20000))
    A(salu('s_mov_b32', off(SB, 3), 0x20000))
    A(salu('s_lshl_b32', sT1, sT0, 18))
    srd(SWO, 's78', sT1, 262144)
    A(salu('s_lshl_b32', sT1, sBR, 3))
    A(salu('s_add_u32', sT1, sT1, sB))
    A(salu('s_lshl_b32', sT1, sT1, 4))
    A(salu('s_add_u32', sT1, sT1, sT0))
    A(salu('s_mul_i32', sT1, sT1, 81920))
    srd(SWS, 's68', sT1, 81920)
    A(salu('s_mov_b32', sPASS, 0))
    A(valu('v_lshrrev_b32', G, 4, L))
    A(valu('v_and_b32', Q, 15, L))
    A(valu('v_bfe_u32', R4, L, 2, 2))
    A(valu('v_and_b32', C4, 3, L))
    A(valu('v_lshrrev_b32', t0, 1, Q))
    A(valu('v_xor_b32', t0, t0, G))
    A(valu('v_lshlrev_b32', t0, 4, t0))
    A(valu('v_lshl_add_u32', vXr[0], Q, 7, t0))
    A(valu('v_xor_b32', vXr[1], 64, vXr[0]))
    A(valu('v_add_u32', vXr4[0], 8 * SL, vXr[0]))
    A(valu('v_add_u32', vXr4[1], 8 * SL, vXr[1]))
    A(valu('v_mul_u32_u24', t0, 4224, HH))
    A(valu('v_mul_u32_u24', t1, 8448, KH))
    A(valu('v_add_u32', t2, t0, vL16))
    A(valu('v_add_u32', vSH, t2, t1))
    A(valu('v_sub_u32', vSHP, t2, t1))
    A(valu('v_add_u32', vSHP, 8448, vSHP))
    A(valu('v_add_u32', t2, t0, t1))
    A(valu('v_and_b32', t0, 1, G))
    A(valu('v_lshl_add_u32', t0, t0, 2, R4))
    A(valu('v_lshl_add_u32', t2, t0, 7, t2))
    A(valu('v_lshl_add_u32', t2, C4, 3, t2))
    A(valu('v_lshrrev_b32', vT[3], 1, G))
    A(valu('v_mul_u32_u24', vT[3], PC, vT[3]))
    A(valu('v_add_u32', t2, t2, vT[3]))
    A(valu('v_add_u32', t2, UP, t2))
    A(valu('v_and_b32', t0, 6, t0))
    for nt in range(4):
        A(valu('v_xor_b32', vT[nt], 2 * nt, t0))
        A(valu('v_lshl_add_u32', vT[nt], vT[nt], 4, t2))
    A(valu('v_and_b32', t0, 7, Q))
    A(valu('v_mul_u32_u24', t0, PC, t0))
    A(valu('v_lshrrev_b32', t2, 3, Q))
    A(valu('v_lshl_add_u32', t0, t2, 8, t0))
    A(valu('v_lshl_add_u32', t0, G, 4, t0))
    A(valu('v_add_u32', vK, t0, t1))
    A(valu('v_add_u32', vK2, UP, vK))
    A(valu('v_bfe_u32', t0, L, 2, 3))
    A(valu('v_mul_u32_u24', t0, PC, t0))
    A(valu('v_lshrrev_b32', t2, 1, G))
    A(valu('v_lshl_add_u32', t0, t2, 8, t0))
    A(valu('v_lshl_add_u32', t0, C4, 3, t0))
    A(valu('v_add_u32', t0, t0, t1))
    A(valu('v_lshl_add_u32', vVa, KH, 7, t0))
    A(valu('v_xor_b32', t2, 1, KH))
    A(valu('v_lshl_add_u32', vVb, t2, 7, t0))
    A(valu('v_add_u32', vVa2, UP, vVa))
    A(valu('v_add_u32', vVb2, UP, vVb))
    A(valu('v_lshl_add_u32', t0, KH, 13, vL16))
    A(valu('v_lshl_add_u32', t0, HH, 12, t0))
    for k in range(4):
        A(valu('v_add_u32', vD[k], 96 - 32 * k, t0))
    A(valu('v_lshrrev_b32', t0, 1, G))
    A(valu('v_lshl_add_u32', t0, t0, 4, Q))
    A(valu('v_lshlrev_b32', t0, 4, t0))
    A(valu('v_and_b32', t2, 1, G))
    A(valu('v_lshl_add_u32', t0, t2, 3, t0))
    A(valu('v_sub_u32', t2, vSH, vL16))
    A(valu('v_add_u32', t0, t0, t2))
    A(valu('v_add_u32', t0, 6 * SL, t0))
    A(valu('v_mul_u32_u24', t1, 4224, HH))
    A(valu('v_add_u32', t1, t1, vL16))
    A(valu('v_add_u32', t1, 6 * SL, t1))
    A(valu('v_mul_u32_u24', t2, 8448, KH))
    A(valu('v_sub_u32', t2, vK, t2))
    return c

def kv_mode():
    c = []
    A = c.append
    A(salu('s_mov_b32', SA, sKb)); A(salu('s_mov_b32', off(SA, 1), off(sKb, 1)))
    A(salu('s_mov_b32', SB, sVb)); A(salu('s_mov_b32', off(SB, 1), off(sVb, 1)))
    A(salu('s_mov_b32', sNR, 524288 + 96))
    A(salu('s_mov_b32', off(SA, 2), sNR)); A(salu('s_mov_b32', off(SB, 2), sNR))
    A(salu('s_mov_b32', sSTEP, 16384))
    A(salu('s_mov_b32', sOFF, 3 * 16384))
    A(salu('s_mov_b32', sCNT, 6))
    A(salu('s_mov_b32', sLAST, 0))
    return c

def w_dma(c):
    q = [setm0(sLDS, UP + (c % 4) * SL), salu('s_mov_b32', sSO, c * 262144)]
    q += [dma(vW[k], SWQ, sSO, PC * k, tag=f'W{c}') for k in range(4)]
    return q

def w_reads(c, tag):
    q = []
    for nt in range(4):
        for rd in range(2):
            x = dsr('ds_read_b64_tr_b16', off(Wf(c % 2, nt), 2 * rd), vT[nt], (c % 4) * SL + rd * 2 * PC, tag=tag)
            x.cost = 6
            q.append(x)
    return q

def x_read(c, rt):
    kp, par = c // 2, c % 2
    if rt < 4: return dsr('ds_read_b128', Xf(c, rt), vXr[par], rt * 16384 + kp * 2048, tag=f'X{c}')
    return dsr('ds_read_b128', Xf(c, rt), vXr4[par], kp * 2048, tag=f'X{c}')

def qphase(R):
    c = []
    A = c.append
    if OPT['pf']:
        A(salu('s_lshl_b32', sT1, sB, 19))
        for i in range(OPT['pf']): A(vld(off(vPFd, i), 1, vPF, SWQ, sT1, 64 * i, tag='pf'))
    c += w_dma(0)
    A(salu('s_lshl_b32', sT3, sW, 10))
    for qtr in range(4):
        for rt in range(5):
            base = (rt * 16384 if rt < 4 else 8 * SL) + qtr * 4096
            A(setm0(sT3, base)); A(salu('s_mov_b32', sSO, rt * 16384 + qtr * 256))
            A(dma(vXd, SX, sSO, 0, tag='X'))
    for k in range(1, 4): c += w_dma(k)
    c += setup2(R)
    c += stamp()
    A(need(vm='X')); A(bar())
    c += stamp()
    c += w_reads(0, 'T0')
    for rt in range(5): A(x_read(0, rt))
    for rt in range(5): A(x_read(1, rt))
    mf, memq, valq, pre = [], [], [], {}
    xr = [(cc, rt) for cc in range(2, 16) for rt in range(5)]
    XPER = 11
    xdone = None
    kvq = [('K', 0), ('V', 0), ('K', 1), ('V', 1)]
    for ch in range(16):
        g0 = ch * 20
        pre[g0] = [need(lg=f'T{ch}')] if ch else [need(lg='X0')]
        for rt in range(5):
            for dt in range(4):
                mf.append(mfma(Qacc(dt, rt), Wf(ch % 2, dt), Xf(ch, rt), Qacc(dt, rt) if ch else 0))
        if ch + 1 < 16:
            memq.append((g0, need(vm=f'W{ch+1}')))
            memq += [(g0, x) for x in w_reads(ch + 1, f'T{ch+1}')]
        if ch + 4 < 16: memq += [(g0, x) for x in w_dma(ch + 4)]
        elif ch == 12: memq += [(g0, x) for x in kv_tile_dma('K', 2, 'K2')]
        elif ch == 13: memq += [(g0, x) for x in kv_tile_dma('V', 2, 'V2')]
        n = 0
        while xr and n < XPER:
            cc, rt = xr[0]
            if cc * 5 + rt >= 64 and (cc * 5 + rt - 64) // 5 >= ch: break
            xr.pop(0); memq.append((g0, x_read(cc, rt))); n += 1
            if not xr: xdone = ch
        if xdone is not None and ch == xdone + 1:
            pre[g0] = [wait(lg=0), bar()]
        if xdone is not None and ch > xdone and kvq:
            wh, tl = kvq.pop(0)
            memq += [(g0, x) for x in kv_tile_dma(wh, tl, f'{wh}{tl}')]
    assert not kvq and xdone + 4 < 12, xdone
    for i in range(80): valq.append((0, valu('v_mov_b32', vr(24 + i), 0)))
    for s in vSUM.values(): valq.append((0, valu('v_mov_b32', s, 0)))
    for i in range(80): valq.append((8 * 20 + 4, valu('v_accvgpr_write_b32', ar(i), 0)))
    for i in range(8): valq.append((13 * 20 + 4, valu('v_accvgpr_write_b32', ar(224 + i), 0)))
    valq.append((13 * 20 + 4, valu('v_mov_b32', vPF, 0x3f803f80)))
    for i in range(4): valq.append((13 * 20 + 4, valu('v_accvgpr_write_b32', off(ONES, i), vPF)))
    for k in range(4):
        valq.append((13 * 20 + 4, valu('v_accvgpr_write_b32', ar(aDwo + k), vDwo[k])))
        valq.append((13 * 20 + 4, valu('v_accvgpr_write_b32', ar(aDkv + k), vD[k])))
    c += weave(mf, memq, valq, pre, period=20)
    c += stamp()
    A(salu('s_mov_b32', sT1, f32(math.log2(math.e) / math.sqrt(128.0))))
    A(salu('s_mov_b32', sT0, sT1))
    A(nop(5))
    for rt in range(5):
        for dt in range(4):
            a = Qacc(dt, rt)
            for h in range(2):
                A(valu('v_pk_mul_f32', off(a, 2 * h), off(a, 2 * h), ('s[44:45]', ['s44', 's45']), w=2))
        for dt in range(4):
            a = Qacc(dt, rt); d = STG + (rt * 4 + dt) * 2
            for h in range(2):
                A(valu('v_cvt_pk_bf16_f32', vr(d + h), off(a, 2 * h), off(a, 2 * h + 1)))
        for dt in range(4):
            j = rt * 2 + dt // 2
            A(dsw('ds_write_b64', t0, vr(STG + (rt * 4 + dt) * 2), (j // 4) * SL + (j % 4) * 1024 + (dt % 2) * 512, tag='Qw'))
    for nt in range(4): A(valu('v_subrev_u32', vT[nt], UP, vT[nt]))
    A(need(vm='V0', lg='Qw')); A(bar())
    return c

def kv_frag_reads(i, which):
    j = i % 4; b = i % 2
    q = []
    if which == 'K':
        a = vK if j < 2 else vK2
        for t in range(2):
            for cc in range(4):
                q.append(dsr('ds_read_b128', Kf(b, t, cc), a, (2 * (j % 2)) * SL + t * 512 + cc * 64, tag='Kr'))
    else:
        for ld in range(8):
            a = (vVa if j < 2 else vVa2) if ld < 4 else (vVb if j < 2 else vVb2)
            for rd in range(2):
                q.append(dsr('ds_read_b64_tr_b16', off(Vf(b, ld), 2 * rd), a, (2 * (j % 2) + 1) * SL + rd * 512 + (ld % 4) * 32, tag='Vr'))
    return q

def state_init():
    c = []
    for i in range(32): c.append(valu('v_mov_b32', off(Vf(1, 0), i), 0))
    for i in range(8): c.append(valu('v_mov_b32', off(Sb(-1, 0), i), f32(-1e30)))
    for i in range(4): c.append(valu('v_mov_b32', off(Pb(-2), i), 0))
    return c

def max_finish():
    c = []
    A = c.append
    for op in ('v_permlane16_swap_b32', 'v_permlane32_swap_b32'):
        for rt in range(5): A(valu('v_mov_b32', off(Mn(rt), 1), Mn(rt)))
        for rt in range(5): A(perm(op, Mn(rt), off(Mn(rt), 1)))
        for rt in range(5): A(valu('v_max_f32', Mn(rt), Mn(rt), off(Mn(rt), 1)))
    for rt in range(5):
        for i in (3, 2, 1, 0): A(valu('v_mul_f32', off(Mn(rt), i), -1.0, Mn(rt)))
    return c

def prologue():
    c = []
    A = c.append
    for cc in range(4): A(dsr('ds_read_b128', Kf(1, 0, cc), t2, cc * 64, tag='Km'))
    for rt in range(5):
        for cc in range(4):
            j = rt * 2 + cc % 2
            A(dsr('ds_read_b128', Qf(rt, cc), t1, (cc // 2) * 8448 + (j // 4) * SL + (j % 4) * 1024, tag=f'Qr{rt}'))
    memq = [(0, x) for x in kv_frag_reads(0, 'K') + kv_frag_reads(0, 'V')]
    for x in memq: x[1].cost = 6
    mf, pre = [], {}
    for rt in range(5):
        pre[rt * 4] = [need(lg=f'Qr{rt}')]
        for cc in range(4): mf.append(mfma(Mn(rt), Kf(1, 0, cc), Qf(rt, cc), Mn(rt) if cc else 0))
    c += weave(mf, memq, [(0, x) for x in state_init()], pre)
    A(need(vm='V1', lg='Vr')); A(bar())
    c += kv_tile_dma('K', 3, 'K3') + kv_tile_dma('V', 3, 'V3')
    for rt in range(5): A(valu('v_max3_f32', Mn(rt), Mn(rt), off(Mn(rt), 1), off(Mn(rt), 2)))
    for rt in range(5): A(valu('v_max_f32', Mn(rt), Mn(rt), off(Mn(rt), 3)))
    c += max_finish()
    c += stamp()
    A(br('s_branch', 'L_loop_in'))
    return c

GX = [2, 7, 12, 18, 23, 29, 35, 40]
RX = [0, 1, 3, 4, 5, 6, 9, 10]
TX = [13, 14, 15, 16, 17, 19, 21, 22, 24, 26, 27, 28, 30, 32, 33, 36]

def softmax_items(k):
    rt = k % 5
    E = [valu('v_exp_f32', off(Sb(k, 0), n), off(Sb(k, 0), n)) for n in range(8)]
    C = [valu('v_cvt_pk_bf16_f32', off(Pb(k), n), off(Sb(k, 0), 2 * n), off(Sb(k, 0), 2 * n + 1)) for n in range(4)]
    Ad = [valu('v_add_f32', vSUM[rt], vSUM[rt], off(Sb(k, 0), n)) for n in range(8)] if rt in vSUM else []
    return E, C, Ad

def pv(k, vb, order=range(8)):
    rt = k % 5
    m = [mfma(Oacc(rt, ld), Vf(vb, ld), Pb(k), Oacc(rt, ld)) for ld in order]
    if rt in RS: m.append(mfma(RS[rt], ONES, Pb(k), RS[rt]))
    return m

def block(j):
    out = [cmt(f'block {j}')]
    mem = {}
    for x, i in zip(RX, kv_frag_reads(j + 1, 'K')): mem[x] = i
    for x, i in zip(TX, kv_frag_reads(j + 1, 'V')): mem[x] = i
    for n, x in enumerate(GX):
        mem[x] = dma(vD[n % 4], SA if n < 4 else SB, sOFF, PC * (n % 4), OPT['kvpol'])
    assert len(mem) == 32
    sc = {1: [salu('s_add_u32', sOFF, sOFF, sSTEP)], 2: [setm0(sLDS, 2 * j * SL)], 20: [setm0(sLDS, (2 * j + 1) * SL)],
          24: [wait(lg=8)]}
    if j == 2: sc[0] = []
    if j == 1:
        sc[38] = [salu('s_mov_b32', off(SA, 2), sNR)]
    if j == 2:
        sc[10] = [salu('s_mov_b32', off(SB, 2), sNR)]
    if j == 3: sc[39] = [salu('s_sub_u32', sCNT, sCNT, 1)]
    cq, aq = [], []
    xi = ei = 0
    for s in range(5):
        kq, ke, kp = 5 * j + s, 5 * j + s - 1, 5 * j + s - 2
        mf = [mfma(Sb(kq, t), Kf(j % 2, t, cc), Qf(s, cc), Sb(kq, t) if cc else Mn(s)) for t in range(2) for cc in range(4)]
        mf += pv(kp, (j - 1) % 2 if s < 2 else j % 2)
        E, C, Ad = softmax_items(ke)
        for g, m in enumerate(mf):
            if s == 0 and g == 0 and j == 0:
                pass
            out.append(m)
            if g % 2 == 0 and g < 16:
                n = g // 2
                if s == 0 and g == 0:
                    out += [wait(vm=16, lg=0), bar()]
                    if j == 0: out.append(label('L_loop_mid'))
                out += sc.get(ei, [])
                out.append(E[n]); ei += 1
                if Ad: aq.append(Ad[n])
                if n % 2 == 1: cq.append(C[n // 2])
            else:
                nv = 2
                if xi in mem: out.append(mem[xi]); nv = 1
                xi += 1
                for _ in range(nv):
                    if cq: out.append(cq.pop(0))
                    elif aq: out.append(aq.pop(0))
    assert xi == 42 and ei == 40 and not cq and not aq, (xi, ei, len(cq), len(aq))
    return out

def switch_wo():
    c = []
    A = c.append
    A(salu('s_cmp_lg_u32', sLAST, 0)); A(br('s_cbranch_scc1', 'L_epi'))
    A(salu('s_mov_b32', sLAST, 1))
    A(salu('s_mov_b32', sCNT, 0))
    A(salu('s_mov_b32', SA, SWO)); A(salu('s_mov_b32', off(SA, 1), off(SWO, 1))); A(salu('s_mov_b32', off(SA, 2), 262144))
    A(salu('s_add_u32', SB, SWO, 32768)); A(salu('s_addc_u32', off(SB, 1), off(SWO, 1), 0)); A(salu('s_mov_b32', off(SB, 2), 262144 - 32768))
    A(salu('s_mov_b32', sSTEP, 65536))
    A(salu('s_mov_b32', sOFF, -65536 & 0xffffffff))
    A(salu('s_mov_b32', sNR, 0))
    for k in range(4): A(valu('v_accvgpr_read_b32', vD[k], ar(aDwo + k)))
    if OPT['pf']:
        A(salu('s_lshl_b32', sT1, sB, 15))
        A(salu('s_lshl_b32', sT2, sW, 13))
        A(salu('s_add_u32', sT1, sT1, sT2))
        A(valu('v_lshlrev_b32', t0, 3, vL16))
        for i in range(OPT['pf']): A(vld(off(t1, i), 1, t0, SWO, sT1, 64 * i))
    A(br('s_branch', 'L_loop'))
    return c

def epilogue():
    c = [label('L_epi')]
    A = c.append
    c += stamp()
    A(wait(vm=0))
    A(valu('v_add_u32', t0, UP, vSH))
    A(valu('v_add_u32', t2, 8 * SL, vSH))
    def xw(rt, jd):
        if rt < 4: return dsw('ds_write_b128', t0, Oacc(rt, 4 + jd), rt * SL + jd * 1024, tag='Ow')
        return dsw('ds_write_b128', t2, Oacc(rt, 4 + jd), jd * 1024, tag='Ow')
    E, C, Ad = softmax_items(19)
    order = [4, 5, 6, 7, 0, 1, 2, 3]
    mf = pv(18, 1, order)
    for g, m in enumerate(mf):
        A(m)
        if g < 8: A(E[g])
        if g >= 2 and g % 2 == 0: A(C[g // 2 - 1])
    ws = [xw(rt, jd) for rt in range(4) for jd in range(4)]
    A(ws.pop(0)); A(ws.pop(0))
    for g, m in enumerate(pv(19, 1, order)):
        A(m); A(ws.pop(0)); A(Ad[g])
    for x in ws: A(x)
    LS = 184
    for rt in RS: A(valu('v_accvgpr_read_b32', vr(LS + rt), RS[rt]))
    for jd in range(4): A(xw(4, jd))
    for op in ('v_permlane16_swap_b32', 'v_permlane32_swap_b32'):
        for rt, s in vSUM.items(): A(valu('v_mov_b32', vr(LS + rt), s))
        A(nop(0))
        for rt, s in vSUM.items(): A(perm(op, s, vr(LS + rt)))
        for rt, s in vSUM.items(): A(valu('v_add_f32', s if op.startswith('v_permlane16') else vr(LS + rt), s, vr(LS + rt)))
    A(salu('s_lshl_b32', sT1, sW, 11))
    A(salu('s_add_u32', sT1, sT1, LX))
    A(salu('s_xor_b32', sT2, sT1, 2048))
    A(valu('v_add_u32', t0, sT1, vL16))
    A(valu('v_add_u32', t2, sT2, vL16))
    A(dsw('ds_write_b128', t0, vr(LS), 0)); A(dsw('ds_write_b32', t0, vr(LS + 4), 1024))
    A(valu('v_add_u32', t0, UP, vSHP))
    A(valu('v_add_u32', t1, 8 * SL, vSHP))
    A(wait(lg=0)); A(bar())
    c += stamp()
    LP = 192
    A(dsr('ds_read_b128', vr(LP), t2, 0, tag='l')); A(dsr('ds_read_b32', vr(LP + 4), t2, 1024, tag='l'))
    def TH(rt, jd): return vr(104 + (rt * 4 + jd) * 4)
    for rt in range(5):
        for jd in range(4):
            if rt < 4: A(dsr('ds_read_b128', TH(rt, jd), t0, rt * SL + jd * 1024, tag=f'Or{rt}'))
            else: A(dsr('ds_read_b128', TH(rt, jd), t1, jd * 1024, tag=f'Or{rt}'))
        if rt == 2:
            A(need(lg='l'))
            for r in range(5): A(valu('v_add_f32', vr(LS + r), vr(LS + r), vr(LP + r)))
            for r in range(5): A(valu('v_rcp_f32', vr(200 + 2 * r), vr(LS + r)))
            A(salu('s_mov_b32', sT1, f32(2.0 ** 24)))
            A(raw('s_mov_b64 s[46:47], 0', wr=['s46', 's47']))
            for r in range(5):
                A(vcmp('v_cmp_nge_f32', 'vcc', sT1, vr(LS + r)))
                A(nop(0))
                A(raw('s_or_b64 s[46:47], s[46:47], vcc', rd=['vcc', 's46', 's47'], wr=['s46', 's47']))
            A(salu('s_or_b32', sT2, sT2, sT3))
            A(salu('s_lshl_b32', sT1, sW, 2))
            A(salu('s_add_u32', sT1, sT1, LX + 8192))
            A(valu('v_mov_b32', vr(LP), sT1))
            A(valu('v_mov_b32', vr(LP + 1), sT2))
            A(dsw('ds_write_b32', vr(LP), vr(LP + 1), 0))
    for rt in range(5):
        A(need(lg=f'Or{rt}'))
        for jd in range(4):
            for h in range(2):
                A(valu('v_pk_add_f32', off(Oacc(rt, jd), 2 * h), off(Oacc(rt, jd), 2 * h), off(TH(rt, jd), 2 * h), w=2))
        for jd in range(4):
            for h in range(2):
                A(valu('v_pk_mul_f32', off(Oacc(rt, jd), 2 * h), off(Oacc(rt, jd), 2 * h), vr(200 + 2 * rt), w=2, mods='op_sel_hi:[1,0]'))
        for jd in range(4):
            for h in range(2):
                A(valu('v_cvt_pk_bf16_f32', vr(STG + rt * 8 + jd * 2 + h), off(Oacc(rt, jd), 2 * h), off(Oacc(rt, jd), 2 * h + 1)))
        for u in range(2):
            j = rt * 2 + u
            A(dsw('ds_write_b128', t0, vr(STG + j * 4), (j // 4) * SL + (j % 4) * 1024))
    A(valu('v_add_u32', t0, UP, vL16))
    A(valu('v_mov_b32', t1, LX + 8192))
    A(wait(lg=0)); A(bar())
    c += stamp()
    return c

def Of(u, rt):
    f = u * 5 + rt
    return ar(4 * f) if f < 20 else ar(160 + 4 * (f - 20))

def ophase():
    c = []
    A = c.append
    def o_read(u, rt):
        wp, ul = u // 2, u % 2
        j = rt * 2 + ul
        return dsr('ds_read_b128', Of(u, rt), t0, (1 - wp % 2) * 8448 + (wp // 2) * 4224 + (j // 4) * SL + (j % 4) * 1024, tag=f'G{u}')
    def wo_dma(ch):
        q = [setm0(sLDS, (ch % 4) * SL), salu('s_mov_b32', sSO, (ch % 8) * 32768 + (ch // 8) * 128)]
        q += [dma(vD[k], SWO, sSO, PC * k, tag=f'W{ch}') for k in range(4)]
        return q
    def acc(half, nt, rt): return vr((24 if half == 0 else 104) + (rt * 4 + nt) * 4)
    A(dsr('ds_read_b128', vr(252), t1, 0, tag='vote'))
    c += w_reads(0, 'T0')
    for rt in range(5): A(o_read(0, rt))
    A(need(lg='vote'))
    A(valu('v_or3_b32', vr(252), vr(252), vr(253), vr(254)))
    A(valu('v_or_b32', vr(252), vr(252), vr(255)))
    A(salu('s_mul_i32', sT2, sW, 20480))
    A(rfl(sT1, vr(252)))
    A(valu('v_add_u32', t1, sT2, vL16))
    A(salu('s_andn2_b32', sT1, sT1, sPASS))
    A(br('s_cbranch_scc1', 'L_fallback'))
    for rt in range(5): A(o_read(1, rt))
    mf, memq, valq, pre = [], [], [], {}
    orr = [(u, rt) for u in range(2, 8) for rt in range(5)]
    def fin(half, rt, ntp, g):
        d = STG + (rt * 2 + ntp) * 4
        v = []
        for q in range(2):
            a = acc(half, 2 * ntp + q, rt)
            for h in range(2): v.append(valu('v_cvt_pk_bf16_f32', vr(d + 2 * q + h), off(a, 2 * h), off(a, 2 * h + 1)))
        blk = (half * 5 + rt) * 2 + ntp
        st = [salu('s_mov_b32', sT3, (blk // 4) * 4096)] if blk % 4 == 0 or (rt == 0 and ntp == 0) else []
        st.append(vst(vr(d), 4, t1, SWS, sT3, (blk % 4) * 1024, OPT['stpol'], tag='st'))
        return v, st
    f0 = [fin(0, rt, ntp, 0) for rt in range(5) for ntp in range(2)]
    for ch in range(16):
        g0 = ch * 20; half, u = ch // 8, ch % 8
        pre[g0] = [need(lg=f'T{ch}')] if ch else [need(lg='G0')]
        for rt in range(5):
            for nt in range(4):
                mf.append(mfma(acc(half, nt, rt), Wf(ch % 2, nt), Of(u, rt), acc(half, nt, rt) if u else 0))
        if ch + 1 < 16:
            if ch + 1 >= 4: memq.append((g0, need(vm=f'W{ch+1}')))
            memq += [(g0, x) for x in w_reads(ch + 1, f'T{ch+1}')]
        if ch + 4 < 16: memq += [(g0, x) for x in wo_dma(ch + 4)]
        for _ in range(10):
            if orr: memq.append((g0, o_read(*orr.pop(0))))
        if ch in (9, 10):
            for v, st in f0[(ch - 9) * 5:(ch - 8) * 5]: memq += [(g0, x) for x in st]
    for v, st in f0: valq += [(8 * 20 + 4, x) for x in v]
    body, mleft, vleft = weave(mf, memq, valq, pre, flush=False, period=20)
    assert not mleft and not vleft
    pos = {id(x): i for i, x in enumerate(body)}
    for v, st in f0: assert pos[id(st[-1])] > max(pos[id(x)] for x in v)
    c += body
    A(nop(7))
    for rt in range(5):
        for ntp in range(2):
            v, st = fin(1, rt, ntp, 0)
            c += v + st
    c += stamp()
    return c

def fallback():
    c = [label('L_fallback')]
    A = c.append
    A(wait(vm=0, lg=0)); A(bar())
    A(salu('s_mov_b32', sPASS, -1))
    c += kv_mode()
    for k in range(4): A(valu('v_accvgpr_read_b32', vD[k], ar(aDkv + k)))
    for rt in range(5): A(valu('v_mov_b32', Mn(rt), 0xff800000))
    A(salu('s_and_b32', sT1, sW, 1))
    A(salu('s_mul_i32', sT1, sT1, 8448))
    A(valu('v_subrev_u32', t2, sT1, vK))
    A(salu('s_mov_b32', sSO, 0))
    A(setm0(sLDS, 0))
    A(label('L_fb_loop'))
    A(nop(0))
    for k in range(4): A(dma(vD[k], SA, sSO, PC * k))
    A(wait(vm=0)); A(bar())
    for hf in range(2):
        for t in range(2):
            for cc in range(4): A(dsr('ds_read_b128', Kf(hf, t, cc), t2, hf * 8448 + t * 512 + cc * 64))
    A(wait(lg=0)); A(bar())
    for rt in range(5):
        for hf in range(2):
            for t in range(2):
                for cc in range(4): A(mfma(Sb(hf, t), Kf(hf, t, cc), Qf(rt, cc), Sb(hf, t) if cc else 0))
        A(nop(7))
        for n in range(0, 16, 2): A(valu('v_max3_f32', Mn(rt), Mn(rt), off(Sb(0, 0), n), off(Sb(0, 0), n + 1)))
    A(salu('s_add_u32', sSO, sSO, 16384))
    A(salu('s_cmp_lt_u32', sSO, 524288))
    A(br('s_cbranch_scc1', 'L_fb_loop'))
    c += max_finish()
    for i in range(4):
        c += kv_tile_dma('K', i, 'x') + kv_tile_dma('V', i, 'x')
    for i in range(80): A(valu('v_mov_b32', vr(24 + i), 0))
    for s in vSUM.values(): A(valu('v_mov_b32', s, 0))
    for i in range(80): A(valu('v_accvgpr_write_b32', ar(i), 0))
    for i in range(8): A(valu('v_accvgpr_write_b32', ar(224 + i), 0))
    A(valu('v_mov_b32', t0, 0x3f803f80))
    for i in range(4): A(valu('v_accvgpr_write_b32', off(ONES, i), t0))
    c += state_init()
    A(wait(vm=0)); A(bar())
    c += kv_frag_reads(0, 'K') + kv_frag_reads(0, 'V')
    A(wait(lg=0)); A(bar())
    A(br('s_branch', 'L_loop_in'))
    return c

def stamps_out():
    if not OPT['stamps']: return []
    c = []
    A = c.append
    n = stamp_n[0]
    A(wait(vm=0))
    c += stamp()
    n += 1
    A(salu('s_add_u32', 's4', 's68', 64 << 20)); A(salu('s_addc_u32', 's5', 's69', 0)); A(salu('s_and_b32', 's5', 's5', 0xffff))
    A(salu('s_mov_b32', 's6', 1 << 20)); A(salu('s_mov_b32', 's7', 0x20000))
    A(salu('s_lshl_b32', sT1, 's2', 2)); A(salu('s_add_u32', sT1, sT1, sW)); A(salu('s_lshl_b32', sT1, sT1, 6))
    A(valu('v_mov_b32', t0, 0))
    for i in range(n):
        A(valu('v_mov_b32', t1, f's{82+2*i}'))
        A(vst(t1, 1, t0, 's4', sT1, 4 * i))
        A(wait(vm=0))
    return c

def kernel1():
    pre, R, _ = setup()
    st0 = stamp()
    pre = pre[:2] + st0 + pre[2:]
    part1 = resolve(pre + qphase(R) + prologue())
    blocks = [block(j) for j in range(4)]
    first = [x for x in blocks[0] if x.kind == 'mfma'][0]
    entry = [label('L_loop_in'), first, br('s_branch', 'L_loop_mid')]
    loop = [label('L_loop')] + sum(blocks, []) + [br('s_cbranch_scc0', 'L_loop')]
    sw = switch_wo()
    part3 = resolve(epilogue() + ophase()) + stamps_out() + [label('L_end'), raw('s_endpgm')]
    fb = fallback()
    mid = [i for i, x in enumerate(loop) if x.kind == 'label' and x.arg == 'L_loop_mid'][0]
    tr = part1 + entry + loop[mid:] + loop + sw + loop + sw[:2] + part3
    errs = check(tr, 'k1')
    vb = [i for i, x in enumerate(part3) if x.kind == 'br' and x.arg == 'L_fallback'][0]
    errs += check(part3[:vb + 1] + fb + entry + loop[mid:] + loop, 'fb')
    assert part1[-1].kind == 'br'
    code = part1[:-1] + entry + [raw('.p2align 6', 'cmt')] + loop + sw + part3 + fb
    return code, errs

def kernel2():
    c = []
    A = c.append
    A(salu('s_cmp_ge_u32', 's2', 320)); A(br('s_cbranch_scc1', 'L2_end'))
    A(raw('s_load_dwordx2 s[4:5], s[0:1], 96', wr=['s4', 's5']))
    A(raw('s_load_dwordx2 s[8:9], s[0:1], 80', wr=['s8', 's9']))
    A(salu('s_mul_hi_u32', 's12', 's2', 0xcccccccd)); A(salu('s_lshr_b32', 's12', 's12', 4))
    A(salu('s_mul_i32', 's13', 's12', 20)); A(salu('s_sub_u32', 's13', 's2', 's13'))
    A(valu('v_lshrrev_b32', 'v1', 6, 'v0'))
    A(valu('v_lshlrev_b32', 'v2', 4, 'v0'))
    A(rfl('s14', 'v1'))
    A(salu('s_lshl_b32', 's15', 's13', 12))
    A(valu('v_add_u32', 'v2', 's15', 'v2'))
    A(salu('s_mul_i32', 's16', 's12', 16 * 81920))
    A(wait(lg=0))
    A(salu('s_add_u32', 's4', 's4', 's16')); A(salu('s_addc_u32', 's5', 's5', 0)); A(salu('s_and_b32', 's5', 's5', 0xffff))
    A(salu('s_mov_b32', 's6', 16 * 81920)); A(salu('s_mov_b32', 's7', 0x20000))
    for p in range(16):
        A(salu('s_mov_b32', 's17', p * 81920))
        A(vld(vr(16 + 4 * p), 4, 'v2', 's4', 's17', 0, OPT['ldpol'], tag=f'p{p}'))
    A(salu('s_and_b32', 's9', 's9', 0xffff)); A(salu('s_mov_b32', 's10', 8 * 80 * 1024 * 2)); A(salu('s_mov_b32', 's11', 0x20000))
    A(salu('s_lshl_b32', 's15', 's13', 2)); A(salu('s_add_u32', 's15', 's15', 's14'))
    A(salu('s_and_b32', 's18', 's15', 1))
    A(salu('s_lshr_b32', 's15', 's15', 1))
    A(salu('s_mul_i32', 's19', 's15', 205)); A(salu('s_lshr_b32', 's19', 's19', 10))
    A(salu('s_mul_i32', 's20', 's19', 5)); A(salu('s_sub_u32', 's20', 's15', 's20'))
    A(salu('s_and_b32', 's21', 's12', 7))
    A(salu('s_lshr_b32', 's22', 's12', 3))
    A(salu('s_mul_i32', 's21', 's21', 5)); A(salu('s_add_u32', 's21', 's21', 's20')); A(salu('s_lshl_b32', 's21', 's21', 15))
    A(salu('s_lshl_b32', 's22', 's22', 10)); A(salu('s_add_u32', 's21', 's21', 's22'))
    A(salu('s_lshl_b32', 's19', 's19', 7)); A(salu('s_add_u32', 's21', 's21', 's19'))
    A(salu('s_lshl_b32', 's18', 's18', 6)); A(salu('s_add_u32', 's21', 's21', 's18'))
    A(valu('v_and_b32', 'v3', 15, 'v0')); A(valu('v_lshlrev_b32', 'v3', 11, 'v3'))
    A(valu('v_bfe_u32', 'v4', 'v0', 4, 2)); A(valu('v_lshl_add_u32', 'v3', 'v4', 3, 'v3'))
    A(salu('s_mov_b32', 's23', 0xffff0000))
    for p in range(16):
        A(need(vm=f'p{p}'))
        for i in range(4):
            src = vr(16 + 4 * p + i)
            if p == 0:
                A(valu('v_lshlrev_b32', vr(8 + 2 * i), 16, src)); A(valu('v_and_b32', vr(9 + 2 * i), 's23', src))
            else:
                A(valu('v_lshlrev_b32', vr(80 + 2 * i), 16, src)); A(valu('v_and_b32', vr(81 + 2 * i), 's23', src))
        if p:
            for i in range(4): A(valu('v_pk_add_f32', vr(8 + 2 * i), vr(8 + 2 * i), vr(80 + 2 * i), w=2))
    for i in range(4): A(valu('v_cvt_pk_bf16_f32', vr(4 + i), vr(8 + 2 * i), vr(9 + 2 * i)))
    A(vst('v4', 2, 'v3', 's8', 's21', 0)); A(vst('v6', 2, 'v3', 's8', 's21', 32))
    A(label('L2_end')); A(raw('s_endpgm'))
    c = resolve(c)
    return c, check(c, 'k2')

def desc(name, vg, acc):
    return f""".p2align 6
.amdhsa_kernel {name}
  .amdhsa_next_free_vgpr {vg}
  .amdhsa_next_free_sgpr 102
  .amdhsa_accum_offset {acc}
  .amdhsa_group_segment_fixed_size 0
  .amdhsa_kernarg_size 104
  .amdhsa_user_sgpr_count 2
  .amdhsa_user_sgpr_kernarg_segment_ptr 1
  .amdhsa_system_sgpr_workgroup_id_x 1
.end_amdhsa_kernel
"""

def main():
    assert (LX // 2048) % 2 == 0 or True
    k1, e1 = kernel1()
    k2, e2 = kernel2()
    for e in e1 + e2: print('HAZARD', e)
    K1, K2 = NAME + '_kernel', 'reduce_parts_kernel'
    hdr = open('cdna_kernels/' + NAME + '.s.ref').read().split('; Override launch')[0]
    s = hdr
    s += f'; @launch kernel={K1} grid=(256,1,1) block=(256,1,1) lds=163840\n'
    s += f'; @launch kernel={K2} grid=(320,1,1) block=(256,1,1) lds=0\n'
    s += '.amdgcn_target "amdgcn-amd-amdhsa--gfx950"\n.text\n'
    for n, k in ((K1, k1), (K2, k2)):
        s += f'.globl {n}\n.p2align 8\n.type {n},@function\n{n}:\n' + render(k)
    s += '.section .rodata,"a"\n' + desc(K1, 512, 256) + desc(K2, 96, 96)
    open(sys.argv[1], 'w').write(s)
    print('instrs', len(k1), len(k2), 'errors', len(e1) + len(e2))
main()
```

```python
import sys, math, struct
from asmlib import *

NAME = 'concat_heads__gqa_block_cached__gqa_block_cached__near_ridge'
OPT = dict(stamps=0, kvpol='nt', pf=2, stpol='', ldpol='', dbg=0)
for a in sys.argv[2:]:
    k, v = a.split('=')
    OPT[k] = int(v) if v.lstrip('-').isdigit() else v

SL = 16896
PC = 1056
UP = 4 * SL
LX = 9 * SL
def f32(x): return struct.unpack('<I', struct.pack('<f', x))[0]

SX, SA, SB, SWQ, SWO, SWS = 's4', 's8', 's12', 's16', 's20', 's24'
sKb, sVb = 's28', 's30'
sW, sB, sHKV, sHP, sBR, sCNT, sOFF, sSTEP, sLDS, sPASS, sNR, sLAST = ['s%d' % i for i in range(32, 44)]
sT0, sT1, sT2, sT3 = 's44', 's45', 's46', 's47'
sSO = 's80'
vL16 = 'v1'
vD = ['v2', 'v3', 'v4', 'v5']
vK, vK2, vVa, vVa2, vVb, vVb2 = 'v6', 'v7', 'v8', 'v9', 'v10', 'v11'
vT = ['v12', 'v13', 'v14', 'v15']
vSUM = {4: 'v16', 1: 'v17', 2: 'v18'}
vSH, vSHP = 'v19', 'v20'
t0, t1, t2 = 'v21', 'v22', 'v23'
def vr(n): return f'v{n}'
def ar(n): return f'a{n}'
def Oacc(rt, ld): return vr(24 + (rt * 4 + ld) * 4) if ld < 4 else ar((rt * 4 + ld - 4) * 4)
def Vf(b, ld): return vr(104 + 32 * b + 4 * ld)
def Sb(k, t): return vr(168 + 8 * (k % 4) + 4 * t)
def Pb(k): return vr(200 + 4 * (k % 2))
def Mn(rt): return vr(208 + 4 * rt)
def Qf(rt, c): return ar(80 + (rt * 4 + c) * 4)
def Kf(b, t, c): return ar(160 + 32 * b + (t * 4 + c) * 4)
RS = {3: 'a224', 0: 'a228'}
ONES = 'a232'
aDwo, aDkv = 240, 244
def off(r, n): return f'{r[0]}{int(r[1:]) + n}'
vDwo = ['v228', 'v229', 'v230', 'v231']
vW = ['v232', 'v233', 'v234', 'v235']
vXd = 'v236'; vXr = ['v237', 'v238']; vXr4 = ['v239', 'v240']; vPF, vPFd = 'v241', 'v242'
def Qacc(dt, rt): return vr(104 + (rt * 4 + dt) * 4)
def Wf(b, nt): return vr(184 + 16 * b + 4 * nt)
def Xf(c, rt):
    f = c * 5 + rt
    if f < 16: return ar(160 + 4 * f)
    if f < 56: return ar(4 * (f - 16))
    if f < 64: return ar(224 + 4 * (f - 56))
    return ar(160 + 4 * (f - 64))
STG = 216

stamp_n = [0]
def stamp():
    if not OPT['stamps']: return []
    i = stamp_n[0]; stamp_n[0] += 1
    op = 's_memrealtime' if OPT['stamps'] == 2 else 's_memtime'
    return [raw(f'{op} s[{82+2*i}:{83+2*i}]', wr=[f's{82+2*i}', f's{83+2*i}']), wait(lg=0)]

def setm0(base, const): return salu('s_add_u32', 'm0', base, const)

def kv_tile_dma(which, tile, tag):
    sig = 2 * (tile % 4) + (which == 'V')
    srd = SA if which == 'K' else SB
    q = [setm0(sLDS, sig * SL), salu('s_mov_b32', sSO, tile * 16384)]
    q += [dma(vD[k], srd, sSO, PC * k, OPT['kvpol'], tag=tag) for k in range(4)]
    return q

def setup():
    c = []
    A = c.append
    A(salu('s_cmp_ge_u32', 's2', 256)); A(br('s_cbranch_scc1', 'L_end'))
    A(raw('s_load_dwordx16 s[48:63], s[0:1], 0', wr=regs('s48', 16)))
    A(raw('s_load_dwordx4 s[64:67], s[0:1], 64', wr=regs('s64', 4)))
    A(raw('s_load_dwordx2 s[68:69], s[0:1], 96', wr=regs('s68', 2)))
    A(salu('s_and_b32', sT0, 's2', 7))
    A(salu('s_lshr_b32', sT1, 's2', 3))
    A(salu('s_lshr_b32', sBR, sT0, 2))
    A(salu('s_and_b32', sHP, sT1, 1))
    A(salu('s_and_b32', sT0, sT0, 3))
    A(salu('s_lshl_b32', sT0, sT0, 1))
    A(salu('s_bfe_u32', sT2, sT1, 0x10001))
    A(salu('s_add_u32', sHKV, sT0, sT2))
    A(salu('s_lshr_b32', sB, sT1, 2))
    L, G, Q, WV, KH, HH, RP, R4, C4 = ['v%d' % i for i in range(244, 253)]
    A(valu('v_and_b32', L, 63, 'v0'))
    A(valu('v_lshrrev_b32', WV, 6, 'v0'))
    A(valu('v_lshlrev_b32', vL16, 4, L))
    A(rfl(sW, WV))
    A(valu('v_lshrrev_b32', RP, 3, L))
    A(valu('v_and_b32', KH, 1, WV))
    A(valu('v_lshrrev_b32', HH, 1, WV))
    A(valu('v_and_b32', t0, 7, L))
    A(valu('v_and_b32', t1, 6, RP))
    A(valu('v_xor_b32', t0, t0, t1))
    A(valu('v_lshlrev_b32', t0, 4, t0))
    A(valu('v_lshrrev_b32', t1, 2, RP))
    A(valu('v_lshlrev_b32', t1, 3, t1))
    A(valu('v_and_b32', t2, 3, RP))
    A(valu('v_add_u32', t1, t1, t2))
    A(valu('v_lshlrev_b32', t1, 13, t1))
    A(valu('v_lshl_add_u32', t1, WV, 7, t1))
    A(valu('v_add_u32', vW[0], t1, t0))
    for k in range(1, 4):
        A(valu('v_add_u32', vW[k], (16 * (k % 2) + 4 * (k // 2)) * 8192 - PC * k, vW[0]))
    A(valu('v_lshlrev_b32', t1, 10, RP))
    A(valu('v_lshl_add_u32', t1, WV, 8, t1))
    A(valu('v_add_u32', vDwo[0], t1, t0))
    for k in range(1, 4):
        A(valu('v_add_u32', vDwo[k], (8192 - PC) * k, vDwo[0]))
    A(valu('v_lshrrev_b32', t1, 1, RP))
    A(valu('v_lshl_add_u32', t1, KH, 2, t1))
    A(valu('v_and_b32', t2, 7, L))
    A(valu('v_xor_b32', t1, t1, t2))
    A(valu('v_lshlrev_b32', t1, 4, t1))
    A(valu('v_lshl_add_u32', t2, KH, 3, RP))
    A(valu('v_lshl_add_u32', t1, t2, 10, t1))
    A(valu('v_lshl_add_u32', vXd, HH, 7, t1))
    A(valu('v_lshrrev_b32', t1, 2, L))
    A(valu('v_lshl_add_u32', t1, WV, 4, t1))
    A(valu('v_lshlrev_b32', t1, 13, t1))
    A(valu('v_and_b32', t2, 3, L))
    A(valu('v_lshl_add_u32', vPF, t2, 7, t1))
    A(wait(lg=0))
    A(salu('s_cmp_eq_u32', sBR, 0))
    for i in range(5):
        A(raw(f's_cselect_b64 s[{70+2*i}:{71+2*i}], s[{48+2*i}:{49+2*i}], s[{58+2*i}:{59+2*i}]'))
    def srd(s, ptr, offreg, nrec):
        A(salu('s_add_u32', s, ptr, offreg))
        A(salu('s_addc_u32', off(s, 1), off(ptr, 1), 0))
        A(salu('s_and_b32', off(s, 1), off(s, 1), 0xffff))
        A(salu('s_mov_b32', off(s, 2), nrec))
        A(salu('s_mov_b32', off(s, 3), 0x20000))
    A(salu('s_lshl_b32', sT0, sHKV, 1))
    A(salu('s_add_u32', sT0, sT0, sHP))
    A(salu('s_lshl_b32', sT1, sT0, 9))
    A(salu('s_sub_u32', sT2, 512 * 8192, sT1))
    srd(SWQ, 's76', sT1, sT2)
    A(salu('s_mul_i32', sT1, sB, 81920))
    srd(SX, 's70', sT1, 81920)
    A(salu('s_and_b32', sT1, sW, 1))
    A(salu('s_mul_i32', sT1, sT1, 8448))
    A(salu('s_lshr_b32', sT2, sW, 1))
    A(salu('s_mul_i32', sT2, sT2, 4224))
    A(salu('s_add_u32', sLDS, sT1, sT2))
    return c, (L, G, Q, WV, KH, HH, RP, R4, C4), srd

def setup2(R):
    L, G, Q, WV, KH, HH, RP, R4, C4 = R
    c = []
    A = c.append
    def srd(s, ptr, offreg, nrec):
        A(salu('s_add_u32', s, ptr, offreg))
        A(salu('s_addc_u32', off(s, 1), off(ptr, 1), 0))
        A(salu('s_and_b32', off(s, 1), off(s, 1), 0xffff))
        A(salu('s_mov_b32', off(s, 2), nrec))
        A(salu('s_mov_b32', off(s, 3), 0x20000))
    A(salu('s_lshl_b32', sT1, sB, 3))
    A(salu('s_add_u32', sT1, sT1, sHKV))
    A(salu('s_lshl_b32', sT1, sT1, 19))
    for dst, p in ((sKb, 's72'), (sVb, 's74')):
        A(salu('s_add_u32', dst, p, sT1))
        A(salu('s_addc_u32', off(dst, 1), off(p, 1), 0))
        A(salu('s_sub_u32', dst, dst, 96))
        A(salu('s_subb_u32', off(dst, 1), off(dst, 1), 0))
        A(salu('s_and_b32', off(dst, 1), off(dst, 1), 0xffff))
    c += kv_mode()
    A(salu('s_mov_b32', off(SA, 3), 0x20000))
    A(salu('s_mov_b32', off(SB, 3), 0x20000))
    A(salu('s_lshl_b32', sT1, sT0, 18))
    srd(SWO, 's78', sT1, 262144)
    A(salu('s_lshl_b32', sT1, sBR, 3))
    A(salu('s_add_u32', sT1, sT1, sB))
    A(salu('s_lshl_b32', sT1, sT1, 4))
    A(salu('s_add_u32', sT1, sT1, sT0))
    A(salu('s_mul_i32', sT1, sT1, 81920))
    srd(SWS, 's68', sT1, 81920)
    A(salu('s_mov_b32', sPASS, 0))
    A(valu('v_lshrrev_b32', G, 4, L))
    A(valu('v_and_b32', Q, 15, L))
    A(valu('v_bfe_u32', R4, L, 2, 2))
    A(valu('v_and_b32', C4, 3, L))
    A(valu('v_lshrrev_b32', t0, 1, Q))
    A(valu('v_xor_b32', t0, t0, G))
    A(valu('v_lshlrev_b32', t0, 4, t0))
    A(valu('v_lshl_add_u32', vXr[0], Q, 7, t0))
    A(valu('v_xor_b32', vXr[1], 64, vXr[0]))
    A(valu('v_add_u32', vXr4[0], 8 * SL, vXr[0]))
    A(valu('v_add_u32', vXr4[1], 8 * SL, vXr[1]))
    A(valu('v_mul_u32_u24', t0, 4224, HH))
    A(valu('v_mul_u32_u24', t1, 8448, KH))
    A(valu('v_add_u32', t2, t0, vL16))
    A(valu('v_add_u32', vSH, t2, t1))
    A(valu('v_sub_u32', vSHP, t2, t1))
    A(valu('v_add_u32', vSHP, 8448, vSHP))
    A(valu('v_add_u32', t2, t0, t1))
    A(valu('v_and_b32', t0, 1, G))
    A(valu('v_lshl_add_u32', t0, t0, 2, R4))
    A(valu('v_lshl_add_u32', t2, t0, 7, t2))
    A(valu('v_lshl_add_u32', t2, C4, 3, t2))
    A(valu('v_lshrrev_b32', vT[3], 1, G))
    A(valu('v_mul_u32_u24', vT[3], PC, vT[3]))
    A(valu('v_add_u32', t2, t2, vT[3]))
    A(valu('v_add_u32', t2, UP, t2))
    A(valu('v_and_b32', t0, 6, t0))
    for nt in range(4):
        A(valu('v_xor_b32', vT[nt], 2 * nt, t0))
        A(valu('v_lshl_add_u32', vT[nt], vT[nt], 4, t2))
    A(valu('v_and_b32', t0, 7, Q))
    A(valu('v_mul_u32_u24', t0, PC, t0))
    A(valu('v_lshrrev_b32', t2, 3, Q))
    A(valu('v_lshl_add_u32', t0, t2, 8, t0))
    A(valu('v_lshl_add_u32', t0, G, 4, t0))
    A(valu('v_add_u32', vK, t0, t1))
    A(valu('v_add_u32', vK2, UP, vK))
    A(valu('v_bfe_u32', t0, L, 2, 3))
    A(valu('v_mul_u32_u24', t0, PC, t0))
    A(valu('v_lshrrev_b32', t2, 1, G))
    A(valu('v_lshl_add_u32', t0, t2, 8, t0))
    A(valu('v_lshl_add_u32', t0, C4, 3, t0))
    A(valu('v_add_u32', t0, t0, t1))
    A(valu('v_lshl_add_u32', vVa, KH, 7, t0))
    A(valu('v_xor_b32', t2, 1, KH))
    A(valu('v_lshl_add_u32', vVb, t2, 7, t0))
    A(valu('v_add_u32', vVa2, UP, vVa))
    A(valu('v_add_u32', vVb2, UP, vVb))
    A(valu('v_lshl_add_u32', t0, KH, 13, vL16))
    A(valu('v_lshl_add_u32', t0, HH, 12, t0))
    for k in range(4):
        A(valu('v_add_u32', vD[k], 96 - 32 * k, t0))
    A(valu('v_lshrrev_b32', t0, 1, G))
    A(valu('v_lshl_add_u32', t0, t0, 4, Q))
    A(valu('v_lshlrev_b32', t0, 4, t0))
    A(valu('v_and_b32', t2, 1, G))
    A(valu('v_lshl_add_u32', t0, t2, 3, t0))
    A(valu('v_sub_u32', t2, vSH, vL16))
    A(valu('v_add_u32', t0, t0, t2))
    A(valu('v_add_u32', t0, 6 * SL, t0))
    A(valu('v_mul_u32_u24', t1, 4224, HH))
    A(valu('v_add_u32', t1, t1, vL16))
    A(valu('v_add_u32', t1, 6 * SL, t1))
    A(valu('v_mul_u32_u24', t2, 8448, KH))
    A(valu('v_sub_u32', t2, vK, t2))
    return c

def kv_mode():
    c = []
    A = c.append
    A(salu('s_mov_b32', SA, sKb)); A(salu('s_mov_b32', off(SA, 1), off(sKb, 1)))
    A(salu('s_mov_b32', SB, sVb)); A(salu('s_mov_b32', off(SB, 1), off(sVb, 1)))
    A(salu('s_mov_b32', sNR, 524288 + 96))
    A(salu('s_mov_b32', off(SA, 2), sNR)); A(salu('s_mov_b32', off(SB, 2), sNR))
    A(salu('s_mov_b32', sSTEP, 16384))
    A(salu('s_mov_b32', sOFF, 3 * 16384))
    A(salu('s_mov_b32', sCNT, 6))
    A(salu('s_mov_b32', sLAST, 0))
    return c

def w_dma(c):
    q = [setm0(sLDS, UP + (c % 4) * SL), salu('s_mov_b32', sSO, c * 262144)]
    q += [dma(vW[k], SWQ, sSO, PC * k, tag=f'W{c}') for k in range(4)]
    return q

def w_reads(c, tag):
    q = []
    for nt in range(4):
        for rd in range(2):
            x = dsr('ds_read_b64_tr_b16', off(Wf(c % 2, nt), 2 * rd), vT[nt], (c % 4) * SL + rd * 2 * PC, tag=tag)
            x.cost = 6
            q.append(x)
    return q

def x_read(c, rt):
    kp, par = c // 2, c % 2
    if rt < 4: return dsr('ds_read_b128', Xf(c, rt), vXr[par], rt * 16384 + kp * 2048, tag=f'X{c}')
    return dsr('ds_read_b128', Xf(c, rt), vXr4[par], kp * 2048, tag=f'X{c}')

def qphase(R):
    c = []
    A = c.append
    if OPT['pf']:
        A(salu('s_lshl_b32', sT1, sB, 19))
        for i in range(OPT['pf']): A(vld(off(vPFd, i), 1, vPF, SWQ, sT1, 64 * i, tag='pf'))
    c += w_dma(0)
    A(salu('s_lshl_b32', sT3, sW, 10))
    for qtr in range(4):
        for rt in range(5):
            base = (rt * 16384 if rt < 4 else 8 * SL) + qtr * 4096
            A(setm0(sT3, base)); A(salu('s_mov_b32', sSO, rt * 16384 + qtr * 256))
            A(dma(vXd, SX, sSO, 0, tag='X'))
    for k in range(1, 4): c += w_dma(k)
    c += setup2(R)
    c += stamp()
    A(need(vm='X')); A(bar())
    c += stamp()
    c += w_reads(0, 'T0')
    for rt in range(5): A(x_read(0, rt))
    for rt in range(5): A(x_read(1, rt))
    mf, memq, valq, pre = [], [], [], {}
    xr = [(cc, rt) for cc in range(2, 16) for rt in range(5)]
    XPER = 11
    xdone = None
    kvq = [('K', 0), ('V', 0), ('K', 1), ('V', 1)]
    for ch in range(16):
        g0 = ch * 20
        pre[g0] = [need(lg=f'T{ch}')] if ch else [need(lg='X0')]
        for rt in range(5):
            for dt in range(4):
                mf.append(mfma(Qacc(dt, rt), Wf(ch % 2, dt), Xf(ch, rt), Qacc(dt, rt) if ch else 0))
        if ch + 1 < 16:
            memq.append((g0, need(vm=f'W{ch+1}')))
            memq += [(g0, x) for x in w_reads(ch + 1, f'T{ch+1}')]
        if ch + 4 < 16: memq += [(g0, x) for x in w_dma(ch + 4)]
        elif ch == 12: memq += [(g0, x) for x in kv_tile_dma('K', 2, 'K2')]
        elif ch == 13: memq += [(g0, x) for x in kv_tile_dma('V', 2, 'V2')]
        n = 0
        while xr and n < XPER:
            cc, rt = xr[0]
            if cc * 5 + rt >= 64 and (cc * 5 + rt - 64) // 5 >= ch: break
            xr.pop(0); memq.append((g0, x_read(cc, rt))); n += 1
            if not xr: xdone = ch
        if xdone is not None and ch == xdone + 1:
            pre[g0] = [wait(lg=0), bar()]
        if xdone is not None and ch > xdone and kvq:
            wh, tl = kvq.pop(0)
            memq += [(g0, x) for x in kv_tile_dma(wh, tl, f'{wh}{tl}')]
    assert not kvq and xdone + 4 < 12, xdone
    for i in range(80): valq.append((0, valu('v_mov_b32', vr(24 + i), 0)))
    for s in vSUM.values(): valq.append((0, valu('v_mov_b32', s, 0)))
    for i in range(80): valq.append((8 * 20 + 4, valu('v_accvgpr_write_b32', ar(i), 0)))
    for i in range(8): valq.append((13 * 20 + 4, valu('v_accvgpr_write_b32', ar(224 + i), 0)))
    valq.append((13 * 20 + 4, valu('v_mov_b32', vPF, 0x3f803f80)))
    for i in range(4): valq.append((13 * 20 + 4, valu('v_accvgpr_write_b32', off(ONES, i), vPF)))
    for k in range(4):
        valq.append((13 * 20 + 4, valu('v_accvgpr_write_b32', ar(aDwo + k), vDwo[k])))
        valq.append((13 * 20 + 4, valu('v_accvgpr_write_b32', ar(aDkv + k), vD[k])))
    c += weave(mf, memq, valq, pre, period=20)
    c += stamp()
    A(salu('s_mov_b32', sT1, f32(math.log2(math.e) / math.sqrt(128.0))))
    A(salu('s_mov_b32', sT0, sT1))
    A(nop(5))
    for rt in range(5):
        for dt in range(4):
            a = Qacc(dt, rt)
            for h in range(2):
                A(valu('v_pk_mul_f32', off(a, 2 * h), off(a, 2 * h), ('s[44:45]', ['s44', 's45']), w=2))
        for dt in range(4):
            a = Qacc(dt, rt); d = STG + (rt * 4 + dt) * 2
            for h in range(2):
                A(valu('v_cvt_pk_bf16_f32', vr(d + h), off(a, 2 * h), off(a, 2 * h + 1)))
        for dt in range(4):
            j = rt * 2 + dt // 2
            A(dsw('ds_write_b64', t0, vr(STG + (rt * 4 + dt) * 2), (j // 4) * SL + (j % 4) * 1024 + (dt % 2) * 512, tag='Qw'))
    for nt in range(4): A(valu('v_subrev_u32', vT[nt], UP, vT[nt]))
    A(need(vm='V0', lg='Qw')); A(bar())
    return c

def kv_frag_reads(i, which):
    j = i % 4; b = i % 2
    q = []
    if which == 'K':
        a = vK if j < 2 else vK2
        for t in range(2):
            for cc in range(4):
                q.append(dsr('ds_read_b128', Kf(b, t, cc), a, (2 * (j % 2)) * SL + t * 512 + cc * 64, tag='Kr'))
    else:
        for ld in range(8):
            a = (vVa if j < 2 else vVa2) if ld < 4 else (vVb if j < 2 else vVb2)
            for rd in range(2):
                q.append(dsr('ds_read_b64_tr_b16', off(Vf(b, ld), 2 * rd), a, (2 * (j % 2) + 1) * SL + rd * 512 + (ld % 4) * 32, tag='Vr'))
    return q

def state_init():
    c = []
    for i in range(32): c.append(valu('v_mov_b32', off(Vf(1, 0), i), 0))
    for i in range(8): c.append(valu('v_mov_b32', off(Sb(-1, 0), i), f32(-1e30)))
    for i in range(4): c.append(valu('v_mov_b32', off(Pb(-2), i), 0))
    return c

def max_finish():
    c = []
    A = c.append
    for op in ('v_permlane16_swap_b32', 'v_permlane32_swap_b32'):
        for rt in range(5): A(valu('v_mov_b32', off(Mn(rt), 1), Mn(rt)))
        for rt in range(5): A(perm(op, Mn(rt), off(Mn(rt), 1)))
        for rt in range(5): A(valu('v_max_f32', Mn(rt), Mn(rt), off(Mn(rt), 1)))
    for rt in range(5):
        for i in (3, 2, 1, 0): A(valu('v_mul_f32', off(Mn(rt), i), -1.0, Mn(rt)))
    return c

def prologue():
    c = []
    A = c.append
    for cc in range(4): A(dsr('ds_read_b128', Kf(1, 0, cc), t2, cc * 64, tag='Km'))
    for rt in range(5):
        for cc in range(4):
            j = rt * 2 + cc % 2
            A(dsr('ds_read_b128', Qf(rt, cc), t1, (cc // 2) * 8448 + (j // 4) * SL + (j % 4) * 1024, tag=f'Qr{rt}'))
    memq = [(0, x) for x in kv_frag_reads(0, 'K') + kv_frag_reads(0, 'V')]
    for x in memq: x[1].cost = 6
    mf, pre = [], {}
    for rt in range(5):
        pre[rt * 4] = [need(lg=f'Qr{rt}')]
        for cc in range(4): mf.append(mfma(Mn(rt), Kf(1, 0, cc), Qf(rt, cc), Mn(rt) if cc else 0))
    c += weave(mf, memq, [(0, x) for x in state_init()], pre)
    A(need(vm='V1', lg='Vr')); A(bar())
    c += kv_tile_dma('K', 3, 'K3') + kv_tile_dma('V', 3, 'V3')
    for rt in range(5): A(valu('v_max3_f32', Mn(rt), Mn(rt), off(Mn(rt), 1), off(Mn(rt), 2)))
    for rt in range(5): A(valu('v_max_f32', Mn(rt), Mn(rt), off(Mn(rt), 3)))
    c += max_finish()
    c += stamp()
    A(br('s_branch', 'L_loop_in'))
    return c

GX = [2, 7, 12, 18, 23, 29, 35, 40]
RX = [0, 1, 3, 4, 5, 6, 9, 10]
TX = [13, 14, 15, 16, 17, 19, 21, 22, 24, 26, 27, 28, 30, 32, 33, 36]

def softmax_items(k):
    rt = k % 5
    E = [valu('v_exp_f32', off(Sb(k, 0), n), off(Sb(k, 0), n)) for n in range(8)]
    C = [valu('v_cvt_pk_bf16_f32', off(Pb(k), n), off(Sb(k, 0), 2 * n), off(Sb(k, 0), 2 * n + 1)) for n in range(4)]
    Ad = [valu('v_add_f32', vSUM[rt], vSUM[rt], off(Sb(k, 0), n)) for n in range(8)] if rt in vSUM else []
    return E, C, Ad

def pv(k, vb, order=range(8)):
    rt = k % 5
    m = [mfma(Oacc(rt, ld), Vf(vb, ld), Pb(k), Oacc(rt, ld)) for ld in order]
    if rt in RS: m.append(mfma(RS[rt], ONES, Pb(k), RS[rt]))
    return m

def block(j):
    out = [cmt(f'block {j}')]
    mem = {}
    for x, i in zip(RX, kv_frag_reads(j + 1, 'K')): mem[x] = i
    for x, i in zip(TX, kv_frag_reads(j + 1, 'V')): mem[x] = i
    for n, x in enumerate(GX):
        mem[x] = dma(vD[n % 4], SA if n < 4 else SB, sOFF, PC * (n % 4), OPT['kvpol'])
    assert len(mem) == 32
    sc = {1: [salu('s_add_u32', sOFF, sOFF, sSTEP)], 2: [setm0(sLDS, 2 * j * SL)], 20: [setm0(sLDS, (2 * j + 1) * SL)],
          24: [wait(lg=8)]}
    if j == 2: sc[0] = []
    if j == 1:
        sc[38] = [salu('s_mov_b32', off(SA, 2), sNR)]
    if j == 2:
        sc[10] = [salu('s_mov_b32', off(SB, 2), sNR)]
    if j == 3: sc[39] = [salu('s_sub_u32', sCNT, sCNT, 1)]
    cq, aq = [], []
    xi = ei = 0
    for s in range(5):
        kq, ke, kp = 5 * j + s, 5 * j + s - 1, 5 * j + s - 2
        mf = [mfma(Sb(kq, t), Kf(j % 2, t, cc), Qf(s, cc), Sb(kq, t) if cc else Mn(s)) for t in range(2) for cc in range(4)]
        mf += pv(kp, (j - 1) % 2 if s < 2 else j % 2)
        E, C, Ad = softmax_items(ke)
        for g, m in enumerate(mf):
            if s == 0 and g == 0 and j == 0:
                pass
            out.append(m)
            if g % 2 == 0 and g < 16:
                n = g // 2
                if s == 0 and g == 0:
                    out += [wait(vm=16, lg=0), bar()]
                    if j == 0: out.append(label('L_loop_mid'))
                out += sc.get(ei, [])
                out.append(E[n]); ei += 1
                if Ad: aq.append(Ad[n])
                if n % 2 == 1: cq.append(C[n // 2])
            else:
                nv = 2
                if xi in mem: out.append(mem[xi]); nv = 1
                xi += 1
                for _ in range(nv):
                    if cq: out.append(cq.pop(0))
                    elif aq: out.append(aq.pop(0))
    assert xi == 42 and ei == 40 and not cq and not aq, (xi, ei, len(cq), len(aq))
    return out

def switch_wo():
    c = []
    A = c.append
    A(salu('s_cmp_lg_u32', sLAST, 0)); A(br('s_cbranch_scc1', 'L_epi'))
    A(salu('s_mov_b32', sLAST, 1))
    A(salu('s_mov_b32', sCNT, 0))
    A(salu('s_mov_b32', SA, SWO)); A(salu('s_mov_b32', off(SA, 1), off(SWO, 1))); A(salu('s_mov_b32', off(SA, 2), 262144))
    A(salu('s_add_u32', SB, SWO, 32768)); A(salu('s_addc_u32', off(SB, 1), off(SWO, 1), 0)); A(salu('s_mov_b32', off(SB, 2), 262144 - 32768))
    A(salu('s_mov_b32', sSTEP, 65536))
    A(salu('s_mov_b32', sOFF, -65536 & 0xffffffff))
    A(salu('s_mov_b32', sNR, 0))
    for k in range(4): A(valu('v_accvgpr_read_b32', vD[k], ar(aDwo + k)))
    if OPT['pf']:
        A(salu('s_lshl_b32', sT1, sB, 15))
        A(salu('s_lshl_b32', sT2, sW, 13))
        A(salu('s_add_u32', sT1, sT1, sT2))
        A(valu('v_lshlrev_b32', t0, 3, vL16))
        for i in range(OPT['pf']): A(vld(off(t1, i), 1, t0, SWO, sT1, 64 * i))
    A(br('s_branch', 'L_loop'))
    return c

def epilogue():
    c = [label('L_epi')]
    A = c.append
    c += stamp()
    A(wait(vm=0))
    A(valu('v_add_u32', t0, UP, vSH))
    A(valu('v_add_u32', t2, 8 * SL, vSH))
    def xw(rt, jd):
        if rt < 4: return dsw('ds_write_b128', t0, Oacc(rt, 4 + jd), rt * SL + jd * 1024, tag='Ow')
        return dsw('ds_write_b128', t2, Oacc(rt, 4 + jd), jd * 1024, tag='Ow')
    E, C, Ad = softmax_items(19)
    order = [4, 5, 6, 7, 0, 1, 2, 3]
    mf = pv(18, 1, order)
    for g, m in enumerate(mf):
        A(m)
        if g < 8: A(E[g])
        if g >= 2 and g % 2 == 0: A(C[g // 2 - 1])
    ws = [xw(rt, jd) for rt in range(4) for jd in range(4)]
    A(ws.pop(0)); A(ws.pop(0))
    for g, m in enumerate(pv(19, 1, order)):
        A(m); A(ws.pop(0)); A(Ad[g])
    for x in ws: A(x)
    LS = 184
    for rt in RS: A(valu('v_accvgpr_read_b32', vr(LS + rt), RS[rt]))
    for jd in range(4): A(xw(4, jd))
    for op in ('v_permlane16_swap_b32', 'v_permlane32_swap_b32'):
        for rt, s in vSUM.items(): A(valu('v_mov_b32', vr(LS + rt), s))
        A(nop(0))
        for rt, s in vSUM.items(): A(perm(op, s, vr(LS + rt)))
        for rt, s in vSUM.items(): A(valu('v_add_f32', s if op.startswith('v_permlane16') else vr(LS + rt), s, vr(LS + rt)))
    A(salu('s_lshl_b32', sT1, sW, 11))
    A(salu('s_add_u32', sT1, sT1, LX))
    A(salu('s_xor_b32', sT2, sT1, 2048))
    A(valu('v_add_u32', t0, sT1, vL16))
    A(valu('v_add_u32', t2, sT2, vL16))
    A(dsw('ds_write_b128', t0, vr(LS), 0)); A(dsw('ds_write_b32', t0, vr(LS + 4), 1024))
    A(valu('v_add_u32', t0, UP, vSHP))
    A(valu('v_add_u32', t1, 8 * SL, vSHP))
    A(wait(lg=0)); A(bar())
    c += stamp()
    LP = 192
    A(dsr('ds_read_b128', vr(LP), t2, 0, tag='l')); A(dsr('ds_read_b32', vr(LP + 4), t2, 1024, tag='l'))
    def TH(rt, jd): return vr(104 + (rt * 4 + jd) * 4)
    for rt in range(5):
        for jd in range(4):
            if rt < 4: A(dsr('ds_read_b128', TH(rt, jd), t0, rt * SL + jd * 1024, tag=f'Or{rt}'))
            else: A(dsr('ds_read_b128', TH(rt, jd), t1, jd * 1024, tag=f'Or{rt}'))
        if rt == 2:
            A(need(lg='l'))
            for r in range(5): A(valu('v_add_f32', vr(LS + r), vr(LS + r), vr(LP + r)))
            for r in range(5): A(valu('v_rcp_f32', vr(200 + 2 * r), vr(LS + r)))
            A(salu('s_mov_b32', sT1, f32(2.0 ** 24)))
            A(raw('s_mov_b64 s[46:47], 0', wr=['s46', 's47']))
            for r in range(5):
                A(vcmp('v_cmp_nge_f32', 'vcc', sT1, vr(LS + r)))
                A(nop(0))
                A(raw('s_or_b64 s[46:47], s[46:47], vcc', rd=['vcc', 's46', 's47'], wr=['s46', 's47']))
            A(salu('s_or_b32', sT2, sT2, sT3))
            A(salu('s_lshl_b32', sT1, sW, 2))
            A(salu('s_add_u32', sT1, sT1, LX + 8192))
            A(valu('v_mov_b32', vr(LP), sT1))
            A(valu('v_mov_b32', vr(LP + 1), sT2))
            A(dsw('ds_write_b32', vr(LP), vr(LP + 1), 0))
    for rt in range(5):
        A(need(lg=f'Or{rt}'))
        for jd in range(4):
            for h in range(2):
                A(valu('v_pk_add_f32', off(Oacc(rt, jd), 2 * h), off(Oacc(rt, jd), 2 * h), off(TH(rt, jd), 2 * h), w=2))
        for jd in range(4):
            for h in range(2):
                A(valu('v_pk_mul_f32', off(Oacc(rt, jd), 2 * h), off(Oacc(rt, jd), 2 * h), vr(200 + 2 * rt), w=2, mods='op_sel_hi:[1,0]'))
        for jd in range(4):
            for h in range(2):
                A(valu('v_cvt_pk_bf16_f32', vr(STG + rt * 8 + jd * 2 + h), off(Oacc(rt, jd), 2 * h), off(Oacc(rt, jd), 2 * h + 1)))
        for u in range(2):
            j = rt * 2 + u
            A(dsw('ds_write_b128', t0, vr(STG + j * 4), (j // 4) * SL + (j % 4) * 1024))
    A(valu('v_add_u32', t0, UP, vL16))
    A(valu('v_mov_b32', t1, LX + 8192))
    A(wait(lg=0)); A(bar())
    c += stamp()
    return c

def Of(u, rt):
    f = u * 5 + rt
    return ar(4 * f) if f < 20 else ar(160 + 4 * (f - 20))

def ophase():
    c = []
    A = c.append
    def o_read(u, rt):
        wp, ul = u // 2, u % 2
        j = rt * 2 + ul
        return dsr('ds_read_b128', Of(u, rt), t0, (1 - wp % 2) * 8448 + (wp // 2) * 4224 + (j // 4) * SL + (j % 4) * 1024, tag=f'G{u}')
    def wo_dma(ch):
        q = [setm0(sLDS, (ch % 4) * SL), salu('s_mov_b32', sSO, (ch % 8) * 32768 + (ch // 8) * 128)]
        q += [dma(vD[k], SWO, sSO, PC * k, tag=f'W{ch}') for k in range(4)]
        return q
    def acc(half, nt, rt): return vr((24 if half == 0 else 104) + (rt * 4 + nt) * 4)
    A(dsr('ds_read_b128', vr(252), t1, 0, tag='vote'))
    c += w_reads(0, 'T0')
    for rt in range(5): A(o_read(0, rt))
    A(need(lg='vote'))
    A(valu('v_or3_b32', vr(252), vr(252), vr(253), vr(254)))
    A(valu('v_or_b32', vr(252), vr(252), vr(255)))
    A(salu('s_mul_i32', sT2, sW, 20480))
    A(rfl(sT1, vr(252)))
    A(valu('v_add_u32', t1, sT2, vL16))
    A(salu('s_andn2_b32', sT1, sT1, sPASS))
    A(br('s_cbranch_scc1', 'L_fallback'))
    for rt in range(5): A(o_read(1, rt))
    mf, memq, valq, pre = [], [], [], {}
    orr = [(u, rt) for u in range(2, 8) for rt in range(5)]
    def fin(half, rt, ntp, g):
        d = STG + (rt * 2 + ntp) * 4
        v = []
        for q in range(2):
            a = acc(half, 2 * ntp + q, rt)
            for h in range(2): v.append(valu('v_cvt_pk_bf16_f32', vr(d + 2 * q + h), off(a, 2 * h), off(a, 2 * h + 1)))
        blk = (half * 5 + rt) * 2 + ntp
        st = [salu('s_mov_b32', sT3, (blk // 4) * 4096)] if blk % 4 == 0 or (rt == 0 and ntp == 0) else []
        st.append(vst(vr(d), 4, t1, SWS, sT3, (blk % 4) * 1024, OPT['stpol'], tag='st'))
        return v, st
    f0 = [fin(0, rt, ntp, 0) for rt in range(5) for ntp in range(2)]
    for ch in range(16):
        g0 = ch * 20; half, u = ch // 8, ch % 8
        pre[g0] = [need(lg=f'T{ch}')] if ch else [need(lg='G0')]
        for rt in range(5):
            for nt in range(4):
                mf.append(mfma(acc(half, nt, rt), Wf(ch % 2, nt), Of(u, rt), acc(half, nt, rt) if u else 0))
        if ch + 1 < 16:
            if ch + 1 >= 4: memq.append((g0, need(vm=f'W{ch+1}')))
            memq += [(g0, x) for x in w_reads(ch + 1, f'T{ch+1}')]
        if ch + 4 < 16: memq += [(g0, x) for x in wo_dma(ch + 4)]
        for _ in range(10):
            if orr: memq.append((g0, o_read(*orr.pop(0))))
        if ch in (9, 10):
            for v, st in f0[(ch - 9) * 5:(ch - 8) * 5]: memq += [(g0, x) for x in st]
    for v, st in f0: valq += [(8 * 20 + 4, x) for x in v]
    body, mleft, vleft = weave(mf, memq, valq, pre, flush=False, period=20)
    assert not mleft and not vleft
    pos = {id(x): i for i, x in enumerate(body)}
    for v, st in f0: assert pos[id(st[-1])] > max(pos[id(x)] for x in v)
    c += body
    A(nop(7))
    for rt in range(5):
        for ntp in range(2):
            v, st = fin(1, rt, ntp, 0)
            c += v + st
    c += stamp()
    return c

def fallback():
    c = [label('L_fallback')]
    A = c.append
    A(wait(vm=0, lg=0)); A(bar())
    A(salu('s_mov_b32', sPASS, -1))
    c += kv_mode()
    for k in range(4): A(valu('v_accvgpr_read_b32', vD[k], ar(aDkv + k)))
    for rt in range(5): A(valu('v_mov_b32', Mn(rt), 0xff800000))
    A(salu('s_and_b32', sT1, sW, 1))
    A(salu('s_mul_i32', sT1, sT1, 8448))
    A(valu('v_subrev_u32', t2, sT1, vK))
    A(salu('s_mov_b32', sSO, 0))
    A(setm0(sLDS, 0))
    A(label('L_fb_loop'))
    A(nop(0))
    for k in range(4): A(dma(vD[k], SA, sSO, PC * k))
    A(wait(vm=0)); A(bar())
    for hf in range(2):
        for t in range(2):
            for cc in range(4): A(dsr('ds_read_b128', Kf(hf, t, cc), t2, hf * 8448 + t * 512 + cc * 64))
    A(wait(lg=0)); A(bar())
    for rt in range(5):
        for hf in range(2):
            for t in range(2):
                for cc in range(4): A(mfma(Sb(hf, t), Kf(hf, t, cc), Qf(rt, cc), Sb(hf, t) if cc else 0))
        A(nop(7))
        for n in range(0, 16, 2): A(valu('v_max3_f32', Mn(rt), Mn(rt), off(Sb(0, 0), n), off(Sb(0, 0), n + 1)))
    A(salu('s_add_u32', sSO, sSO, 16384))
    A(salu('s_cmp_lt_u32', sSO, 524288))
    A(br('s_cbranch_scc1', 'L_fb_loop'))
    c += max_finish()
    for i in range(4):
        c += kv_tile_dma('K', i, 'x') + kv_tile_dma('V', i, 'x')
    for i in range(80): A(valu('v_mov_b32', vr(24 + i), 0))
    for s in vSUM.values(): A(valu('v_mov_b32', s, 0))
    for i in range(80): A(valu('v_accvgpr_write_b32', ar(i), 0))
    for i in range(8): A(valu('v_accvgpr_write_b32', ar(224 + i), 0))
    A(valu('v_mov_b32', t0, 0x3f803f80))
    for i in range(4): A(valu('v_accvgpr_write_b32', off(ONES, i), t0))
    c += state_init()
    A(wait(vm=0)); A(bar())
    c += kv_frag_reads(0, 'K') + kv_frag_reads(0, 'V')
    A(wait(lg=0)); A(bar())
    A(br('s_branch', 'L_loop_in'))
    return c

def stamps_out():
    if not OPT['stamps']: return []
    c = []
    A = c.append
    n = stamp_n[0]
    A(wait(vm=0))
    c += stamp()
    n += 1
    A(salu('s_add_u32', 's4', 's68', 64 << 20)); A(salu('s_addc_u32', 's5', 's69', 0)); A(salu('s_and_b32', 's5', 's5', 0xffff))
    A(salu('s_mov_b32', 's6', 1 << 20)); A(salu('s_mov_b32', 's7', 0x20000))
    A(salu('s_lshl_b32', sT1, 's2', 2)); A(salu('s_add_u32', sT1, sT1, sW)); A(salu('s_lshl_b32', sT1, sT1, 6))
    A(valu('v_mov_b32', t0, 0))
    for i in range(n):
        A(valu('v_mov_b32', t1, f's{82+2*i}'))
        A(vst(t1, 1, t0, 's4', sT1, 4 * i))
        A(wait(vm=0))
    return c

def kernel1():
    pre, R, _ = setup()
    st0 = stamp()
    pre = pre[:2] + st0 + pre[2:]
    part1 = resolve(pre + qphase(R) + prologue())
    blocks = [block(j) for j in range(4)]
    first = [x for x in blocks[0] if x.kind == 'mfma'][0]
    entry = [label('L_loop_in'), first, br('s_branch', 'L_loop_mid')]
    loop = [label('L_loop')] + sum(blocks, []) + [br('s_cbranch_scc0', 'L_loop')]
    sw = switch_wo()
    part3 = resolve(epilogue() + ophase()) + stamps_out() + [label('L_end'), raw('s_endpgm')]
    fb = fallback()
    mid = [i for i, x in enumerate(loop) if x.kind == 'label' and x.arg == 'L_loop_mid'][0]
    tr = part1 + entry + loop[mid:] + loop + sw + loop + sw[:2] + part3
    errs = check(tr, 'k1')
    vb = [i for i, x in enumerate(part3) if x.kind == 'br' and x.arg == 'L_fallback'][0]
    errs += check(part3[:vb + 1] + fb + entry + loop[mid:] + loop, 'fb')
    assert part1[-1].kind == 'br'
    code = part1[:-1] + entry + [raw('.p2align 6', 'cmt')] + loop + sw + part3 + fb
    return code, errs

def kernel2():
    c = []
    A = c.append
    A(salu('s_cmp_ge_u32', 's2', 320)); A(br('s_cbranch_scc1', 'L2_end'))
    if OPT['stamps']: A(raw('s_memrealtime s[30:31]'))
    A(raw('s_load_dwordx2 s[4:5], s[0:1], 96', wr=['s4', 's5']))
    if OPT['stamps']: A(raw('s_load_dwordx2 s[40:41], s[0:1], 96'))
    A(raw('s_load_dwordx2 s[8:9], s[0:1], 80', wr=['s8', 's9']))
    A(salu('s_mul_hi_u32', 's12', 's2', 0xcccccccd)); A(salu('s_lshr_b32', 's12', 's12', 4))
    A(salu('s_mul_i32', 's13', 's12', 20)); A(salu('s_sub_u32', 's13', 's2', 's13'))
    A(valu('v_lshrrev_b32', 'v1', 6, 'v0'))
    A(valu('v_lshlrev_b32', 'v2', 4, 'v0'))
    A(rfl('s14', 'v1'))
    A(salu('s_lshl_b32', 's15', 's13', 12))
    A(valu('v_add_u32', 'v2', 's15', 'v2'))
    A(salu('s_mul_i32', 's16', 's12', 16 * 81920))
    A(wait(lg=0))
    A(salu('s_add_u32', 's4', 's4', 's16')); A(salu('s_addc_u32', 's5', 's5', 0)); A(salu('s_and_b32', 's5', 's5', 0xffff))
    A(salu('s_mov_b32', 's6', 16 * 81920)); A(salu('s_mov_b32', 's7', 0x20000))
    for p in range(16):
        A(salu('s_mov_b32', 's17', p * 81920))
        A(vld(vr(16 + 4 * p), 4, 'v2', 's4', 's17', 0, OPT['ldpol'], tag=f'p{p}'))
    A(salu('s_and_b32', 's9', 's9', 0xffff)); A(salu('s_mov_b32', 's10', 8 * 80 * 1024 * 2)); A(salu('s_mov_b32', 's11', 0x20000))
    A(salu('s_lshl_b32', 's15', 's13', 2)); A(salu('s_add_u32', 's15', 's15', 's14'))
    A(salu('s_and_b32', 's18', 's15', 1))
    A(salu('s_lshr_b32', 's15', 's15', 1))
    A(salu('s_mul_i32', 's19', 's15', 205)); A(salu('s_lshr_b32', 's19', 's19', 10))
    A(salu('s_mul_i32', 's20', 's19', 5)); A(salu('s_sub_u32', 's20', 's15', 's20'))
    A(salu('s_and_b32', 's21', 's12', 7))
    A(salu('s_lshr_b32', 's22', 's12', 3))
    A(salu('s_mul_i32', 's21', 's21', 5)); A(salu('s_add_u32', 's21', 's21', 's20')); A(salu('s_lshl_b32', 's21', 's21', 15))
    A(salu('s_lshl_b32', 's22', 's22', 10)); A(salu('s_add_u32', 's21', 's21', 's22'))
    A(salu('s_lshl_b32', 's19', 's19', 7)); A(salu('s_add_u32', 's21', 's21', 's19'))
    A(salu('s_lshl_b32', 's18', 's18', 6)); A(salu('s_add_u32', 's21', 's21', 's18'))
    A(valu('v_and_b32', 'v3', 15, 'v0')); A(valu('v_lshlrev_b32', 'v3', 11, 'v3'))
    A(valu('v_bfe_u32', 'v4', 'v0', 4, 2)); A(valu('v_lshl_add_u32', 'v3', 'v4', 3, 'v3'))
    A(salu('s_mov_b32', 's23', 0xffff0000))
    for p in range(16):
        A(need(vm=f'p{p}'))
        for i in range(4):
            src = vr(16 + 4 * p + i)
            if p == 0:
                A(valu('v_lshlrev_b32', vr(8 + 2 * i), 16, src)); A(valu('v_and_b32', vr(9 + 2 * i), 's23', src))
            else:
                A(valu('v_lshlrev_b32', vr(80 + 2 * i), 16, src)); A(valu('v_and_b32', vr(81 + 2 * i), 's23', src))
        if p:
            for i in range(4): A(valu('v_pk_add_f32', vr(8 + 2 * i), vr(8 + 2 * i), vr(80 + 2 * i), w=2))
    for i in range(4): A(valu('v_cvt_pk_bf16_f32', vr(4 + i), vr(8 + 2 * i), vr(9 + 2 * i)))
    A(vst('v4', 2, 'v3', 's8', 's21', 0)); A(vst('v6', 2, 'v3', 's8', 's21', 32))
    if OPT['stamps']:
        A(wait(vm=0)); A(raw('s_memrealtime s[32:33]')); A(wait(lg=0))
        A(salu('s_add_u32', 's40', 's40', 65 << 20)); A(salu('s_addc_u32', 's41', 's41', 0)); A(salu('s_and_b32', 's41', 's41', 0xffff))
        A(salu('s_mov_b32', 's42', 1 << 20)); A(salu('s_mov_b32', 's43', 0x20000))
        A(salu('s_lshl_b32', 's34', 's2', 2)); A(salu('s_add_u32', 's34', 's34', 's14')); A(salu('s_lshl_b32', 's34', 's34', 3))
        A(valu('v_mov_b32', 'v1', 0)); A(valu('v_mov_b32', 'v10', 's30')); A(valu('v_mov_b32', 'v11', 's32'))
        A(vst('v10', 2, 'v1', 's40', 's34', 0))
    A(label('L2_end')); A(raw('s_endpgm'))
    c = resolve(c)
    return c, check(c, 'k2')

def desc(name, vg, acc):
    return f""".p2align 6
.amdhsa_kernel {name}
  .amdhsa_next_free_vgpr {vg}
  .amdhsa_next_free_sgpr 102
  .amdhsa_accum_offset {acc}
  .amdhsa_group_segment_fixed_size 0
  .amdhsa_kernarg_size 104
  .amdhsa_user_sgpr_count 2
  .amdhsa_user_sgpr_kernarg_segment_ptr 1
  .amdhsa_system_sgpr_workgroup_id_x 1
.end_amdhsa_kernel
"""

def main():
    assert (LX // 2048) % 2 == 0 or True
    k1, e1 = kernel1()
    k2, e2 = kernel2()
    for e in e1 + e2: print('HAZARD', e)
    K1, K2 = NAME + '_kernel', 'reduce_parts_kernel'
    hdr = open('cdna_kernels/' + NAME + '.s.ref').read().split('; Override launch')[0]
    s = hdr
    s += f'; @launch kernel={K1} grid=(256,1,1) block=(256,1,1) lds=163840\n'
    s += f'; @launch kernel={K2} grid=(320,1,1) block=(256,1,1) lds=0\n'
    s += '.amdgcn_target "amdgcn-amd-amdhsa--gfx950"\n.text\n'
    for n, k in ((K1, k1), (K2, k2)):
        s += f'.globl {n}\n.p2align 8\n.type {n},@function\n{n}:\n' + render(k)
    s += '.section .rodata,"a"\n' + desc(K1, 512, 256) + desc(K2, 96, 96)
    open(sys.argv[1], 'w').write(s)
    print('instrs', len(k1), len(k2), 'errors', len(e1) + len(e2))
main()
```

```python
import sys, math, struct
from asmlib import *

NAME = 'concat_heads__gqa_block_cached__gqa_block_cached__near_ridge'
OPT = dict(scr=0, lpf=1, cpf=1, rb=8, rp=8, xq='', wpol0='nt', wn0=2, xpol='nt', opol='', wpol='nt', bst=0, qkord=0, xl='', kvpf=0, kv0=11, kvlate=2, rot=1, sg='a', samekv=0, stamps=0, kvpol='nt', pf=0, stpol='', ldpol='', dbg=0)
for a in sys.argv[2:]:
    k, v = a.split('=')
    OPT[k] = int(v) if v.lstrip('-').isdigit() else v.replace('+', ' ')

SL = 16896
PC = 1056
UP = 4 * SL
LX = 9 * SL
def f32(x): return struct.unpack('<I', struct.pack('<f', x))[0]

SX, SA, SB, SWQ, SWO, SWS = 's4', 's8', 's12', 's16', 's20', 's24'
sKb, sVb = 's28', 's30'
sW, sB, sHKV, sHP, sBR, sCNT, sOFF, sSTEP, sLDS, sPASS, sNR, sLAST = ['s%d' % i for i in range(32, 44)]
sT0, sT1, sT2, sT3 = 's44', 's45', 's46', 's47'
sSO = 's80'
sWOFF = 's81'
sPO = 's3'
sXQ = ['s48', 's49', 's50', 's51']
vL16 = 'v1'
vD = ['v2', 'v3', 'v4', 'v5']
vK, vK2, vVa, vVa2, vVb, vVb2 = 'v6', 'v7', 'v8', 'v9', 'v10', 'v11'
vT = ['v12', 'v13', 'v14', 'v15']
vSUM = {4: 'v16', 1: 'v17', 2: 'v18'}
vSH, vSHP = 'v19', 'v20'
t0, t1, t2 = 'v21', 'v22', 'v23'
def vr(n): return f'v{n}'
def ar(n): return f'a{n}'
def Oacc(rt, ld): return vr(24 + (rt * 4 + ld) * 4) if ld < 4 else ar((rt * 4 + ld - 4) * 4)
def Vf(b, ld): return vr(104 + 32 * b + 4 * ld)
def Sb(k, t): return vr(168 + 8 * (k % 4) + 4 * t)
def Pb(k): return vr(200 + 4 * (k % 2))
def Mn(rt): return vr(208 + 4 * rt)
def Qf(rt, c): return ar(80 + (rt * 4 + c) * 4)
def Kf(b, t, c): return ar(160 + 32 * b + (t * 4 + c) * 4)
RS = {3: 'a224', 0: 'a228'}
ONES = 'a232'
aDwo, aDkv = 240, 244
def off(r, n): return f'{r[0]}{int(r[1:]) + n}'
vDwo = ['v228', 'v229', 'v230', 'v231']
vW = ['v232', 'v233', 'v234', 'v235']
vXd = 'v236'; vXdr = ['v236', 'v216', 'v217', 'v218', 'v219']; vXr = ['v237', 'v238']; vXr4 = ['v239', 'v240']; vPF, vPFd = 'v241', 'v242'
def Qacc(dt, rt): return vr(104 + (rt * 4 + dt) * 4)
def Wf(b, nt): return vr(184 + 16 * b + 4 * nt)
def Xf(c, rt):
    f = c * 5 + rt
    if f < 16: return ar(160 + 4 * f)
    if f < 56: return ar(4 * (f - 16))
    if f < 64: return ar(224 + 4 * (f - 56))
    return ar(160 + 4 * (f - 64))
STG = 216

stamp_n = [0]
def stamp(grp='a'):
    if not OPT['stamps'] or OPT['sg'] not in grp: return []
    i = stamp_n[0]; stamp_n[0] += 1
    if OPT['stamps'] == 3:
        assert i < 8
        return [raw('s_memtime s[98:99]'), raw('s_memrealtime s[100:101]'), wait(lg=0), salu('s_mov_b32', f's{82+i}', 's98'), salu('s_mov_b32', f's{90+i}', 's100')]
    op = 's_memrealtime' if OPT['stamps'] == 2 else 's_memtime'
    return [raw(f'{op} s[{82+2*i}:{83+2*i}]', wr=[f's{82+2*i}', f's{83+2*i}']), wait(lg=0)]

def setm0(base, const): return salu('s_add_u32', 'm0', base, const)

def kv_tile_dma(which, tile, tag):
    sig = 2 * (tile % 4) + (which == 'V')
    srd = SA if which == 'K' else SB
    q = [setm0(sLDS, sig * SL), salu('s_mov_b32', sSO, tile * 16384)]
    q += [dma(vD[k], srd, sSO, PC * k, OPT['kvpol'], tag=tag) for k in range(4)]
    return q

def setup():
    c = []
    A = c.append
    A(salu('s_cmp_ge_u32', 's2', 256)); A(br('s_cbranch_scc1', 'L_end'))
    A(raw('s_load_dwordx16 s[48:63], s[0:1], 0', wr=regs('s48', 16)))
    A(raw('s_load_dwordx4 s[64:67], s[0:1], 64', wr=regs('s64', 4)))
    A(raw('s_load_dwordx4 s[76:79], s[0:1], 88', wr=regs('s76', 4)))
    A(raw('s_load_dwordx2 s[68:69], s[0:1], 80', wr=regs('s68', 2)))
    L, G, Q, WV, KH, HH, RP, R4, C4 = ['v%d' % i for i in range(244, 253)]
    if OPT['scr']:
        A(salu('s_lshr_b32', sT1, 's2', 5)); A(salu('s_and_b32', 's2', 's2', 31)); A(salu('s_lshl_b32', 's2', 's2', 3)); A(salu('s_or_b32', 's2', 's2', sT1))
    A(salu('s_lshr_b32', sT1, 's2', 3))
    if OPT['cpf']:
        A(raw('s_getpc_b64 s[74:75]', wr=['s74', 's75']))
        A(label('L_pc'))
        A(salu('s_lshl_b32', sT2, sT1, 10))
        A(valu('v_lshrrev_b32', t0, 5, 'v0'))
        A(raw('s_min_u32 s46, s46, L_code_end-L_pc-1024', rd=['s46'], wr=['s46']))
        A(valu('v_lshlrev_b32', t0, 7, t0))
        A(salu('s_add_u32', 's74', 's74', sT2))
        A(salu('s_addc_u32', 's75', 's75', 0))
        A(I(f'global_load_dword {vPFd}, {t0}, s[74:75]', 'vld', rd=[t0, 's74', 's75'], wr=[vPFd], tag='cpf'))
    A(valu('v_lshrrev_b32', WV, 6, 'v0'))
    A(valu('v_bfe_u32', RP, 'v0', 3, 3))
    A(rfl(sW, WV))
    A(valu('v_and_b32', C4, 7, 'v0'))
    A(valu('v_and_b32', t1, 6, RP))
    A(valu('v_xor_b32', R4, C4, t1))
    A(valu('v_and_b32', t1, 4, RP))
    A(valu('v_add_u32', t1, t1, RP))
    A(valu('v_lshlrev_b32', t1, 13, t1))
    A(valu('v_lshl_add_u32', t1, WV, 7, t1))
    A(valu('v_lshl_add_u32', vW[0], R4, 4, t1))
    for k in range(1, 4):
        A(valu('v_add_u32', vW[k], (16 * (k % 2) + 4 * (k // 2)) * 8192 - PC * k, vW[0]))
    A(salu('s_and_b32', sT0, 's2', 3))
    A(salu('s_lshl_b32', sT0, sT0, 2))
    A(salu('s_and_b32', sT2, sT1, 3))
    A(salu('s_add_u32', sT0, sT0, sT2))
    A(salu('s_lshr_b32', sB, sT1, 2))
    A(salu('s_mul_i32', sWOFF, sB, OPT['rb']))
    A(salu('s_mul_i32', sT2, sT2, OPT['rp']))
    A(salu('s_add_u32', sWOFF, sWOFF, sT2))
    A(salu('s_and_b32', sWOFF, sWOFF, 15))
    A(salu('s_and_b32', sT2, sW, 2))
    A(salu('s_add_u32', 's3', sWOFF, sT2))
    A(salu('s_lshl_b32', 's3', 's3', 6))
    A(salu('s_lshl_b32', sWOFF, sWOFF, 18))
    A(salu('s_mul_i32', sT2, sT2, 2112))
    A(salu('s_and_b32', sT1, sW, 1))
    A(salu('s_mul_i32', sT1, sT1, 8448))
    A(salu('s_add_u32', sLDS, sT1, sT2))
    A(salu('s_lshl_b32', sT1, sT0, 9))
    A(salu('s_sub_u32', off(SWQ, 2), 512 * 8192, sT1))
    A(salu('s_mov_b32', off(SWQ, 3), 0x20000))
    A(setm0(sLDS, UP))
    A(valu('v_bfe_u32', t2, 'v0', 3, 4))
    A(valu('v_lshrrev_b32', t1, 1, t2))
    A(valu('v_xor_b32', t1, t1, C4))
    A(valu('v_lshlrev_b32', t1, 4, t1))
    A(valu('v_lshl_add_u32', vXd, t2, 10, t1))
    A(salu('s_mul_i32', sT2, sB, 81920))
    A(salu('s_bitcmp0_b32', 's2', 2))
    A(wait(lg=0))
    c += stamp('b')
    A(raw('s_cselect_b64 s[16:17], s[54:55], s[64:65]'))
    A(raw('s_cselect_b64 s[4:5], s[48:49], s[58:59]'))
    A(raw('s_cselect_b64 s[70:71], s[50:51], s[60:61]'))
    A(raw('s_cselect_b64 s[72:73], s[52:53], s[62:63]'))
    A(raw('s_cselect_b64 s[20:21], s[56:57], s[66:67]'))
    A(salu('s_add_u32', SWQ, SWQ, sT1))
    A(salu('s_addc_u32', off(SWQ, 1), off(SWQ, 1), 0))
    A(salu('s_and_b32', off(SWQ, 1), off(SWQ, 1), 0xffff))
    c += w_dma(0)[2:]
    c += stamp('b')
    A(salu('s_add_u32', SX, SX, sT2))
    A(salu('s_addc_u32', off(SX, 1), off(SX, 1), 0))
    A(salu('s_and_b32', off(SX, 1), off(SX, 1), 0xffff))
    A(salu('s_mov_b32', off(SX, 2), 81920))
    A(salu('s_mov_b32', off(SX, 3), 0x20000))
    A(salu('s_lshl_b32', sT3, sW, 10))
    A(salu('s_and_b32', sXQ[0], 's3', 1023))
    xd = x_dma(0, False)
    for rt in range(5):
        A(xd[2 * rt])
        A(valu('v_add_u32', vXdr[rt + 1], (rt + 1) * 16384, vXd) if rt < 4 else nop(0))
        A(xd[2 * rt + 1])
        if rt == 0: c += stamp('b')
    c += stamp('b')
    return c, (L, G, Q, WV, KH, HH, RP, R4, C4)

def setup2(R):
    L, G, Q, WV, KH, HH, RP, R4, C4 = R
    c = []
    A = c.append
    def srd(s, ptr, offreg, nrec):
        A(salu('s_add_u32', s, ptr, offreg))
        A(salu('s_addc_u32', off(s, 1), off(ptr, 1), 0))
        A(salu('s_and_b32', off(s, 1), off(s, 1), 0xffff))
        A(salu('s_mov_b32', off(s, 2), nrec))
        A(salu('s_mov_b32', off(s, 3), 0x20000))
    for q in range(1, 4):
        A(salu('s_add_u32', sXQ[q], 's3', q * 256))
        A(salu('s_and_b32', sXQ[q], sXQ[q], 1023))
    A(salu('s_bfe_u32', sBR, 's2', 0x10002))
    A(salu('s_and_b32', sHP, sT0, 1))
    A(salu('s_lshr_b32', sHKV, sT0, 1))
    A(valu('v_and_b32', L, 63, 'v0'))
    A(valu('v_lshlrev_b32', vL16, 4, L))
    A(valu('v_and_b32', KH, 1, WV))
    A(valu('v_lshrrev_b32', HH, 1, WV))
    A(valu('v_lshlrev_b32', t1, 10, RP))
    A(valu('v_lshl_add_u32', t1, WV, 8, t1))
    A(valu('v_lshl_add_u32', vDwo[0], R4, 4, t1))
    for k in range(1, 4):
        A(valu('v_add_u32', vDwo[k], (8192 - PC) * k, vDwo[0]))
    A(valu('v_lshlrev_b32', vPF, 7, 'v0'))
    A(salu('s_lshl_b32', sT1, sB, 3))
    A(salu('s_add_u32', sT1, sT1, sHKV))
    A(salu('s_lshl_b32', sT1, sT1, 19))
    for dst, p in ((sKb, 's70'), (sVb, 's72')):
        A(salu('s_add_u32', dst, p, sT1))
        A(salu('s_addc_u32', off(dst, 1), off(p, 1), 0))
        A(salu('s_sub_u32', dst, dst, 96))
        A(salu('s_subb_u32', off(dst, 1), off(dst, 1), 0))
        A(salu('s_and_b32', off(dst, 1), off(dst, 1), 0xffff))
    ca = c; c = []; A = c.append
    c += kv_mode()
    A(salu('s_mov_b32', off(SA, 3), 0x20000))
    A(salu('s_mov_b32', off(SB, 3), 0x20000))
    A(salu('s_lshl_b32', sT1, sT0, 18))
    srd(SWO, SWO, sT1, 262144)
    A(salu('s_lshl_b32', sT1, sBR, 3))
    A(salu('s_add_u32', sT1, sT1, sB))
    A(salu('s_lshl_b32', sT1, sT1, 4))
    A(salu('s_add_u32', sT1, sT1, sT0))
    A(salu('s_mul_i32', sT1, sT1, 81920))
    srd(SWS, 's78', sT1, 81920)
    A(salu('s_mov_b32', sPASS, 0))
    A(valu('v_lshrrev_b32', G, 4, L))
    A(valu('v_and_b32', Q, 15, L))
    A(valu('v_bfe_u32', R4, L, 2, 2))
    A(valu('v_and_b32', C4, 3, L))
    A(valu('v_lshrrev_b32', t0, 1, Q))
    A(valu('v_xor_b32', t0, t0, G))
    A(valu('v_lshlrev_b32', t0, 4, t0))
    A(valu('v_lshl_add_u32', vXr[0], Q, 7, t0))
    A(valu('v_xor_b32', vXr[1], 64, vXr[0]))
    A(valu('v_add_u32', vXr4[0], 8 * SL, vXr[0]))
    A(valu('v_add_u32', vXr4[1], 8 * SL, vXr[1]))
    A(valu('v_mul_u32_u24', t0, 4224, HH))
    A(valu('v_mul_u32_u24', t1, 8448, KH))
    A(valu('v_add_u32', t2, t0, vL16))
    A(valu('v_add_u32', vSH, t2, t1))
    A(valu('v_sub_u32', vSHP, t2, t1))
    A(valu('v_add_u32', vSHP, 8448, vSHP))
    A(valu('v_add_u32', t2, t0, t1))
    A(valu('v_and_b32', t0, 1, G))
    A(valu('v_lshl_add_u32', t0, t0, 2, R4))
    A(valu('v_lshl_add_u32', t2, t0, 7, t2))
    A(valu('v_lshl_add_u32', t2, C4, 3, t2))
    A(valu('v_lshrrev_b32', vT[3], 1, G))
    A(valu('v_mul_u32_u24', vT[3], PC, vT[3]))
    A(valu('v_add_u32', t2, t2, vT[3]))
    A(valu('v_add_u32', t2, UP, t2))
    A(valu('v_and_b32', t0, 6, t0))
    for nt in range(4):
        A(valu('v_xor_b32', vT[nt], 2 * nt, t0))
        A(valu('v_lshl_add_u32', vT[nt], vT[nt], 4, t2))
    A(valu('v_and_b32', t0, 7, Q))
    A(valu('v_mul_u32_u24', t0, PC, t0))
    A(valu('v_lshrrev_b32', t2, 3, Q))
    A(valu('v_lshl_add_u32', t0, t2, 8, t0))
    A(valu('v_lshl_add_u32', t0, G, 4, t0))
    A(valu('v_add_u32', vK, t0, t1))
    A(valu('v_add_u32', vK2, UP, vK))
    A(valu('v_bfe_u32', t0, L, 2, 3))
    A(valu('v_mul_u32_u24', t0, PC, t0))
    A(valu('v_lshrrev_b32', t2, 1, G))
    A(valu('v_lshl_add_u32', t0, t2, 8, t0))
    A(valu('v_lshl_add_u32', t0, C4, 3, t0))
    A(valu('v_add_u32', t0, t0, t1))
    A(valu('v_lshl_add_u32', vVa, KH, 7, t0))
    A(valu('v_xor_b32', t2, 1, KH))
    A(valu('v_lshl_add_u32', vVb, t2, 7, t0))
    A(valu('v_add_u32', vVa2, UP, vVa))
    A(valu('v_add_u32', vVb2, UP, vVb))
    A(valu('v_lshl_add_u32', t0, KH, 13, vL16))
    A(valu('v_lshl_add_u32', t0, HH, 12, t0))
    for k in range(4):
        A(valu('v_add_u32', vD[k], 96 - 32 * k, t0))
    A(valu('v_lshrrev_b32', t0, 1, G))
    A(valu('v_lshl_add_u32', t0, t0, 4, Q))
    A(valu('v_lshlrev_b32', t0, 4, t0))
    A(valu('v_and_b32', t2, 1, G))
    A(valu('v_lshl_add_u32', t0, t2, 3, t0))
    A(valu('v_sub_u32', t2, vSH, vL16))
    A(valu('v_add_u32', t0, t0, t2))
    A(valu('v_add_u32', t0, 6 * SL, t0))
    A(valu('v_mul_u32_u24', t1, 4224, HH))
    A(valu('v_add_u32', t1, t1, vL16))
    A(valu('v_add_u32', t1, 6 * SL, t1))
    A(valu('v_mul_u32_u24', t2, 8448, KH))
    A(valu('v_sub_u32', t2, vK, t2))
    return ca, c

def kv_mode():
    c = []
    A = c.append
    A(salu('s_mov_b32', SA, sKb)); A(salu('s_mov_b32', off(SA, 1), off(sKb, 1)))
    A(salu('s_mov_b32', SB, sVb)); A(salu('s_mov_b32', off(SB, 1), off(sVb, 1)))
    A(salu('s_mov_b32', sNR, 0 if 'Z' in OPT['xl'] else 524288 + 96))
    A(salu('s_mov_b32', off(SA, 2), sNR)); A(salu('s_mov_b32', off(SB, 2), sNR))
    A(salu('s_mov_b32', sSTEP, 0 if OPT['samekv'] else 16384))
    A(salu('s_mov_b32', sOFF, 3 * 16384))
    A(salu('s_mov_b32', sCNT, 6))
    A(salu('s_mov_b32', sLAST, 0))
    A(salu('s_lshl_b32', sPO, sB, 5)); A(salu('s_add_u32', sPO, sPO, sW)); A(salu('s_lshl_b32', sPO, sPO, 10))
    return c

def w_dma(c):
    q = [setm0(sLDS, UP + (c % 4) * SL)]
    if c: q += [salu('s_add_u32', sWOFF, sWOFF, 262144), salu('s_and_b32', sWOFF, sWOFF, 0x3fffff)]
    else: q += [nop(0)]
    q += [dma(vW[k], SWQ, sWOFF, PC * k, OPT['wpol0'] if c < OPT['wn0'] else OPT['wpol'], tag=f'W{c}') for k in range(4)]
    return q

def x_dma(qtr, pad=True):
    q = []
    for rt in range(5):
        base = (rt * 16384 if rt < 4 else 8 * SL) + qtr * 4096
        q += [setm0(sT3, base)] + ([nop(0)] if pad else []) + [dma(vXdr[rt], SX, sXQ[qtr], 0, OPT['xpol'], tag=f'XD{qtr}')]
    return q

def w_reads(c, tag):
    q = []
    for nt in range(4):
        for rd in range(2):
            x = dsr('ds_read_b64_tr_b16', off(Wf(c % 2, nt), 2 * rd), vT[nt], (c % 4) * SL + rd * 2 * PC, tag=tag)
            x.cost = 6
            q.append(x)
    return q

def x_read(c, rt):
    kp, par = c // 2, c % 2
    if rt < 4: return dsr('ds_read_b128', Xf(c, rt), vXr[par], rt * 16384 + kp * 2048, tag=f'X{c}')
    return dsr('ds_read_b128', Xf(c, rt), vXr4[par], kp * 2048, tag=f'X{c}')

def resolve_partial(prev, body):
    xq = OPT['xq']
    if not xq: return body
    out = []
    for x in body:
        if 'G' in xq and x.kind == 'dma' and x.tag[0] == 'W': x = I(x.text.replace('s[16:19]', 's[56:59]'), 'dma', tag=x.tag) if 'Z' in xq else I('s_nop 0', 'dma', tag=x.tag)
        if 'K' in xq and x.kind == 'dma' and x.tag[0] in 'KV': x = I('s_nop 0', 'dma', tag=x.tag)
        if 'T' in xq and x.kind == 'dsr' and x.tag[0] == 'T': x = I('s_nop 0', 'dsr', tag=x.tag)
        if 'X' in xq and x.kind == 'dsr' and x.tag[0] == 'X': x = I('s_nop 0', 'dsr', tag=x.tag)
        if 'V' in xq and x.kind == 'valu' and ('v_mov_b32' in x.text or ', 0' in x.text): continue
        out.append(x)
    return out

def qphase(R):
    c = []
    A = c.append
    w1 = w_dma(1)
    c += w1[:-1]
    s2a, s2b = setup2(R)
    c += s2a + s2b
    c += stamp('b')
    c += w1[-1:] + x_dma(1)
    c += stamp('ab')
    A(need(vm='XD0'))
    c += stamp('b')
    A(bar())
    c += stamp()
    c += w_reads(0, 'T0')
    for rt in range(5): A(x_read(0, rt))
    for rt in range(5): A(x_read(1, rt))
    mf, memq, valq, pre = [], [], [], {}
    xr = [(cc, rt) for cc in range(2, 16) for rt in range(5)]
    xdone = None
    kvq = [('K', 0), ('V', 0), ('K', 1), ('V', 1)]
    early = {0: w_dma(2) + w_dma(3), 1: x_dma(2, False) + w_dma(4), 2: x_dma(3, False) + w_dma(5), 3: w_dma(6) + w_dma(7)}
    xper = {0: 5, 1: 5, 2: 5, 3: 5, 4: 10, 5: 10, 6: 10, 7: 10, 8: 10}
    xlim = {0: 4, 1: 4, 2: 8, 3: 8}
    for ch in range(16):
        g0 = ch * 20
        pre[g0] = [need(lg=f'T{ch}')] if ch else [need(lg='X0')]
        if ch == 2: pre[g0] = [need(vm='XD1', lg='T2'), bar()]
        if ch == 4: pre[g0] = [need(vm='XD3', lg='T4'), bar()] + stamp('b')
        for rt in range(5):
            for dt in range(4):
                mf.append(mfma(Qacc(dt, rt), Wf(ch % 2, dt), Xf(ch, rt), Qacc(dt, rt) if ch else 0))
        if ch + 1 < 16:
            memq.append((g0, need(vm=f'W{ch+1}')))
            memq += [(g0, x) for x in w_reads(ch + 1, f'T{ch+1}')]
        if ch in early: memq += [(g0, x) for x in early[ch]]
        elif ch + 4 < 16: memq += [(g0, x) for x in w_dma(ch + 4)]
        elif ch == 12 + OPT['kvlate']: memq += [(g0, x) for x in kv_tile_dma('K', 2, 'K2')]
        elif ch == 13 + OPT['kvlate']: memq += [(g0, x) for x in kv_tile_dma('V', 2, 'V2')]
        n = 0
        while xr and n < xper.get(ch, 11):
            cc, rt = xr[0]
            if cc >= xlim.get(ch, 16): break
            if cc * 5 + rt >= 64 and (cc * 5 + rt - 64) // 5 >= ch: break
            xr.pop(0); memq.append((g0, x_read(cc, rt))); n += 1
            if not xr: xdone = ch
        if xdone is not None and ch == xdone + 1:
            pre[g0] = [wait(lg=0), bar()]
        if ch in (0, 1, 2, 3, 4, 6, 9, 12): pre[g0] += stamp('c')
        if ch in (0, 2, 4, 8, 12): pre[g0] += stamp('d')
        if xdone is not None and ch > xdone and kvq and ch >= OPT['kv0']:
            wh, tl = kvq.pop(0)
            memq += [(g0, x) for x in kv_tile_dma(wh, tl, f'{wh}{tl}')]
    print('xdone', xdone)
    assert not kvq
    for i in range(80): valq.append((0, valu('v_mov_b32', vr(24 + i), 0)))
    for s in vSUM.values(): valq.append((0, valu('v_mov_b32', s, 0)))
    for i in range(80): valq.append((8 * 20 + 4, valu('v_accvgpr_write_b32', ar(i), 0)))
    for i in range(8): valq.append((13 * 20 + 4, valu('v_accvgpr_write_b32', ar(224 + i), 0)))
    valq.append((13 * 20 + 4, valu('v_mov_b32', vPF, 0x3f803f80)))
    for i in range(4): valq.append((13 * 20 + 4, valu('v_accvgpr_write_b32', off(ONES, i), vPF)))
    for k in range(4):
        valq.append((13 * 20 + 4, valu('v_accvgpr_write_b32', ar(aDwo + k), vDwo[k])))
        valq.append((13 * 20 + 4, valu('v_accvgpr_write_b32', ar(aDkv + k), vD[k])))
    body = resolve_partial(c, weave(mf, memq, valq, pre, period=20))
    c += body
    c += stamp('acde')
    A(salu('s_mov_b32', sT1, f32(math.log2(math.e) / math.sqrt(128.0))))
    A(salu('s_mov_b32', sT0, sT1))
    A(nop(5))
    for rt in range(5):
        for dt in range(4):
            a = Qacc(dt, rt)
            for h in range(2):
                A(valu('v_pk_mul_f32', off(a, 2 * h), off(a, 2 * h), ('s[44:45]', ['s44', 's45']), w=2))
        for dt in range(4):
            a = Qacc(dt, rt); d = STG + (rt * 4 + dt) * 2
            for h in range(2):
                A(valu('v_cvt_pk_bf16_f32', vr(d + h), off(a, 2 * h), off(a, 2 * h + 1)))
        for dt in range(4):
            j = rt * 2 + dt // 2
            A(dsw('ds_write_b64', t0, vr(STG + (rt * 4 + dt) * 2), (j // 4) * SL + (j % 4) * 1024 + (dt % 2) * 512, tag='Qw'))
    for nt in range(4): A(valu('v_subrev_u32', vT[nt], UP, vT[nt]))
    A(need(vm='V0', lg='Qw')); A(bar())
    return c

def kv_frag_reads(i, which):
    j = i % 4; b = i % 2
    q = []
    if which == 'K':
        a = vK if j < 2 else vK2
        for t in range(2):
            for cc in range(4):
                q.append(dsr('ds_read_b128', Kf(b, t, cc), a, (2 * (j % 2)) * SL + t * 512 + cc * 64, tag='Kr'))
    else:
        for ld in range(8):
            a = (vVa if j < 2 else vVa2) if ld < 4 else (vVb if j < 2 else vVb2)
            for rd in range(2):
                q.append(dsr('ds_read_b64_tr_b16', off(Vf(b, ld), 2 * rd), a, (2 * (j % 2) + 1) * SL + rd * 512 + (ld % 4) * 32, tag='Vr'))
    return q

def state_init():
    c = []
    for i in range(32): c.append(valu('v_mov_b32', off(Vf(1, 0), i), 0))
    for i in range(8): c.append(valu('v_mov_b32', off(Sb(-1, 0), i), f32(-1e30)))
    for i in range(4): c.append(valu('v_mov_b32', off(Pb(-2), i), 0))
    return c

def max_finish():
    c = []
    A = c.append
    for op in ('v_permlane16_swap_b32', 'v_permlane32_swap_b32'):
        for rt in range(5): A(valu('v_mov_b32', off(Mn(rt), 1), Mn(rt)))
        for rt in range(5): A(perm(op, Mn(rt), off(Mn(rt), 1)))
        for rt in range(5): A(valu('v_max_f32', Mn(rt), Mn(rt), off(Mn(rt), 1)))
    for rt in range(5):
        for i in (3, 2, 1, 0): A(valu('v_mul_f32', off(Mn(rt), i), -1.0, Mn(rt)))
    return c

def prologue():
    c = []
    A = c.append
    for cc in range(4): A(dsr('ds_read_b128', Kf(1, 0, cc), t2, cc * 64, tag='Km'))
    for rt in range(5):
        for cc in range(4):
            j = rt * 2 + cc % 2
            A(dsr('ds_read_b128', Qf(rt, cc), t1, (cc // 2) * 8448 + (j // 4) * SL + (j % 4) * 1024, tag=f'Qr{rt}'))
    memq = [(0, x) for x in kv_frag_reads(0, 'K') + kv_frag_reads(0, 'V')]
    for x in memq: x[1].cost = 6
    mf, pre = [], {}
    for rt in range(5):
        pre[rt * 4] = [need(lg=f'Qr{rt}')]
        for cc in range(4): mf.append(mfma(Mn(rt), Kf(1, 0, cc), Qf(rt, cc), Mn(rt) if cc else 0))
    c += weave(mf, memq, [(0, x) for x in state_init()], pre)
    A(need(vm='V1', lg='Vr')); A(bar())
    c += kv_tile_dma('K', 3, 'K3') + kv_tile_dma('V', 3, 'V3')
    for rt in range(5): A(valu('v_max3_f32', Mn(rt), Mn(rt), off(Mn(rt), 1), off(Mn(rt), 2)))
    for rt in range(5): A(valu('v_max_f32', Mn(rt), Mn(rt), off(Mn(rt), 3)))
    c += max_finish()
    c += stamp('ade')
    if OPT['bst']: A(raw('s_mov_b64 s[98:99], 1'))
    A(br('s_branch', 'L_loop_in'))
    return c

GX = [2, 7, 12, 18, 23, 29, 35, 40]
RX = [0, 1, 3, 4, 5, 6, 9, 10]
TX = [13, 14, 15, 16, 17, 19, 21, 22, 24, 26, 27, 28, 30, 32, 33, 36]

def softmax_items(k):
    rt = k % 5
    E = [valu('v_exp_f32', off(Sb(k, 0), n), off(Sb(k, 0), n)) for n in range(8)]
    C = [valu('v_cvt_pk_bf16_f32', off(Pb(k), n), off(Sb(k, 0), 2 * n), off(Sb(k, 0), 2 * n + 1)) for n in range(4)]
    Ad = [valu('v_add_f32', vSUM[rt], vSUM[rt], off(Sb(k, 0), n)) for n in range(8)] if rt in vSUM else []
    return E, C, Ad

def pv(k, vb, order=range(8)):
    rt = k % 5
    m = [mfma(Oacc(rt, ld), Vf(vb, ld), Pb(k), Oacc(rt, ld)) for ld in order]
    if rt in RS: m.append(mfma(RS[rt], ONES, Pb(k), RS[rt]))
    return m

def block(j):
    out = [cmt(f'block {j}')]
    mem = {}
    for x, i in zip(RX, kv_frag_reads(j + 1, 'K')): mem[x] = i
    for x, i in zip(TX, kv_frag_reads(j + 1, 'V')): mem[x] = i
    for n, x in enumerate(GX):
        mem[x] = dma(vD[n % 4], SA if n < 4 else SB, sOFF, PC * (n % 4), OPT['kvpol'])
    assert len(mem) == 32
    if j == 1 and OPT['lpf']: mem[38] = vld('v228', 1, vL16, SWO, sPO, 0, OPT['opol'])
    sc = {1: [salu('s_add_u32', sOFF, sOFF, sSTEP)], 2: [setm0(sLDS, 2 * j * SL)], 20: [setm0(sLDS, (2 * j + 1) * SL)],
          24: [wait(lg=8)]}
    if j == 2: sc[0] = []
    if j == 1:
        sc[38] = [salu('s_mov_b32', off(SA, 2), sNR)]
    if j == 2:
        sc[10] = [salu('s_mov_b32', off(SB, 2), sNR)]
        if OPT['lpf']: sc[12] = [salu('s_add_u32', sPO, sPO, 4096)]
    if j == 3: sc[39] = [salu('s_sub_u32', sCNT, sCNT, 1)]
    cq, aq = [], []
    xi = ei = 0
    for s in range(5):
        kq, ke, kp = 5 * j + s, 5 * j + s - 1, 5 * j + s - 2
        if OPT['qkord']: mf = [mfma(Sb(kq, t), Kf(j % 2, t, cc), Qf(s, cc), Sb(kq, t) if cc else Mn(s)) for cc in range(4) for t in range(2)]
        else: mf = [mfma(Sb(kq, t), Kf(j % 2, t, cc), Qf(s, cc), Sb(kq, t) if cc else Mn(s)) for t in range(2) for cc in range(4)]
        mf += pv(kp, (j - 1) % 2 if s < 2 else j % 2)
        E, C, Ad = softmax_items(ke)
        for g, m in enumerate(mf):
            if s == 0 and g == 0 and j == 0:
                pass
            out.append(m)
            if g % 2 == 0 and g < 16:
                n = g // 2
                if s == 0 and g == 0:
                    out += [wait(vm=16, lg=0), bar()]
                    if j == 0: out.append(label('L_loop_mid'))
                    if OPT['bst']:
                        out += [raw('v_mov_b32 v242, s100\n    v_cndmask_b32 v243, v243, v242, s[98:99]', 'valu', rd=['s100'], wr=['v243']),
                                raw('s_memtime s[100:101]' if OPT['bst'] == 1 else 's_memrealtime s[100:101]'), raw('s_lshl_b64 s[98:99], s[98:99], 1')]
                out += sc.get(ei, [])
                out.append(E[n]); ei += 1
                if Ad: aq.append(Ad[n])
                if n % 2 == 1: cq.append(C[n // 2])
            else:
                nv = 2
                if xi in mem: out.append(mem[xi]); nv = 1
                xi += 1
                for _ in range(nv):
                    if cq: out.append(cq.pop(0))
                    elif aq: out.append(aq.pop(0))
    assert xi == 42 and ei == 40 and not cq and not aq, (xi, ei, len(cq), len(aq))
    xl = OPT['xl']
    if 'G' in xl: out = [x for x in out if x.kind != 'dma']
    if 'B' in xl: out = [x for x in out if x.kind != 'bar']
    if 'R' in xl: out = [x for x in out if x.kind != 'dsr']
    if 'E' in xl: out = [x for x in out if x.kind != 'trans']
    if 'V' in xl: out = [x for x in out if x.kind != 'valu']
    if 'W' in xl: out = [x for x in out if x.kind != 'wait']
    if 'w' in xl: out = [wait(lg=0) if (x.kind == 'wait' and x.arg[0] == 16) else x for x in out]
    if 'H' in xl:
        n = 0; o2 = []
        for x in out:
            if x.kind == 'dma':
                n += 1
                if n % 2 == 0: continue
            o2.append(x)
        out = [wait(vm=8, lg=0) if (x.kind == 'wait' and x.arg[0] == 16) else x for x in o2]
    return out

def switch_wo():
    c = []
    A = c.append
    A(salu('s_cmp_lg_u32', sLAST, 0)); A(br('s_cbranch_scc1', 'L_epi'))
    A(salu('s_mov_b32', sLAST, 1))
    A(salu('s_mov_b32', sCNT, 0))
    A(salu('s_mov_b32', SA, SWO)); A(salu('s_mov_b32', off(SA, 1), off(SWO, 1))); A(salu('s_mov_b32', off(SA, 2), 262144))
    A(salu('s_add_u32', SB, SWO, 32768)); A(salu('s_addc_u32', off(SB, 1), off(SWO, 1), 0)); A(salu('s_mov_b32', off(SB, 2), 262144 - 32768))
    A(salu('s_mov_b32', sSTEP, 65536))
    A(salu('s_mov_b32', sOFF, -65536 & 0xffffffff))
    A(salu('s_mov_b32', sNR, 0))
    for k in range(4): A(valu('v_accvgpr_read_b32', vD[k], ar(aDwo + k)))
    if OPT['pf']:
        A(salu('s_lshl_b32', sT1, sB, 15))
        A(salu('s_lshl_b32', sT2, sW, 13))
        A(salu('s_add_u32', sT1, sT1, sT2))
        A(valu('v_lshlrev_b32', t0, 3, vL16))
        for i in range(OPT['pf']): A(vld(off(t1, i), 1, t0, SWO, sT1, 64 * i, OPT['opol']))
    A(br('s_branch', 'L_loop'))
    return c

def epilogue():
    c = [label('L_epi')]
    A = c.append
    if OPT['bst']:
        A(wait(lg=0)); A(raw('v_mov_b32 v242, s100\n    v_cndmask_b32 v243, v243, v242, s[98:99]', 'valu', rd=['s100'], wr=['v243']))
        A(raw('s_memtime s[100:101]' if OPT['bst'] == 1 else 's_memrealtime s[100:101]')); A(raw('s_lshl_b64 s[98:99], s[98:99], 1')); A(wait(lg=0)); A(nop(3))
        A(raw('v_mov_b32 v242, s100\n    v_cndmask_b32 v243, v243, v242, s[98:99]', 'valu', rd=['s100'], wr=['v243'])); A(nop(1))
        A(valu('v_accvgpr_write_b32', 'a248', 'v243'))
    c += stamp('ae')
    A(wait(vm=0))
    A(valu('v_add_u32', t0, UP, vSH))
    A(valu('v_add_u32', t2, 8 * SL, vSH))
    def xw(rt, jd):
        if rt < 4: return dsw('ds_write_b128', t0, Oacc(rt, 4 + jd), rt * SL + jd * 1024, tag='Ow')
        return dsw('ds_write_b128', t2, Oacc(rt, 4 + jd), jd * 1024, tag='Ow')
    E, C, Ad = softmax_items(19)
    order = [4, 5, 6, 7, 0, 1, 2, 3]
    mf = pv(18, 1, order)
    for g, m in enumerate(mf):
        A(m)
        if g < 8: A(E[g])
        if g >= 2 and g % 2 == 0: A(C[g // 2 - 1])
    ws = [xw(rt, jd) for rt in range(4) for jd in range(4)]
    A(ws.pop(0)); A(ws.pop(0))
    for g, m in enumerate(pv(19, 1, order)):
        A(m); A(ws.pop(0)); A(Ad[g])
    for x in ws: A(x)
    LS = 184
    for rt in RS: A(valu('v_accvgpr_read_b32', vr(LS + rt), RS[rt]))
    for jd in range(4): A(xw(4, jd))
    for op in ('v_permlane16_swap_b32', 'v_permlane32_swap_b32'):
        for rt, s in vSUM.items(): A(valu('v_mov_b32', vr(LS + rt), s))
        A(nop(0))
        for rt, s in vSUM.items(): A(perm(op, s, vr(LS + rt)))
        for rt, s in vSUM.items(): A(valu('v_add_f32', s if op.startswith('v_permlane16') else vr(LS + rt), s, vr(LS + rt)))
    A(salu('s_lshl_b32', sT1, sW, 11))
    A(salu('s_add_u32', sT1, sT1, LX))
    A(salu('s_xor_b32', sT2, sT1, 2048))
    A(valu('v_add_u32', t0, sT1, vL16))
    A(valu('v_add_u32', t2, sT2, vL16))
    A(dsw('ds_write_b128', t0, vr(LS), 0)); A(dsw('ds_write_b32', t0, vr(LS + 4), 1024))
    A(valu('v_add_u32', t0, UP, vSHP))
    A(valu('v_add_u32', t1, 8 * SL, vSHP))
    A(wait(lg=0)); A(bar())
    c += stamp()
    LP = 192
    A(dsr('ds_read_b128', vr(LP), t2, 0, tag='l')); A(dsr('ds_read_b32', vr(LP + 4), t2, 1024, tag='l'))
    def TH(rt, jd): return vr(104 + (rt * 4 + jd) * 4)
    for rt in range(5):
        for jd in range(4):
            if rt < 4: A(dsr('ds_read_b128', TH(rt, jd), t0, rt * SL + jd * 1024, tag=f'Or{rt}'))
            else: A(dsr('ds_read_b128', TH(rt, jd), t1, jd * 1024, tag=f'Or{rt}'))
        if rt == 2:
            A(need(lg='l'))
            for r in range(5): A(valu('v_add_f32', vr(LS + r), vr(LS + r), vr(LP + r)))
            for r in range(5): A(valu('v_rcp_f32', vr(200 + 2 * r), vr(LS + r)))
            A(salu('s_mov_b32', sT1, f32(2.0 ** 24)))
            A(raw('s_mov_b64 s[46:47], 0', wr=['s46', 's47']))
            for r in range(5):
                A(vcmp('v_cmp_nge_f32', 'vcc', sT1, vr(LS + r)))
                A(nop(0))
                A(raw('s_or_b64 s[46:47], s[46:47], vcc', rd=['vcc', 's46', 's47'], wr=['s46', 's47']))
            A(salu('s_or_b32', sT2, sT2, sT3))
            A(salu('s_lshl_b32', sT1, sW, 2))
            A(salu('s_add_u32', sT1, sT1, LX + 8192))
            A(valu('v_mov_b32', vr(LP), sT1))
            A(valu('v_mov_b32', vr(LP + 1), sT2))
            A(dsw('ds_write_b32', vr(LP), vr(LP + 1), 0))
    for rt in range(5):
        A(need(lg=f'Or{rt}'))
        for jd in range(4):
            for h in range(2):
                A(valu('v_pk_add_f32', off(Oacc(rt, jd), 2 * h), off(Oacc(rt, jd), 2 * h), off(TH(rt, jd), 2 * h), w=2))
        for jd in range(4):
            for h in range(2):
                A(valu('v_pk_mul_f32', off(Oacc(rt, jd), 2 * h), off(Oacc(rt, jd), 2 * h), vr(200 + 2 * rt), w=2, mods='op_sel_hi:[1,0]'))
        for jd in range(4):
            for h in range(2):
                A(valu('v_cvt_pk_bf16_f32', vr(STG + rt * 8 + jd * 2 + h), off(Oacc(rt, jd), 2 * h), off(Oacc(rt, jd), 2 * h + 1)))
        for u in range(2):
            j = rt * 2 + u
            A(dsw('ds_write_b128', t0, vr(STG + j * 4), (j // 4) * SL + (j % 4) * 1024))
    A(valu('v_add_u32', t0, UP, vL16))
    A(valu('v_mov_b32', t1, LX + 8192))
    A(wait(lg=0)); A(bar())
    c += stamp('ae')
    return c

def Of(u, rt):
    f = u * 5 + rt
    return ar(4 * f) if f < 20 else ar(160 + 4 * (f - 20))

def ophase():
    c = []
    A = c.append
    def o_read(u, rt):
        wp, ul = u // 2, u % 2
        j = rt * 2 + ul
        return dsr('ds_read_b128', Of(u, rt), t0, (1 - wp % 2) * 8448 + (wp // 2) * 4224 + (j // 4) * SL + (j % 4) * 1024, tag=f'G{u}')
    def wo_dma(ch):
        q = [setm0(sLDS, (ch % 4) * SL), salu('s_mov_b32', sSO, (ch % 8) * 32768 + (ch // 8) * 128)]
        q += [dma(vD[k], SWO, sSO, PC * k, OPT['opol'], tag=f'W{ch}') for k in range(4)]
        return q
    def acc(half, nt, rt): return vr((24 if half == 0 else 104) + (rt * 4 + nt) * 4)
    A(dsr('ds_read_b128', vr(252), t1, 0, tag='vote'))
    c += w_reads(0, 'T0')
    for rt in range(5): A(o_read(0, rt))
    A(need(lg='vote'))
    A(valu('v_or3_b32', vr(252), vr(252), vr(253), vr(254)))
    A(valu('v_or_b32', vr(252), vr(252), vr(255)))
    A(salu('s_mul_i32', sT2, sW, 20480))
    A(rfl(sT1, vr(252)))
    A(valu('v_add_u32', t1, sT2, vL16))
    A(salu('s_andn2_b32', sT1, sT1, sPASS))
    if OPT['xl'] or OPT['xq']: A(salu('s_cmp_eq_u32', 0, 1))
    A(br('s_cbranch_scc1', 'L_fallback'))
    for rt in range(5): A(o_read(1, rt))
    mf, memq, valq, pre = [], [], [], {}
    orr = [(u, rt) for u in range(2, 8) for rt in range(5)]
    def fin(half, rt, ntp, g):
        d = STG + (rt * 2 + ntp) * 4
        v = []
        for q in range(2):
            a = acc(half, 2 * ntp + q, rt)
            for h in range(2): v.append(valu('v_cvt_pk_bf16_f32', vr(d + 2 * q + h), off(a, 2 * h), off(a, 2 * h + 1)))
        blk = (half * 5 + rt) * 2 + ntp
        st = [salu('s_mov_b32', sT3, (blk // 4) * 4096)] if blk % 4 == 0 or (rt == 0 and ntp == 0) else []
        st.append(vst(vr(d), 4, t1, SWS, sT3, (blk % 4) * 1024, OPT['stpol'], tag='st'))
        return v, st
    f0 = [fin(0, rt, ntp, 0) for rt in range(5) for ntp in range(2)]
    for ch in range(16):
        g0 = ch * 20; half, u = ch // 8, ch % 8
        pre[g0] = [need(lg=f'T{ch}')] if ch else [need(lg='G0')]
        for rt in range(5):
            for nt in range(4):
                mf.append(mfma(acc(half, nt, rt), Wf(ch % 2, nt), Of(u, rt), acc(half, nt, rt) if u else 0))
        if ch + 1 < 16:
            if ch + 1 >= 4: memq.append((g0, need(vm=f'W{ch+1}')))
            memq += [(g0, x) for x in w_reads(ch + 1, f'T{ch+1}')]
        if ch + 4 < 16: memq += [(g0, x) for x in wo_dma(ch + 4)]
        for _ in range(10):
            if orr: memq.append((g0, o_read(*orr.pop(0))))
        if ch in (9, 10):
            for v, st in f0[(ch - 9) * 5:(ch - 8) * 5]: memq += [(g0, x) for x in st]
    for v, st in f0: valq += [(8 * 20 + 4, x) for x in v]
    body, mleft, vleft = weave(mf, memq, valq, pre, flush=False, period=20)
    assert not mleft and not vleft
    pos = {id(x): i for i, x in enumerate(body)}
    for v, st in f0: assert pos[id(st[-1])] > max(pos[id(x)] for x in v)
    c += body
    A(nop(7))
    for rt in range(5):
        for ntp in range(2):
            v, st = fin(1, rt, ntp, 0)
            c += v + st
    c += stamp('ae')
    return c

def fallback():
    c = [label('L_fallback')]
    A = c.append
    A(wait(vm=0, lg=0)); A(bar())
    A(salu('s_mov_b32', sPASS, -1))
    c += kv_mode()
    for k in range(4): A(valu('v_accvgpr_read_b32', vD[k], ar(aDkv + k)))
    for rt in range(5): A(valu('v_mov_b32', Mn(rt), 0xff800000))
    A(salu('s_and_b32', sT1, sW, 1))
    A(salu('s_mul_i32', sT1, sT1, 8448))
    A(valu('v_subrev_u32', t2, sT1, vK))
    A(salu('s_mov_b32', sSO, 0))
    A(setm0(sLDS, 0))
    A(label('L_fb_loop'))
    A(nop(0))
    for k in range(4): A(dma(vD[k], SA, sSO, PC * k))
    A(wait(vm=0)); A(bar())
    for hf in range(2):
        for t in range(2):
            for cc in range(4): A(dsr('ds_read_b128', Kf(hf, t, cc), t2, hf * 8448 + t * 512 + cc * 64))
    A(wait(lg=0)); A(bar())
    for rt in range(5):
        for hf in range(2):
            for t in range(2):
                for cc in range(4): A(mfma(Sb(hf, t), Kf(hf, t, cc), Qf(rt, cc), Sb(hf, t) if cc else 0))
        A(nop(7))
        for n in range(0, 16, 2): A(valu('v_max3_f32', Mn(rt), Mn(rt), off(Sb(0, 0), n), off(Sb(0, 0), n + 1)))
    A(salu('s_add_u32', sSO, sSO, 16384))
    A(salu('s_cmp_lt_u32', sSO, 524288))
    A(br('s_cbranch_scc1', 'L_fb_loop'))
    c += max_finish()
    for i in range(4):
        c += kv_tile_dma('K', i, 'x') + kv_tile_dma('V', i, 'x')
    for i in range(80): A(valu('v_mov_b32', vr(24 + i), 0))
    for s in vSUM.values(): A(valu('v_mov_b32', s, 0))
    for i in range(80): A(valu('v_accvgpr_write_b32', ar(i), 0))
    for i in range(8): A(valu('v_accvgpr_write_b32', ar(224 + i), 0))
    A(valu('v_mov_b32', t0, 0x3f803f80))
    for i in range(4): A(valu('v_accvgpr_write_b32', off(ONES, i), t0))
    c += state_init()
    A(wait(vm=0)); A(bar())
    c += kv_frag_reads(0, 'K') + kv_frag_reads(0, 'V')
    A(wait(lg=0)); A(bar())
    A(br('s_branch', 'L_loop_in'))
    return c

def stamps_out():
    if OPT['bst']:
        c = []
        A = c.append
        A(salu('s_add_u32', 's4', 's78', 66 << 20)); A(salu('s_addc_u32', 's5', 's79', 0)); A(salu('s_and_b32', 's5', 's5', 0xffff))
        A(salu('s_mov_b32', 's6', 1 << 20)); A(salu('s_mov_b32', 's7', 0x20000))
        A(salu('s_lshl_b32', sT1, 's2', 10))
        A(valu('v_lshlrev_b32', t0, 2, 'v0'))
        A(valu('v_accvgpr_read_b32', t2, 'a248'))
        A(vst(t2, 1, t0, 's4', sT1, 0))
        return c
    if not OPT['stamps']: return []
    c = []
    A = c.append
    n = stamp_n[0]
    A(wait(vm=0))
    c += stamp('abe')
    n = stamp_n[0]
    A(salu('s_add_u32', 's4', 's78', 64 << 20)); A(salu('s_addc_u32', 's5', 's79', 0)); A(salu('s_and_b32', 's5', 's5', 0xffff))
    A(salu('s_mov_b32', 's6', 1 << 20)); A(salu('s_mov_b32', 's7', 0x20000))
    A(salu('s_lshl_b32', sT1, 's2', 2)); A(salu('s_add_u32', sT1, sT1, sW)); A(salu('s_lshl_b32', sT1, sT1, 6))
    A(valu('v_mov_b32', t0, 0))
    for i in range(16 if OPT['stamps'] == 3 else n):
        A(valu('v_mov_b32', t1, f's{82+i}' if OPT['stamps'] == 3 else f's{82+2*i}'))
        A(vst(t1, 1, t0, 's4', sT1, 4 * i))
        A(wait(vm=0))
    return c

def kernel1():
    st0 = stamp('abcde')
    pre, R = setup()
    pre = pre[:2] + st0 + pre[2:]
    part1 = resolve(pre + qphase(R) + prologue())
    blocks = [block(j) for j in range(4)]
    first = [x for x in blocks[0] if x.kind == 'mfma'][0]
    entry = [label('L_loop_in'), first, br('s_branch', 'L_loop_mid')]
    loop = [label('L_loop')] + sum(blocks, []) + [br('s_cbranch_scc0', 'L_loop')]
    sw = switch_wo()
    part3 = resolve(epilogue() + ophase()) + stamps_out() + [label('L_end'), raw('s_endpgm')]
    fb = fallback()
    mid = [i for i, x in enumerate(loop) if x.kind == 'label' and x.arg == 'L_loop_mid'][0]
    tr = part1 + entry + loop[mid:] + loop + sw + loop + sw[:2] + part3
    errs = check(tr, 'k1')
    vb = [i for i, x in enumerate(part3) if x.kind == 'br' and x.arg == 'L_fallback'][0]
    errs += check(part3[:vb + 1] + fb + entry + loop[mid:] + loop, 'fb')
    assert part1[-1].kind == 'br'
    code = part1[:-1] + entry + [raw('.p2align 6', 'cmt')] + loop + sw + part3 + fb
    return code, errs

def kernel2():
    c = []
    A = c.append
    A(salu('s_cmp_ge_u32', 's2', 320)); A(br('s_cbranch_scc1', 'L2_end'))
    if OPT['stamps']: A(raw('s_memrealtime s[30:31]'))
    A(raw('s_load_dwordx2 s[4:5], s[0:1], 96', wr=['s4', 's5']))
    if OPT['stamps']: A(raw('s_load_dwordx2 s[40:41], s[0:1], 96'))
    A(raw('s_load_dwordx2 s[8:9], s[0:1], 80', wr=['s8', 's9']))
    A(salu('s_mul_hi_u32', 's12', 's2', 0xcccccccd)); A(salu('s_lshr_b32', 's12', 's12', 4))
    A(salu('s_mul_i32', 's13', 's12', 20)); A(salu('s_sub_u32', 's13', 's2', 's13'))
    A(valu('v_lshrrev_b32', 'v1', 6, 'v0'))
    A(valu('v_lshlrev_b32', 'v2', 4, 'v0'))
    A(rfl('s14', 'v1'))
    A(salu('s_lshl_b32', 's15', 's13', 12))
    A(valu('v_add_u32', 'v2', 's15', 'v2'))
    A(salu('s_mul_i32', 's16', 's12', 16 * 81920))
    A(wait(lg=0))
    A(salu('s_add_u32', 's4', 's4', 's16')); A(salu('s_addc_u32', 's5', 's5', 0)); A(salu('s_and_b32', 's5', 's5', 0xffff))
    A(salu('s_mov_b32', 's6', 16 * 81920)); A(salu('s_mov_b32', 's7', 0x20000))
    for p in range(16):
        A(salu('s_mov_b32', 's17', p * 81920))
        A(vld(vr(16 + 4 * p), 4, 'v2', 's4', 's17', 0, OPT['ldpol'], tag=f'p{p}'))
    A(salu('s_and_b32', 's9', 's9', 0xffff)); A(salu('s_mov_b32', 's10', 8 * 80 * 1024 * 2)); A(salu('s_mov_b32', 's11', 0x20000))
    A(salu('s_lshl_b32', 's15', 's13', 2)); A(salu('s_add_u32', 's15', 's15', 's14'))
    A(salu('s_and_b32', 's18', 's15', 1))
    A(salu('s_lshr_b32', 's15', 's15', 1))
    A(salu('s_mul_i32', 's19', 's15', 205)); A(salu('s_lshr_b32', 's19', 's19', 10))
    A(salu('s_mul_i32', 's20', 's19', 5)); A(salu('s_sub_u32', 's20', 's15', 's20'))
    A(salu('s_and_b32', 's21', 's12', 7))
    A(salu('s_lshr_b32', 's22', 's12', 3))
    A(salu('s_mul_i32', 's21', 's21', 5)); A(salu('s_add_u32', 's21', 's21', 's20')); A(salu('s_lshl_b32', 's21', 's21', 15))
    A(salu('s_lshl_b32', 's22', 's22', 10)); A(salu('s_add_u32', 's21', 's21', 's22'))
    A(salu('s_lshl_b32', 's19', 's19', 7)); A(salu('s_add_u32', 's21', 's21', 's19'))
    A(salu('s_lshl_b32', 's18', 's18', 6)); A(salu('s_add_u32', 's21', 's21', 's18'))
    A(valu('v_and_b32', 'v3', 15, 'v0')); A(valu('v_lshlrev_b32', 'v3', 11, 'v3'))
    A(valu('v_bfe_u32', 'v4', 'v0', 4, 2)); A(valu('v_lshl_add_u32', 'v3', 'v4', 3, 'v3'))
    A(salu('s_mov_b32', 's23', 0xffff0000))
    for p in range(16):
        A(need(vm=f'p{p}'))
        for i in range(4):
            src = vr(16 + 4 * p + i)
            if p == 0:
                A(valu('v_lshlrev_b32', vr(8 + 2 * i), 16, src)); A(valu('v_and_b32', vr(9 + 2 * i), 's23', src))
            else:
                A(valu('v_lshlrev_b32', vr(80 + 2 * i), 16, src)); A(valu('v_and_b32', vr(81 + 2 * i), 's23', src))
        if p:
            for i in range(4): A(valu('v_pk_add_f32', vr(8 + 2 * i), vr(8 + 2 * i), vr(80 + 2 * i), w=2))
    for i in range(4): A(valu('v_cvt_pk_bf16_f32', vr(4 + i), vr(8 + 2 * i), vr(9 + 2 * i)))
    A(vst('v4', 2, 'v3', 's8', 's21', 0)); A(vst('v6', 2, 'v3', 's8', 's21', 32))
    if OPT['stamps']:
        A(wait(vm=0)); A(raw('s_memrealtime s[32:33]')); A(wait(lg=0))
        A(salu('s_add_u32', 's40', 's40', 65 << 20)); A(salu('s_addc_u32', 's41', 's41', 0)); A(salu('s_and_b32', 's41', 's41', 0xffff))
        A(salu('s_mov_b32', 's42', 1 << 20)); A(salu('s_mov_b32', 's43', 0x20000))
        A(salu('s_lshl_b32', 's34', 's2', 2)); A(salu('s_add_u32', 's34', 's34', 's14')); A(salu('s_lshl_b32', 's34', 's34', 3))
        A(valu('v_mov_b32', 'v1', 0)); A(valu('v_mov_b32', 'v10', 's30')); A(valu('v_mov_b32', 'v11', 's32'))
        A(vst('v10', 2, 'v1', 's40', 's34', 0))
    A(label('L2_end')); A(raw('s_endpgm'))
    c = resolve(c)
    return c, check(c, 'k2')

def desc(name, vg, acc):
    return f""".p2align 6
.amdhsa_kernel {name}
  .amdhsa_next_free_vgpr {vg}
  .amdhsa_next_free_sgpr 102
  .amdhsa_accum_offset {acc}
  .amdhsa_group_segment_fixed_size 0
  .amdhsa_kernarg_size 104
  .amdhsa_user_sgpr_count 2
  .amdhsa_user_sgpr_kernarg_segment_ptr 1
  .amdhsa_system_sgpr_workgroup_id_x 1
.end_amdhsa_kernel
"""

def main():
    assert (LX // 2048) % 2 == 0 or True
    k1, e1 = kernel1()
    k2, e2 = kernel2()
    for e in e1 + e2: print('HAZARD', e)
    K1, K2 = NAME + '_kernel', 'reduce_parts_kernel'
    hdr = open('cdna_kernels/' + NAME + '.s.ref').read().split('; Override launch')[0]
    s = hdr
    s += f'; @launch kernel={K1} grid=(256,1,1) block=(256,1,1) lds=163840\n'
    s += f'; @launch kernel={K2} grid=(320,1,1) block=(256,1,1) lds=0\n'
    s += '.amdgcn_target "amdgcn-amd-amdhsa--gfx950"\n.text\n'
    for n, k in ((K1, k1), (K2, k2)):
        s += f'.globl {n}\n.p2align 8\n.type {n},@function\n{n}:\n' + render(k)
    s += 'L_code_end:\n'
    s += '.section .rodata,"a"\n' + desc(K1, 512, 256) + desc(K2, 96, 96)
    open(sys.argv[1], 'w').write(s)
    print('instrs', len(k1), len(k2), 'errors', len(e1) + len(e2))
main()
```

```python
import sys, math, struct
from asmlib import *

NAME = 'concat_heads__gqa_block_cached__gqa_block_cached__near_ridge'
OPT = dict(scr=0, lpf=1, cpf=1, rb=8, rp=8, xq='', wpol0='nt', wn0=2, xpol='nt', opol='', wpol='nt', bst=0, qkord=0, xl='', kvpf=0, kv0=11, kvlate=2, rot=1, sg='a', samekv=0, stamps=0, kvpol='nt', pf=0, stpol='', ldpol='', dbg=0)
for a in sys.argv[2:]:
    k, v = a.split('=')
    OPT[k] = int(v) if v.lstrip('-').isdigit() else v.replace('+', ' ')

SL = 16896
PC = 1056
UP = 4 * SL
LX = 9 * SL
def f32(x): return struct.unpack('<I', struct.pack('<f', x))[0]

SX, SA, SB, SWQ, SWO, SWS = 's4', 's8', 's12', 's16', 's20', 's24'
sKb, sVb = 's28', 's30'
sW, sB, sHKV, sHP, sBR, sCNT, sOFF, sSTEP, sLDS, sPASS, sNR, sLAST = ['s%d' % i for i in range(32, 44)]
sT0, sT1, sT2, sT3 = 's44', 's45', 's46', 's47'
sSO = 's80'
sWOFF = 's81'
sPO = 's3'
sXQ = ['s48', 's49', 's50', 's51']
vL16 = 'v1'
vD = ['v2', 'v3', 'v4', 'v5']
vK, vK2, vVa, vVa2, vVb, vVb2 = 'v6', 'v7', 'v8', 'v9', 'v10', 'v11'
vT = ['v12', 'v13', 'v14', 'v15']
vSUM = {4: 'v16', 1: 'v17', 2: 'v18'}
vSH, vSHP = 'v19', 'v20'
t0, t1, t2 = 'v21', 'v22', 'v23'
def vr(n): return f'v{n}'
def ar(n): return f'a{n}'
def Oacc(rt, ld): return vr(24 + (rt * 4 + ld) * 4) if ld < 4 else ar((rt * 4 + ld - 4) * 4)
def Vf(b, ld): return vr(104 + 32 * b + 4 * ld)
def Sb(k, t): return vr(168 + 8 * (k % 4) + 4 * t)
def Pb(k): return vr(200 + 4 * (k % 2))
def Mn(rt): return vr(208 + 4 * rt)
def Qf(rt, c): return ar(80 + (rt * 4 + c) * 4)
def Kf(b, t, c): return ar(160 + 32 * b + (t * 4 + c) * 4)
RS = {3: 'a224', 0: 'a228'}
ONES = 'a232'
aDwo, aDkv = 240, 244
def off(r, n): return f'{r[0]}{int(r[1:]) + n}'
vDwo = ['v228', 'v229', 'v230', 'v231']
vW = ['v232', 'v233', 'v234', 'v235']
vXd = 'v236'; vXdr = ['v236', 'v216', 'v217', 'v218', 'v219']; vXr = ['v237', 'v238']; vXr4 = ['v239', 'v240']; vPF, vPFd = 'v241', 'v242'
def Qacc(dt, rt): return vr(104 + (rt * 4 + dt) * 4)
def Wf(b, nt): return vr(184 + 16 * b + 4 * nt)
def Xf(c, rt):
    f = c * 5 + rt
    if f < 16: return ar(160 + 4 * f)
    if f < 56: return ar(4 * (f - 16))
    if f < 64: return ar(224 + 4 * (f - 56))
    return ar(160 + 4 * (f - 64))
STG = 216

stamp_n = [0]
def stamp(grp='a'):
    if not OPT['stamps'] or OPT['sg'] not in grp: return []
    i = stamp_n[0]; stamp_n[0] += 1
    if OPT['stamps'] == 3:
        assert i < 8
        return [raw('s_memtime s[98:99]'), raw('s_memrealtime s[100:101]'), wait(lg=0), salu('s_mov_b32', f's{82+i}', 's98'), salu('s_mov_b32', f's{90+i}', 's100')]
    op = 's_memrealtime' if OPT['stamps'] == 2 else 's_memtime'
    return [raw(f'{op} s[{82+2*i}:{83+2*i}]', wr=[f's{82+2*i}', f's{83+2*i}']), wait(lg=0)]

def setm0(base, const): return salu('s_add_u32', 'm0', base, const)

def kv_tile_dma(which, tile, tag):
    sig = 2 * (tile % 4) + (which == 'V')
    srd = SA if which == 'K' else SB
    q = [setm0(sLDS, sig * SL), salu('s_mov_b32', sSO, tile * 16384)]
    q += [dma(vD[k], srd, sSO, PC * k, OPT['kvpol'], tag=tag) for k in range(4)]
    return q

def setup():
    c = []
    A = c.append
    A(salu('s_cmp_ge_u32', 's2', 256)); A(br('s_cbranch_scc1', 'L_end'))
    A(raw('s_load_dwordx16 s[48:63], s[0:1], 0', wr=regs('s48', 16)))
    A(raw('s_load_dwordx4 s[64:67], s[0:1], 64', wr=regs('s64', 4)))
    A(raw('s_load_dwordx4 s[76:79], s[0:1], 88', wr=regs('s76', 4)))
    A(raw('s_load_dwordx2 s[68:69], s[0:1], 80', wr=regs('s68', 2)))
    L, G, Q, WV, KH, HH, RP, R4, C4 = ['v%d' % i for i in range(244, 253)]
    if OPT['scr']:
        A(salu('s_lshr_b32', sT1, 's2', 5)); A(salu('s_and_b32', 's2', 's2', 31)); A(salu('s_lshl_b32', 's2', 's2', 3)); A(salu('s_or_b32', 's2', 's2', sT1))
    A(salu('s_lshr_b32', sT1, 's2', 3))
    if OPT['cpf']:
        A(raw('s_getpc_b64 s[74:75]', wr=['s74', 's75']))
        A(label('L_pc'))
        A(salu('s_lshl_b32', sT2, sT1, 10))
        A(valu('v_lshrrev_b32', t0, 5, 'v0'))
        A(raw('s_min_u32 s46, s46, L_code_end-L_pc-1024', rd=['s46'], wr=['s46']))
        A(valu('v_lshlrev_b32', t0, 7, t0))
        A(salu('s_add_u32', 's74', 's74', sT2))
        A(salu('s_addc_u32', 's75', 's75', 0))
        A(I(f'global_load_dword {vPFd}, {t0}, s[74:75]', 'vld', rd=[t0, 's74', 's75'], wr=[vPFd], tag='cpf'))
    A(valu('v_lshrrev_b32', WV, 6, 'v0'))
    A(valu('v_bfe_u32', RP, 'v0', 3, 3))
    A(rfl(sW, WV))
    A(valu('v_and_b32', C4, 7, 'v0'))
    A(valu('v_and_b32', t1, 6, RP))
    A(valu('v_xor_b32', R4, C4, t1))
    A(valu('v_and_b32', t1, 4, RP))
    A(valu('v_add_u32', t1, t1, RP))
    A(valu('v_lshlrev_b32', t1, 13, t1))
    A(valu('v_lshl_add_u32', t1, WV, 7, t1))
    A(valu('v_lshl_add_u32', vW[0], R4, 4, t1))
    for k in range(1, 4):
        A(valu('v_add_u32', vW[k], (16 * (k % 2) + 4 * (k // 2)) * 8192 - PC * k, vW[0]))
    A(salu('s_and_b32', sT0, 's2', 3))
    A(salu('s_lshl_b32', sT0, sT0, 2))
    A(salu('s_and_b32', sT2, sT1, 3))
    A(salu('s_add_u32', sT0, sT0, sT2))
    A(salu('s_lshr_b32', sB, sT1, 2))
    A(salu('s_mul_i32', sWOFF, sB, OPT['rb']))
    A(salu('s_mul_i32', sT2, sT2, OPT['rp']))
    A(salu('s_add_u32', sWOFF, sWOFF, sT2))
    A(salu('s_and_b32', sWOFF, sWOFF, 15))
    A(salu('s_and_b32', sT2, sW, 2))
    A(salu('s_add_u32', 's3', sWOFF, sT2))
    A(salu('s_lshl_b32', 's3', 's3', 6))
    A(salu('s_lshl_b32', sWOFF, sWOFF, 18))
    A(salu('s_mul_i32', sT2, sT2, 2112))
    A(salu('s_and_b32', sT1, sW, 1))
    A(salu('s_mul_i32', sT1, sT1, 8448))
    A(salu('s_add_u32', sLDS, sT1, sT2))
    A(salu('s_lshl_b32', sT1, sT0, 9))
    A(salu('s_sub_u32', off(SWQ, 2), 512 * 8192, sT1))
    A(salu('s_mov_b32', off(SWQ, 3), 0x20000))
    A(setm0(sLDS, UP))
    A(valu('v_bfe_u32', t2, 'v0', 3, 4))
    A(valu('v_lshrrev_b32', t1, 1, t2))
    A(valu('v_xor_b32', t1, t1, C4))
    A(valu('v_lshlrev_b32', t1, 4, t1))
    A(valu('v_lshl_add_u32', vXd, t2, 10, t1))
    A(salu('s_mul_i32', sT2, sB, 81920))
    A(salu('s_bitcmp0_b32', 's2', 2))
    A(wait(lg=0))
    c += stamp('b')
    A(raw('s_cselect_b64 s[16:17], s[54:55], s[64:65]'))
    A(raw('s_cselect_b64 s[4:5], s[48:49], s[58:59]'))
    A(raw('s_cselect_b64 s[70:71], s[50:51], s[60:61]'))
    A(raw('s_cselect_b64 s[72:73], s[52:53], s[62:63]'))
    A(raw('s_cselect_b64 s[20:21], s[56:57], s[66:67]'))
    A(salu('s_add_u32', SWQ, SWQ, sT1))
    A(salu('s_addc_u32', off(SWQ, 1), off(SWQ, 1), 0))
    A(salu('s_and_b32', off(SWQ, 1), off(SWQ, 1), 0xffff))
    c += w_dma(0)[2:]
    c += stamp('b')
    A(salu('s_add_u32', SX, SX, sT2))
    A(salu('s_addc_u32', off(SX, 1), off(SX, 1), 0))
    A(salu('s_and_b32', off(SX, 1), off(SX, 1), 0xffff))
    A(salu('s_mov_b32', off(SX, 2), 81920))
    A(salu('s_mov_b32', off(SX, 3), 0x20000))
    A(salu('s_lshl_b32', sT3, sW, 10))
    A(salu('s_and_b32', sXQ[0], 's3', 1023))
    xd = x_dma(0, False)
    for rt in range(5):
        A(xd[2 * rt])
        A(valu('v_add_u32', vXdr[rt + 1], (rt + 1) * 16384, vXd) if rt < 4 else nop(0))
        A(xd[2 * rt + 1])
        if rt == 0: c += stamp('b')
    c += stamp('b')
    return c, (L, G, Q, WV, KH, HH, RP, R4, C4)

def setup2(R):
    L, G, Q, WV, KH, HH, RP, R4, C4 = R
    c = []
    A = c.append
    def srd(s, ptr, offreg, nrec):
        A(salu('s_add_u32', s, ptr, offreg))
        A(salu('s_addc_u32', off(s, 1), off(ptr, 1), 0))
        A(salu('s_and_b32', off(s, 1), off(s, 1), 0xffff))
        A(salu('s_mov_b32', off(s, 2), nrec))
        A(salu('s_mov_b32', off(s, 3), 0x20000))
    for q in range(1, 4):
        A(salu('s_add_u32', sXQ[q], 's3', q * 256))
        A(salu('s_and_b32', sXQ[q], sXQ[q], 1023))
    A(salu('s_bfe_u32', sBR, 's2', 0x10002))
    A(salu('s_and_b32', sHP, sT0, 1))
    A(salu('s_lshr_b32', sHKV, sT0, 1))
    A(valu('v_and_b32', L, 63, 'v0'))
    A(valu('v_lshlrev_b32', vL16, 4, L))
    A(valu('v_and_b32', KH, 1, WV))
    A(valu('v_lshrrev_b32', HH, 1, WV))
    A(valu('v_lshlrev_b32', t1, 10, RP))
    A(valu('v_lshl_add_u32', t1, WV, 8, t1))
    A(valu('v_lshl_add_u32', vDwo[0], R4, 4, t1))
    for k in range(1, 4):
        A(valu('v_add_u32', vDwo[k], (8192 - PC) * k, vDwo[0]))
    A(valu('v_lshlrev_b32', vPF, 7, 'v0'))
    A(salu('s_lshl_b32', sT1, sB, 3))
    A(salu('s_add_u32', sT1, sT1, sHKV))
    A(salu('s_lshl_b32', sT1, sT1, 19))
    for dst, p in ((sKb, 's70'), (sVb, 's72')):
        A(salu('s_add_u32', dst, p, sT1))
        A(salu('s_addc_u32', off(dst, 1), off(p, 1), 0))
        A(salu('s_sub_u32', dst, dst, 96))
        A(salu('s_subb_u32', off(dst, 1), off(dst, 1), 0))
        A(salu('s_and_b32', off(dst, 1), off(dst, 1), 0xffff))
    ca = c; c = []; A = c.append
    c += kv_mode()
    A(salu('s_mov_b32', off(SA, 3), 0x20000))
    A(salu('s_mov_b32', off(SB, 3), 0x20000))
    A(salu('s_lshl_b32', sT1, sT0, 18))
    srd(SWO, SWO, sT1, 262144)
    A(salu('s_lshl_b32', sT1, sBR, 3))
    A(salu('s_add_u32', sT1, sT1, sB))
    A(salu('s_lshl_b32', sT1, sT1, 4))
    A(salu('s_add_u32', sT1, sT1, sT0))
    A(salu('s_mul_i32', sT1, sT1, 81920))
    srd(SWS, 's78', sT1, 81920)
    A(salu('s_mov_b32', sPASS, 0))
    A(valu('v_lshrrev_b32', G, 4, L))
    A(valu('v_and_b32', Q, 15, L))
    A(valu('v_bfe_u32', R4, L, 2, 2))
    A(valu('v_and_b32', C4, 3, L))
    A(valu('v_lshrrev_b32', t0, 1, Q))
    A(valu('v_xor_b32', t0, t0, G))
    A(valu('v_lshlrev_b32', t0, 4, t0))
    A(valu('v_lshl_add_u32', vXr[0], Q, 7, t0))
    A(valu('v_xor_b32', vXr[1], 64, vXr[0]))
    A(valu('v_add_u32', vXr4[0], 8 * SL, vXr[0]))
    A(valu('v_add_u32', vXr4[1], 8 * SL, vXr[1]))
    A(valu('v_mul_u32_u24', t0, 4224, HH))
    A(valu('v_mul_u32_u24', t1, 8448, KH))
    A(valu('v_add_u32', t2, t0, vL16))
    A(valu('v_add_u32', vSH, t2, t1))
    A(valu('v_sub_u32', vSHP, t2, t1))
    A(valu('v_add_u32', vSHP, 8448, vSHP))
    A(valu('v_add_u32', t2, t0, t1))
    A(valu('v_and_b32', t0, 1, G))
    A(valu('v_lshl_add_u32', t0, t0, 2, R4))
    A(valu('v_lshl_add_u32', t2, t0, 7, t2))
    A(valu('v_lshl_add_u32', t2, C4, 3, t2))
    A(valu('v_lshrrev_b32', vT[3], 1, G))
    A(valu('v_mul_u32_u24', vT[3], PC, vT[3]))
    A(valu('v_add_u32', t2, t2, vT[3]))
    A(valu('v_add_u32', t2, UP, t2))
    A(valu('v_and_b32', t0, 6, t0))
    for nt in range(4):
        A(valu('v_xor_b32', vT[nt], 2 * nt, t0))
        A(valu('v_lshl_add_u32', vT[nt], vT[nt], 4, t2))
    A(valu('v_and_b32', t0, 7, Q))
    A(valu('v_mul_u32_u24', t0, PC, t0))
    A(valu('v_lshrrev_b32', t2, 3, Q))
    A(valu('v_lshl_add_u32', t0, t2, 8, t0))
    A(valu('v_lshl_add_u32', t0, G, 4, t0))
    A(valu('v_add_u32', vK, t0, t1))
    A(valu('v_add_u32', vK2, UP, vK))
    A(valu('v_bfe_u32', t0, L, 2, 3))
    A(valu('v_mul_u32_u24', t0, PC, t0))
    A(valu('v_lshrrev_b32', t2, 1, G))
    A(valu('v_lshl_add_u32', t0, t2, 8, t0))
    A(valu('v_lshl_add_u32', t0, C4, 3, t0))
    A(valu('v_add_u32', t0, t0, t1))
    A(valu('v_lshl_add_u32', vVa, KH, 7, t0))
    A(valu('v_xor_b32', t2, 1, KH))
    A(valu('v_lshl_add_u32', vVb, t2, 7, t0))
    A(valu('v_add_u32', vVa2, UP, vVa))
    A(valu('v_add_u32', vVb2, UP, vVb))
    A(valu('v_lshl_add_u32', t0, KH, 13, vL16))
    A(valu('v_lshl_add_u32', t0, HH, 12, t0))
    for k in range(4):
        A(valu('v_add_u32', vD[k], 96 - 32 * k, t0))
    A(valu('v_lshrrev_b32', t0, 1, G))
    A(valu('v_lshl_add_u32', t0, t0, 4, Q))
    A(valu('v_lshlrev_b32', t0, 4, t0))
    A(valu('v_and_b32', t2, 1, G))
    A(valu('v_lshl_add_u32', t0, t2, 3, t0))
    A(valu('v_sub_u32', t2, vSH, vL16))
    A(valu('v_add_u32', t0, t0, t2))
    A(valu('v_add_u32', t0, 6 * SL, t0))
    A(valu('v_mul_u32_u24', t1, 4224, HH))
    A(valu('v_add_u32', t1, t1, vL16))
    A(valu('v_add_u32', t1, 6 * SL, t1))
    A(valu('v_mul_u32_u24', t2, 8448, KH))
    A(valu('v_sub_u32', t2, vK, t2))
    return ca, c

def kv_mode():
    c = []
    A = c.append
    A(salu('s_mov_b32', SA, sKb)); A(salu('s_mov_b32', off(SA, 1), off(sKb, 1)))
    A(salu('s_mov_b32', SB, sVb)); A(salu('s_mov_b32', off(SB, 1), off(sVb, 1)))
    A(salu('s_mov_b32', sNR, 0 if 'Z' in OPT['xl'] else 524288 + 96))
    A(salu('s_mov_b32', off(SA, 2), sNR)); A(salu('s_mov_b32', off(SB, 2), sNR))
    A(salu('s_mov_b32', sSTEP, 0 if OPT['samekv'] else 16384))
    A(salu('s_mov_b32', sOFF, 3 * 16384))
    A(salu('s_mov_b32', sCNT, 6))
    A(salu('s_mov_b32', sLAST, 0))
    A(salu('s_lshl_b32', sPO, sB, 5)); A(salu('s_add_u32', sPO, sPO, sW)); A(salu('s_lshl_b32', sPO, sPO, 10))
    return c

def w_dma(c):
    q = [setm0(sLDS, UP + (c % 4) * SL)]
    if c: q += [salu('s_add_u32', sWOFF, sWOFF, 262144), salu('s_and_b32', sWOFF, sWOFF, 0x3fffff)]
    else: q += [nop(0)]
    q += [dma(vW[k], SWQ, sWOFF, PC * k, OPT['wpol0'] if c < OPT['wn0'] else OPT['wpol'], tag=f'W{c}') for k in range(4)]
    return q

def x_dma(qtr, pad=True):
    q = []
    for rt in range(5):
        base = (rt * 16384 if rt < 4 else 8 * SL) + qtr * 4096
        q += [setm0(sT3, base)] + ([nop(0)] if pad else []) + [dma(vXdr[rt], SX, sXQ[qtr], 0, OPT['xpol'], tag=f'XD{qtr}')]
    return q

def w_reads(c, tag):
    q = []
    for nt in range(4):
        for rd in range(2):
            x = dsr('ds_read_b64_tr_b16', off(Wf(c % 2, nt), 2 * rd), vT[nt], (c % 4) * SL + rd * 2 * PC, tag=tag)
            x.cost = 6
            q.append(x)
    return q

def x_read(c, rt):
    kp, par = c // 2, c % 2
    if rt < 4: return dsr('ds_read_b128', Xf(c, rt), vXr[par], rt * 16384 + kp * 2048, tag=f'X{c}')
    return dsr('ds_read_b128', Xf(c, rt), vXr4[par], kp * 2048, tag=f'X{c}')

def resolve_partial(prev, body):
    xq = OPT['xq']
    if not xq: return body
    out = []
    for x in body:
        if 'G' in xq and x.kind == 'dma' and x.tag[0] == 'W': x = I(x.text.replace('s[16:19]', 's[56:59]'), 'dma', tag=x.tag) if 'Z' in xq else I('s_nop 0', 'dma', tag=x.tag)
        if 'K' in xq and x.kind == 'dma' and x.tag[0] in 'KV': x = I('s_nop 0', 'dma', tag=x.tag)
        if 'T' in xq and x.kind == 'dsr' and x.tag[0] == 'T': x = I('s_nop 0', 'dsr', tag=x.tag)
        if 'X' in xq and x.kind == 'dsr' and x.tag[0] == 'X': x = I('s_nop 0', 'dsr', tag=x.tag)
        if 'V' in xq and x.kind == 'valu' and ('v_mov_b32' in x.text or ', 0' in x.text): continue
        out.append(x)
    return out

def qphase(R):
    c = []
    A = c.append
    w1 = w_dma(1)
    c += w1[:-1]
    s2a, s2b = setup2(R)
    c += s2a + s2b
    c += stamp('b')
    c += w1[-1:] + x_dma(1)
    c += stamp('ab')
    A(need(vm='XD0'))
    c += stamp('b')
    A(bar())
    c += stamp()
    c += w_reads(0, 'T0')
    for rt in range(5): A(x_read(0, rt))
    for rt in range(5): A(x_read(1, rt))
    mf, memq, valq, pre = [], [], [], {}
    xr = [(cc, rt) for cc in range(2, 16) for rt in range(5)]
    xdone = None
    kvq = [('K', 0), ('V', 0), ('K', 1), ('V', 1)]
    early = {0: w_dma(2) + w_dma(3), 1: x_dma(2, False) + w_dma(4), 2: x_dma(3, False) + w_dma(5), 3: w_dma(6) + w_dma(7)}
    xper = {0: 5, 1: 5, 2: 5, 3: 5, 4: 10, 5: 10, 6: 10, 7: 10, 8: 10}
    xlim = {0: 4, 1: 4, 2: 8, 3: 8}
    for ch in range(16):
        g0 = ch * 20
        pre[g0] = [need(lg=f'T{ch}')] if ch else [need(lg='X0')]
        if ch == 2: pre[g0] = [need(vm='XD1', lg='T2'), bar()]
        if ch == 4: pre[g0] = [need(vm='XD3', lg='T4'), bar()] + stamp('b')
        for rt in range(5):
            for dt in range(4):
                mf.append(mfma(Qacc(dt, rt), Wf(ch % 2, dt), Xf(ch, rt), Qacc(dt, rt) if ch else 0))
        if ch + 1 < 16:
            memq.append((g0, need(vm=f'W{ch+1}')))
            memq += [(g0, x) for x in w_reads(ch + 1, f'T{ch+1}')]
        if ch in early: memq += [(g0, x) for x in early[ch]]
        elif ch + 4 < 16: memq += [(g0, x) for x in w_dma(ch + 4)]
        elif ch == 12 + OPT['kvlate']: memq += [(g0, x) for x in kv_tile_dma('K', 2, 'K2')]
        elif ch == 13 + OPT['kvlate']: memq += [(g0, x) for x in kv_tile_dma('V', 2, 'V2')]
        n = 0
        while xr and n < xper.get(ch, 11):
            cc, rt = xr[0]
            if cc >= xlim.get(ch, 16): break
            if cc * 5 + rt >= 64 and (cc * 5 + rt - 64) // 5 >= ch: break
            xr.pop(0); memq.append((g0, x_read(cc, rt))); n += 1
            if not xr: xdone = ch
        if xdone is not None and ch == xdone + 1:
            pre[g0] = [wait(lg=0), bar()]
        if ch in (0, 1, 2, 3, 4, 6, 9, 12): pre[g0] += stamp('c')
        if ch in (0, 2, 4, 8, 12): pre[g0] += stamp('d')
        if xdone is not None and ch > xdone and kvq and ch >= OPT['kv0']:
            wh, tl = kvq.pop(0)
            memq += [(g0, x) for x in kv_tile_dma(wh, tl, f'{wh}{tl}')]
    print('xdone', xdone)
    assert not kvq
    for i in range(80): valq.append((0, valu('v_mov_b32', vr(24 + i), 0)))
    for s in vSUM.values(): valq.append((0, valu('v_mov_b32', s, 0)))
    for i in range(80): valq.append((8 * 20 + 4, valu('v_accvgpr_write_b32', ar(i), 0)))
    for i in range(8): valq.append((13 * 20 + 4, valu('v_accvgpr_write_b32', ar(224 + i), 0)))
    valq.append((13 * 20 + 4, valu('v_mov_b32', vPF, 0x3f803f80)))
    for i in range(4): valq.append((13 * 20 + 4, valu('v_accvgpr_write_b32', off(ONES, i), vPF)))
    for k in range(4):
        valq.append((13 * 20 + 4, valu('v_accvgpr_write_b32', ar(aDwo + k), vDwo[k])))
        valq.append((13 * 20 + 4, valu('v_accvgpr_write_b32', ar(aDkv + k), vD[k])))
    body = resolve_partial(c, weave(mf, memq, valq, pre, period=20))
    c += body
    c += stamp('acde')
    A(salu('s_mov_b32', sT1, f32(math.log2(math.e) / math.sqrt(128.0))))
    A(salu('s_mov_b32', sT0, sT1))
    A(nop(5))
    for rt in range(5):
        for dt in range(4):
            a = Qacc(dt, rt)
            for h in range(2):
                A(valu('v_pk_mul_f32', off(a, 2 * h), off(a, 2 * h), ('s[44:45]', ['s44', 's45']), w=2))
        for dt in range(4):
            a = Qacc(dt, rt); d = STG + (rt * 4 + dt) * 2
            for h in range(2):
                A(valu('v_cvt_pk_bf16_f32', vr(d + h), off(a, 2 * h), off(a, 2 * h + 1)))
        for dt in range(4):
            j = rt * 2 + dt // 2
            A(dsw('ds_write_b64', t0, vr(STG + (rt * 4 + dt) * 2), (j // 4) * SL + (j % 4) * 1024 + (dt % 2) * 512, tag='Qw'))
    for nt in range(4): A(valu('v_subrev_u32', vT[nt], UP, vT[nt]))
    A(need(vm='V0', lg='Qw')); A(bar())
    return c

def kv_frag_reads(i, which):
    j = i % 4; b = i % 2
    q = []
    if which == 'K':
        a = vK if j < 2 else vK2
        for t in range(2):
            for cc in range(4):
                q.append(dsr('ds_read_b128', Kf(b, t, cc), a, (2 * (j % 2)) * SL + t * 512 + cc * 64, tag='Kr'))
    else:
        for ld in range(8):
            a = (vVa if j < 2 else vVa2) if ld < 4 else (vVb if j < 2 else vVb2)
            for rd in range(2):
                q.append(dsr('ds_read_b64_tr_b16', off(Vf(b, ld), 2 * rd), a, (2 * (j % 2) + 1) * SL + rd * 512 + (ld % 4) * 32, tag='Vr'))
    return q

def state_init():
    c = []
    for i in range(32): c.append(valu('v_mov_b32', off(Vf(1, 0), i), 0))
    for i in range(8): c.append(valu('v_mov_b32', off(Sb(-1, 0), i), f32(-1e30)))
    for i in range(4): c.append(valu('v_mov_b32', off(Pb(-2), i), 0))
    return c

def max_finish():
    c = []
    A = c.append
    for op in ('v_permlane16_swap_b32', 'v_permlane32_swap_b32'):
        for rt in range(5): A(valu('v_mov_b32', off(Mn(rt), 1), Mn(rt)))
        for rt in range(5): A(perm(op, Mn(rt), off(Mn(rt), 1)))
        for rt in range(5): A(valu('v_max_f32', Mn(rt), Mn(rt), off(Mn(rt), 1)))
    for rt in range(5):
        for i in (3, 2, 1, 0): A(valu('v_mul_f32', off(Mn(rt), i), -1.0, Mn(rt)))
    return c

def prologue():
    c = []
    A = c.append
    for cc in range(4): A(dsr('ds_read_b128', Kf(1, 0, cc), t2, cc * 64, tag='Km'))
    for rt in range(5):
        for cc in range(4):
            j = rt * 2 + cc % 2
            A(dsr('ds_read_b128', Qf(rt, cc), t1, (cc // 2) * 8448 + (j // 4) * SL + (j % 4) * 1024, tag=f'Qr{rt}'))
    memq = [(0, x) for x in kv_frag_reads(0, 'K') + kv_frag_reads(0, 'V')]
    for x in memq: x[1].cost = 6
    mf, pre = [], {}
    for rt in range(5):
        pre[rt * 4] = [need(lg=f'Qr{rt}')]
        for cc in range(4): mf.append(mfma(Mn(rt), Kf(1, 0, cc), Qf(rt, cc), Mn(rt) if cc else 0))
    c += weave(mf, memq, [(0, x) for x in state_init()], pre)
    A(need(vm='V1', lg='Vr')); A(bar())
    c += kv_tile_dma('K', 3, 'K3') + kv_tile_dma('V', 3, 'V3')
    for rt in range(5): A(valu('v_max3_f32', Mn(rt), Mn(rt), off(Mn(rt), 1), off(Mn(rt), 2)))
    for rt in range(5): A(valu('v_max_f32', Mn(rt), Mn(rt), off(Mn(rt), 3)))
    c += max_finish()
    c += stamp('ade')
    if OPT['bst']: A(raw('s_mov_b64 s[98:99], 1'))
    A(br('s_branch', 'L_loop_in'))
    return c

GX = [2, 7, 12, 18, 23, 29, 35, 40]
RX = [0, 1, 3, 4, 5, 6, 9, 10]
TX = [13, 14, 15, 16, 17, 19, 21, 22, 24, 26, 27, 28, 30, 32, 33, 36]

def softmax_items(k):
    rt = k % 5
    E = [valu('v_exp_f32', off(Sb(k, 0), n), off(Sb(k, 0), n)) for n in range(8)]
    C = [valu('v_cvt_pk_bf16_f32', off(Pb(k), n), off(Sb(k, 0), 2 * n), off(Sb(k, 0), 2 * n + 1)) for n in range(4)]
    Ad = [valu('v_add_f32', vSUM[rt], vSUM[rt], off(Sb(k, 0), n)) for n in range(8)] if rt in vSUM else []
    return E, C, Ad

def pv(k, vb, order=range(8)):
    rt = k % 5
    m = [mfma(Oacc(rt, ld), Vf(vb, ld), Pb(k), Oacc(rt, ld)) for ld in order]
    if rt in RS: m.append(mfma(RS[rt], ONES, Pb(k), RS[rt]))
    return m

def block(j):
    out = [cmt(f'block {j}')]
    mem = {}
    for x, i in zip(RX, kv_frag_reads(j + 1, 'K')): mem[x] = i
    for x, i in zip(TX, kv_frag_reads(j + 1, 'V')): mem[x] = i
    for n, x in enumerate(GX):
        mem[x] = dma(vD[n % 4], SA if n < 4 else SB, sOFF, PC * (n % 4), OPT['kvpol'])
    assert len(mem) == 32
    if j == 1 and OPT['lpf']: mem[38] = vld('v228', 1, vL16, SWO, sPO, 0, OPT['opol'])
    sc = {1: [salu('s_add_u32', sOFF, sOFF, sSTEP)], 2: [setm0(sLDS, 2 * j * SL)], 20: [setm0(sLDS, (2 * j + 1) * SL)],
          24: [wait(lg=8)]}
    if j == 2: sc[0] = []
    if j == 1:
        sc[38] = [salu('s_mov_b32', off(SA, 2), sNR)]
    if j == 2:
        sc[10] = [salu('s_mov_b32', off(SB, 2), sNR)]
        if OPT['lpf']: sc[12] = [salu('s_add_u32', sPO, sPO, 4096)]
    if j == 3: sc[39] = [salu('s_sub_u32', sCNT, sCNT, 1)]
    cq, aq = [], []
    xi = ei = 0
    for s in range(5):
        kq, ke, kp = 5 * j + s, 5 * j + s - 1, 5 * j + s - 2
        if OPT['qkord']: mf = [mfma(Sb(kq, t), Kf(j % 2, t, cc), Qf(s, cc), Sb(kq, t) if cc else Mn(s)) for cc in range(4) for t in range(2)]
        else: mf = [mfma(Sb(kq, t), Kf(j % 2, t, cc), Qf(s, cc), Sb(kq, t) if cc else Mn(s)) for t in range(2) for cc in range(4)]
        mf += pv(kp, (j - 1) % 2 if s < 2 else j % 2)
        E, C, Ad = softmax_items(ke)
        for g, m in enumerate(mf):
            if s == 0 and g == 0 and j == 0:
                pass
            out.append(m)
            if g % 2 == 0 and g < 16:
                n = g // 2
                if s == 0 and g == 0:
                    out += [wait(vm=16, lg=0), bar()]
                    if j == 0: out.append(label('L_loop_mid'))
                    if OPT['bst']:
                        out += [raw('v_mov_b32 v242, s100\n    v_cndmask_b32 v243, v243, v242, s[98:99]', 'valu', rd=['s100'], wr=['v243']),
                                raw('s_memtime s[100:101]' if OPT['bst'] == 1 else 's_memrealtime s[100:101]'), raw('s_lshl_b64 s[98:99], s[98:99], 1')]
                out += sc.get(ei, [])
                out.append(E[n]); ei += 1
                if Ad: aq.append(Ad[n])
                if n % 2 == 1: cq.append(C[n // 2])
            else:
                nv = 2
                if xi in mem: out.append(mem[xi]); nv = 1
                xi += 1
                for _ in range(nv):
                    if cq: out.append(cq.pop(0))
                    elif aq: out.append(aq.pop(0))
    assert xi == 42 and ei == 40 and not cq and not aq, (xi, ei, len(cq), len(aq))
    xl = OPT['xl']
    if 'G' in xl: out = [x for x in out if x.kind != 'dma']
    if 'B' in xl: out = [x for x in out if x.kind != 'bar']
    if 'R' in xl: out = [x for x in out if x.kind != 'dsr']
    if 'E' in xl: out = [x for x in out if x.kind != 'trans']
    if 'V' in xl: out = [x for x in out if x.kind != 'valu']
    if 'W' in xl: out = [x for x in out if x.kind != 'wait']
    if 'w' in xl: out = [wait(lg=0) if (x.kind == 'wait' and x.arg[0] == 16) else x for x in out]
    if 'H' in xl:
        n = 0; o2 = []
        for x in out:
            if x.kind == 'dma':
                n += 1
                if n % 2 == 0: continue
            o2.append(x)
        out = [wait(vm=8, lg=0) if (x.kind == 'wait' and x.arg[0] == 16) else x for x in o2]
    return out

def switch_wo():
    c = []
    A = c.append
    A(salu('s_cmp_lg_u32', sLAST, 0)); A(br('s_cbranch_scc1', 'L_epi'))
    A(salu('s_mov_b32', sLAST, 1))
    A(salu('s_mov_b32', sCNT, 0))
    A(salu('s_mov_b32', SA, SWO)); A(salu('s_mov_b32', off(SA, 1), off(SWO, 1))); A(salu('s_mov_b32', off(SA, 2), 262144))
    A(salu('s_add_u32', SB, SWO, 32768)); A(salu('s_addc_u32', off(SB, 1), off(SWO, 1), 0)); A(salu('s_mov_b32', off(SB, 2), 262144 - 32768))
    A(salu('s_mov_b32', sSTEP, 65536))
    A(salu('s_mov_b32', sOFF, -65536 & 0xffffffff))
    A(salu('s_mov_b32', sNR, 0))
    for k in range(4): A(valu('v_accvgpr_read_b32', vD[k], ar(aDwo + k)))
    if OPT['pf']:
        A(salu('s_lshl_b32', sT1, sB, 15))
        A(salu('s_lshl_b32', sT2, sW, 13))
        A(salu('s_add_u32', sT1, sT1, sT2))
        A(valu('v_lshlrev_b32', t0, 3, vL16))
        for i in range(OPT['pf']): A(vld(off(t1, i), 1, t0, SWO, sT1, 64 * i, OPT['opol']))
    A(br('s_branch', 'L_loop'))
    return c

def epilogue():
    c = [label('L_epi')]
    A = c.append
    if OPT['bst']:
        A(wait(lg=0)); A(raw('v_mov_b32 v242, s100\n    v_cndmask_b32 v243, v243, v242, s[98:99]', 'valu', rd=['s100'], wr=['v243']))
        A(raw('s_memtime s[100:101]' if OPT['bst'] == 1 else 's_memrealtime s[100:101]')); A(raw('s_lshl_b64 s[98:99], s[98:99], 1')); A(wait(lg=0)); A(nop(3))
        A(raw('v_mov_b32 v242, s100\n    v_cndmask_b32 v243, v243, v242, s[98:99]', 'valu', rd=['s100'], wr=['v243'])); A(nop(1))
        A(valu('v_accvgpr_write_b32', 'a248', 'v243'))
    c += stamp('ae')
    A(wait(vm=0))
    A(valu('v_add_u32', t0, UP, vSH))
    A(valu('v_add_u32', t2, 8 * SL, vSH))
    def xw(rt, jd):
        if rt < 4: return dsw('ds_write_b128', t0, Oacc(rt, 4 + jd), rt * SL + jd * 1024, tag='Ow')
        return dsw('ds_write_b128', t2, Oacc(rt, 4 + jd), jd * 1024, tag='Ow')
    E, C, Ad = softmax_items(19)
    order = [4, 5, 6, 7, 0, 1, 2, 3]
    mf = pv(18, 1, order)
    for g, m in enumerate(mf):
        A(m)
        if g < 8: A(E[g])
        if g >= 2 and g % 2 == 0: A(C[g // 2 - 1])
    ws = [xw(rt, jd) for rt in range(4) for jd in range(4)]
    A(ws.pop(0)); A(ws.pop(0))
    for g, m in enumerate(pv(19, 1, order)):
        A(m); A(ws.pop(0)); A(Ad[g])
    for x in ws: A(x)
    LS = 184
    for rt in RS: A(valu('v_accvgpr_read_b32', vr(LS + rt), RS[rt]))
    for jd in range(4): A(xw(4, jd))
    for op in ('v_permlane16_swap_b32', 'v_permlane32_swap_b32'):
        for rt, s in vSUM.items(): A(valu('v_mov_b32', vr(LS + rt), s))
        A(nop(0))
        for rt, s in vSUM.items(): A(perm(op, s, vr(LS + rt)))
        for rt, s in vSUM.items(): A(valu('v_add_f32', s if op.startswith('v_permlane16') else vr(LS + rt), s, vr(LS + rt)))
    A(salu('s_lshl_b32', sT1, sW, 11))
    A(salu('s_add_u32', sT1, sT1, LX))
    A(salu('s_xor_b32', sT2, sT1, 2048))
    A(valu('v_add_u32', t0, sT1, vL16))
    A(valu('v_add_u32', t2, sT2, vL16))
    A(dsw('ds_write_b128', t0, vr(LS), 0)); A(dsw('ds_write_b32', t0, vr(LS + 4), 1024))
    A(valu('v_add_u32', t0, UP, vSHP))
    A(valu('v_add_u32', t1, 8 * SL, vSHP))
    A(wait(lg=0)); A(bar())
    c += stamp()
    LP = 192
    A(dsr('ds_read_b128', vr(LP), t2, 0, tag='l')); A(dsr('ds_read_b32', vr(LP + 4), t2, 1024, tag='l'))
    def TH(rt, jd): return vr(104 + (rt * 4 + jd) * 4)
    for rt in range(5):
        for jd in range(4):
            if rt < 4: A(dsr('ds_read_b128', TH(rt, jd), t0, rt * SL + jd * 1024, tag=f'Or{rt}'))
            else: A(dsr('ds_read_b128', TH(rt, jd), t1, jd * 1024, tag=f'Or{rt}'))
        if rt == 2:
            A(need(lg='l'))
            for r in range(5): A(valu('v_add_f32', vr(LS + r), vr(LS + r), vr(LP + r)))
            for r in range(5): A(valu('v_rcp_f32', vr(200 + 2 * r), vr(LS + r)))
            A(salu('s_mov_b32', sT1, f32(2.0 ** 24)))
            A(raw('s_mov_b64 s[46:47], 0', wr=['s46', 's47']))
            for r in range(5):
                A(vcmp('v_cmp_nge_f32', 'vcc', sT1, vr(LS + r)))
                A(nop(0))
                A(raw('s_or_b64 s[46:47], s[46:47], vcc', rd=['vcc', 's46', 's47'], wr=['s46', 's47']))
            A(salu('s_or_b32', sT2, sT2, sT3))
            A(salu('s_lshl_b32', sT1, sW, 2))
            A(salu('s_add_u32', sT1, sT1, LX + 8192))
            A(valu('v_mov_b32', vr(LP), sT1))
            A(valu('v_mov_b32', vr(LP + 1), sT2))
            A(dsw('ds_write_b32', vr(LP), vr(LP + 1), 0))
    for rt in range(5):
        A(need(lg=f'Or{rt}'))
        for jd in range(4):
            for h in range(2):
                A(valu('v_pk_add_f32', off(Oacc(rt, jd), 2 * h), off(Oacc(rt, jd), 2 * h), off(TH(rt, jd), 2 * h), w=2))
        for jd in range(4):
            for h in range(2):
                A(valu('v_pk_mul_f32', off(Oacc(rt, jd), 2 * h), off(Oacc(rt, jd), 2 * h), vr(200 + 2 * rt), w=2, mods='op_sel_hi:[1,0]'))
        for jd in range(4):
            for h in range(2):
                A(valu('v_cvt_pk_bf16_f32', vr(STG + rt * 8 + jd * 2 + h), off(Oacc(rt, jd), 2 * h), off(Oacc(rt, jd), 2 * h + 1)))
        for u in range(2):
            j = rt * 2 + u
            A(dsw('ds_write_b128', t0, vr(STG + j * 4), (j // 4) * SL + (j % 4) * 1024))
    A(valu('v_add_u32', t0, UP, vL16))
    A(valu('v_mov_b32', t1, LX + 8192))
    A(wait(lg=0)); A(bar())
    c += stamp('ae')
    return c

def Of(u, rt):
    f = u * 5 + rt
    return ar(4 * f) if f < 20 else ar(160 + 4 * (f - 20))

def ophase():
    c = []
    A = c.append
    def o_read(u, rt):
        wp, ul = u // 2, u % 2
        j = rt * 2 + ul
        return dsr('ds_read_b128', Of(u, rt), t0, (1 - wp % 2) * 8448 + (wp // 2) * 4224 + (j // 4) * SL + (j % 4) * 1024, tag=f'G{u}')
    def wo_dma(ch):
        q = [setm0(sLDS, (ch % 4) * SL), salu('s_mov_b32', sSO, (ch % 8) * 32768 + (ch // 8) * 128)]
        q += [dma(vD[k], SWO, sSO, PC * k, OPT['opol'], tag=f'W{ch}') for k in range(4)]
        return q
    def acc(half, nt, rt): return vr((24 if half == 0 else 104) + (rt * 4 + nt) * 4)
    A(dsr('ds_read_b128', vr(252), t1, 0, tag='vote'))
    c += w_reads(0, 'T0')
    for rt in range(5): A(o_read(0, rt))
    A(need(lg='vote'))
    A(valu('v_or3_b32', vr(252), vr(252), vr(253), vr(254)))
    A(valu('v_or_b32', vr(252), vr(252), vr(255)))
    A(salu('s_mul_i32', sT2, sW, 20480))
    A(rfl(sT1, vr(252)))
    A(valu('v_add_u32', t1, sT2, vL16))
    A(salu('s_andn2_b32', sT1, sT1, sPASS))
    if OPT['xl'] or OPT['xq']: A(salu('s_cmp_eq_u32', 0, 1))
    A(br('s_cbranch_scc1', 'L_fallback'))
    for rt in range(5): A(o_read(1, rt))
    mf, memq, valq, pre = [], [], [], {}
    orr = [(u, rt) for u in range(2, 8) for rt in range(5)]
    def fin(half, rt, ntp, g):
        d = STG + (rt * 2 + ntp) * 4
        v = []
        for q in range(2):
            a = acc(half, 2 * ntp + q, rt)
            for h in range(2): v.append(valu('v_cvt_pk_bf16_f32', vr(d + 2 * q + h), off(a, 2 * h), off(a, 2 * h + 1)))
        blk = (half * 5 + rt) * 2 + ntp
        st = [salu('s_mov_b32', sT3, (blk // 4) * 4096)] if blk % 4 == 0 or (rt == 0 and ntp == 0) else []
        st.append(vst(vr(d), 4, t1, SWS, sT3, (blk % 4) * 1024, OPT['stpol'], tag='st'))
        return v, st
    f0 = [fin(0, rt, ntp, 0) for rt in range(5) for ntp in range(2)]
    for ch in range(16):
        g0 = ch * 20; half, u = ch // 8, ch % 8
        pre[g0] = [need(lg=f'T{ch}')] if ch else [need(lg='G0')]
        for rt in range(5):
            for nt in range(4):
                mf.append(mfma(acc(half, nt, rt), Wf(ch % 2, nt), Of(u, rt), acc(half, nt, rt) if u else 0))
        if ch + 1 < 16:
            if ch + 1 >= 4: memq.append((g0, need(vm=f'W{ch+1}')))
            memq += [(g0, x) for x in w_reads(ch + 1, f'T{ch+1}')]
        if ch + 4 < 16: memq += [(g0, x) for x in wo_dma(ch + 4)]
        for _ in range(10):
            if orr: memq.append((g0, o_read(*orr.pop(0))))
        if ch in (9, 10):
            for v, st in f0[(ch - 9) * 5:(ch - 8) * 5]: memq += [(g0, x) for x in st]
    for v, st in f0: valq += [(8 * 20 + 4, x) for x in v]
    body, mleft, vleft = weave(mf, memq, valq, pre, flush=False, period=20)
    assert not mleft and not vleft
    pos = {id(x): i for i, x in enumerate(body)}
    for v, st in f0: assert pos[id(st[-1])] > max(pos[id(x)] for x in v)
    c += body
    A(nop(7))
    for rt in range(5):
        for ntp in range(2):
            v, st = fin(1, rt, ntp, 0)
            c += v + st
    c += stamp('ae')
    return c

def fallback():
    c = [label('L_fallback')]
    A = c.append
    A(wait(vm=0, lg=0)); A(bar())
    A(salu('s_mov_b32', sPASS, -1))
    c += kv_mode()
    for k in range(4): A(valu('v_accvgpr_read_b32', vD[k], ar(aDkv + k)))
    for rt in range(5): A(valu('v_mov_b32', Mn(rt), 0xff800000))
    A(salu('s_and_b32', sT1, sW, 1))
    A(salu('s_mul_i32', sT1, sT1, 8448))
    A(valu('v_subrev_u32', t2, sT1, vK))
    A(salu('s_mov_b32', sSO, 0))
    A(setm0(sLDS, 0))
    A(label('L_fb_loop'))
    A(nop(0))
    for k in range(4): A(dma(vD[k], SA, sSO, PC * k))
    A(wait(vm=0)); A(bar())
    for hf in range(2):
        for t in range(2):
            for cc in range(4): A(dsr('ds_read_b128', Kf(hf, t, cc), t2, hf * 8448 + t * 512 + cc * 64))
    A(wait(lg=0)); A(bar())
    for rt in range(5):
        for hf in range(2):
            for t in range(2):
                for cc in range(4): A(mfma(Sb(hf, t), Kf(hf, t, cc), Qf(rt, cc), Sb(hf, t) if cc else 0))
        A(nop(7))
        for n in range(0, 16, 2): A(valu('v_max3_f32', Mn(rt), Mn(rt), off(Sb(0, 0), n), off(Sb(0, 0), n + 1)))
    A(salu('s_add_u32', sSO, sSO, 16384))
    A(salu('s_cmp_lt_u32', sSO, 524288))
    A(br('s_cbranch_scc1', 'L_fb_loop'))
    c += max_finish()
    for i in range(4):
        c += kv_tile_dma('K', i, 'x') + kv_tile_dma('V', i, 'x')
    for i in range(80): A(valu('v_mov_b32', vr(24 + i), 0))
    for s in vSUM.values(): A(valu('v_mov_b32', s, 0))
    for i in range(80): A(valu('v_accvgpr_write_b32', ar(i), 0))
    for i in range(8): A(valu('v_accvgpr_write_b32', ar(224 + i), 0))
    A(valu('v_mov_b32', t0, 0x3f803f80))
    for i in range(4): A(valu('v_accvgpr_write_b32', off(ONES, i), t0))
    c += state_init()
    A(wait(vm=0)); A(bar())
    c += kv_frag_reads(0, 'K') + kv_frag_reads(0, 'V')
    A(wait(lg=0)); A(bar())
    A(br('s_branch', 'L_loop_in'))
    return c

def stamps_out():
    if OPT['bst']:
        c = []
        A = c.append
        A(salu('s_add_u32', 's4', 's78', 66 << 20)); A(salu('s_addc_u32', 's5', 's79', 0)); A(salu('s_and_b32', 's5', 's5', 0xffff))
        A(salu('s_mov_b32', 's6', 1 << 20)); A(salu('s_mov_b32', 's7', 0x20000))
        A(salu('s_lshl_b32', sT1, 's2', 10))
        A(valu('v_lshlrev_b32', t0, 2, 'v0'))
        A(valu('v_accvgpr_read_b32', t2, 'a248'))
        A(vst(t2, 1, t0, 's4', sT1, 0))
        return c
    if not OPT['stamps']: return []
    c = []
    A = c.append
    n = stamp_n[0]
    A(wait(vm=0))
    c += stamp('abe')
    n = stamp_n[0]
    if OPT['dbg']:
        A(salu('s_mov_b32', 's4', 's76')); A(salu('s_and_b32', 's5', 's77', 0xffff)); A(salu('s_mov_b32', 's6', 256)); A(salu('s_mov_b32', 's7', 0x20000))
        A(salu('s_lshl_b32', sT1, 's2', 2)); A(salu('s_add_u32', sT1, sT1, sW))
        A(salu('s_cmp_lg_u32', sT1, OPT['dbg'])); A(br('s_cbranch_scc1', 'L_end'))
        A(valu('v_mov_b32', t0, 0))
        for i in range(1, n):
            A(salu('s_sub_u32', sT1, f's{82+2*i}', 's82'))
            A(valu('v_mov_b32', t1, sT1))
            A(vst(t1, 1, t0, 's4', 0, 4 * i))
            A(wait(vm=0))
        return c
    A(salu('s_add_u32', 's4', 's78', 64 << 20)); A(salu('s_addc_u32', 's5', 's79', 0)); A(salu('s_and_b32', 's5', 's5', 0xffff))
    A(salu('s_mov_b32', 's6', 1 << 20)); A(salu('s_mov_b32', 's7', 0x20000))
    A(salu('s_lshl_b32', sT1, 's2', 2)); A(salu('s_add_u32', sT1, sT1, sW)); A(salu('s_lshl_b32', sT1, sT1, 6))
    A(valu('v_mov_b32', t0, 0))
    for i in range(16 if OPT['stamps'] == 3 else n):
        A(valu('v_mov_b32', t1, f's{82+i}' if OPT['stamps'] == 3 else f's{82+2*i}'))
        A(vst(t1, 1, t0, 's4', sT1, 4 * i))
        A(wait(vm=0))
    return c

def kernel1():
    st0 = stamp('abcde')
    pre, R = setup()
    pre = pre[:2] + st0 + pre[2:]
    part1 = resolve(pre + qphase(R) + prologue())
    blocks = [block(j) for j in range(4)]
    first = [x for x in blocks[0] if x.kind == 'mfma'][0]
    entry = [label('L_loop_in'), first, br('s_branch', 'L_loop_mid')]
    loop = [label('L_loop')] + sum(blocks, []) + [br('s_cbranch_scc0', 'L_loop')]
    sw = switch_wo()
    part3 = resolve(epilogue() + ophase()) + stamps_out() + [label('L_end'), raw('s_endpgm')]
    fb = fallback()
    mid = [i for i, x in enumerate(loop) if x.kind == 'label' and x.arg == 'L_loop_mid'][0]
    tr = part1 + entry + loop[mid:] + loop + sw + loop + sw[:2] + part3
    errs = check(tr, 'k1')
    vb = [i for i, x in enumerate(part3) if x.kind == 'br' and x.arg == 'L_fallback'][0]
    errs += check(part3[:vb + 1] + fb + entry + loop[mid:] + loop, 'fb')
    assert part1[-1].kind == 'br'
    code = part1[:-1] + entry + [raw('.p2align 6', 'cmt')] + loop + sw + part3 + fb
    return code, errs

def kernel2():
    c = []
    A = c.append
    A(salu('s_cmp_ge_u32', 's2', 320)); A(br('s_cbranch_scc1', 'L2_end'))
    if OPT['stamps']: A(raw('s_memrealtime s[30:31]'))
    A(raw('s_load_dwordx2 s[4:5], s[0:1], 96', wr=['s4', 's5']))
    if OPT['stamps']: A(raw('s_load_dwordx2 s[40:41], s[0:1], 96'))
    A(raw('s_load_dwordx2 s[8:9], s[0:1], 80', wr=['s8', 's9']))
    A(salu('s_mul_hi_u32', 's12', 's2', 0xcccccccd)); A(salu('s_lshr_b32', 's12', 's12', 4))
    A(salu('s_mul_i32', 's13', 's12', 20)); A(salu('s_sub_u32', 's13', 's2', 's13'))
    A(valu('v_lshrrev_b32', 'v1', 6, 'v0'))
    A(valu('v_lshlrev_b32', 'v2', 4, 'v0'))
    A(rfl('s14', 'v1'))
    A(salu('s_lshl_b32', 's15', 's13', 12))
    A(valu('v_add_u32', 'v2', 's15', 'v2'))
    A(salu('s_mul_i32', 's16', 's12', 16 * 81920))
    A(wait(lg=0))
    A(salu('s_add_u32', 's4', 's4', 's16')); A(salu('s_addc_u32', 's5', 's5', 0)); A(salu('s_and_b32', 's5', 's5', 0xffff))
    A(salu('s_mov_b32', 's6', 16 * 81920)); A(salu('s_mov_b32', 's7', 0x20000))
    for p in range(16):
        A(salu('s_mov_b32', 's17', p * 81920))
        A(vld(vr(16 + 4 * p), 4, 'v2', 's4', 's17', 0, OPT['ldpol'], tag=f'p{p}'))
    A(salu('s_and_b32', 's9', 's9', 0xffff)); A(salu('s_mov_b32', 's10', 8 * 80 * 1024 * 2)); A(salu('s_mov_b32', 's11', 0x20000))
    A(salu('s_lshl_b32', 's15', 's13', 2)); A(salu('s_add_u32', 's15', 's15', 's14'))
    A(salu('s_and_b32', 's18', 's15', 1))
    A(salu('s_lshr_b32', 's15', 's15', 1))
    A(salu('s_mul_i32', 's19', 's15', 205)); A(salu('s_lshr_b32', 's19', 's19', 10))
    A(salu('s_mul_i32', 's20', 's19', 5)); A(salu('s_sub_u32', 's20', 's15', 's20'))
    A(salu('s_and_b32', 's21', 's12', 7))
    A(salu('s_lshr_b32', 's22', 's12', 3))
    A(salu('s_mul_i32', 's21', 's21', 5)); A(salu('s_add_u32', 's21', 's21', 's20')); A(salu('s_lshl_b32', 's21', 's21', 15))
    A(salu('s_lshl_b32', 's22', 's22', 10)); A(salu('s_add_u32', 's21', 's21', 's22'))
    A(salu('s_lshl_b32', 's19', 's19', 7)); A(salu('s_add_u32', 's21', 's21', 's19'))
    A(salu('s_lshl_b32', 's18', 's18', 6)); A(salu('s_add_u32', 's21', 's21', 's18'))
    A(valu('v_and_b32', 'v3', 15, 'v0')); A(valu('v_lshlrev_b32', 'v3', 11, 'v3'))
    A(valu('v_bfe_u32', 'v4', 'v0', 4, 2)); A(valu('v_lshl_add_u32', 'v3', 'v4', 3, 'v3'))
    A(salu('s_mov_b32', 's23', 0xffff0000))
    for p in range(16):
        A(need(vm=f'p{p}'))
        for i in range(4):
            src = vr(16 + 4 * p + i)
            if p == 0:
                A(valu('v_lshlrev_b32', vr(8 + 2 * i), 16, src)); A(valu('v_and_b32', vr(9 + 2 * i), 's23', src))
            else:
                A(valu('v_lshlrev_b32', vr(80 + 2 * i), 16, src)); A(valu('v_and_b32', vr(81 + 2 * i), 's23', src))
        if p:
            for i in range(4): A(valu('v_pk_add_f32', vr(8 + 2 * i), vr(8 + 2 * i), vr(80 + 2 * i), w=2))
    for i in range(4): A(valu('v_cvt_pk_bf16_f32', vr(4 + i), vr(8 + 2 * i), vr(9 + 2 * i)))
    A(vst('v4', 2, 'v3', 's8', 's21', 0)); A(vst('v6', 2, 'v3', 's8', 's21', 32))
    if OPT['stamps']:
        A(wait(vm=0)); A(raw('s_memrealtime s[32:33]')); A(wait(lg=0))
        A(salu('s_add_u32', 's40', 's40', 65 << 20)); A(salu('s_addc_u32', 's41', 's41', 0)); A(salu('s_and_b32', 's41', 's41', 0xffff))
        A(salu('s_mov_b32', 's42', 1 << 20)); A(salu('s_mov_b32', 's43', 0x20000))
        A(salu('s_lshl_b32', 's34', 's2', 2)); A(salu('s_add_u32', 's34', 's34', 's14')); A(salu('s_lshl_b32', 's34', 's34', 3))
        A(valu('v_mov_b32', 'v1', 0)); A(valu('v_mov_b32', 'v10', 's30')); A(valu('v_mov_b32', 'v11', 's32'))
        A(vst('v10', 2, 'v1', 's40', 's34', 0))
    A(label('L2_end')); A(raw('s_endpgm'))
    c = resolve(c)
    return c, check(c, 'k2')

def desc(name, vg, acc):
    return f""".p2align 6
.amdhsa_kernel {name}
  .amdhsa_next_free_vgpr {vg}
  .amdhsa_next_free_sgpr 102
  .amdhsa_accum_offset {acc}
  .amdhsa_group_segment_fixed_size 0
  .amdhsa_kernarg_size 104
  .amdhsa_user_sgpr_count 2
  .amdhsa_user_sgpr_kernarg_segment_ptr 1
  .amdhsa_system_sgpr_workgroup_id_x 1
.end_amdhsa_kernel
"""

def main():
    assert (LX // 2048) % 2 == 0 or True
    k1, e1 = kernel1()
    k2, e2 = kernel2()
    for e in e1 + e2: print('HAZARD', e)
    K1, K2 = NAME + '_kernel', 'reduce_parts_kernel'
    hdr = open('cdna_kernels/' + NAME + '.s.ref').read().split('; Override launch')[0]
    s = hdr
    s += f'; @launch kernel={K1} grid=(256,1,1) block=(256,1,1) lds=163840\n'
    s += f'; @launch kernel={K2} grid=(320,1,1) block=(256,1,1) lds=0\n'
    s += '.amdgcn_target "amdgcn-amd-amdhsa--gfx950"\n.text\n'
    for n, k in ((K1, k1), (K2, k2)):
        s += f'.globl {n}\n.p2align 8\n.type {n},@function\n{n}:\n' + render(k)
    s += 'L_code_end:\n'
    s += '.section .rodata,"a"\n' + desc(K1, 512, 256) + desc(K2, 96, 96)
    open(sys.argv[1], 'w').write(s)
    print('instrs', len(k1), len(k2), 'errors', len(e1) + len(e2))
main()
```

```python
import sys, math, struct
from asmlib import *

NAME = 'concat_heads__gqa_block_cached__gqa_block_cached__near_ridge'
OPT = dict(fuse=1, cbase=0, cstr=16, limit=2000, scr=0, lpf=1, cpf=1, rb=8, rp=8, xq='', wpol0='', wn0=2, xpol='', opol='', wpol='', bst=0, qkord=0, xl='', kvpf=0, kv0=11, kvlate=2, rot=1, sg='a', samekv=0, stamps=0, kvpol='nt', pf=0, stpol='sc1', ldpol='sc1', dbg=0)
for a in sys.argv[2:]:
    k, v = a.split('=')
    OPT[k] = int(v) if v.lstrip('-').isdigit() else v.replace('+', ' ')

SL = 16896
PC = 1056
UP = 4 * SL
LX = 9 * SL
def f32(x): return struct.unpack('<I', struct.pack('<f', x))[0]

SX, SA, SB, SWQ, SWO, SWS = 's4', 's8', 's12', 's16', 's20', 's24'
sKb, sVb = 's28', 's30'
sW, sB, sHKV, sHP, sBR, sCNT, sOFF, sSTEP, sLDS, sPASS, sNR, sLAST = ['s%d' % i for i in range(32, 44)]
sT0, sT1, sT2, sT3 = 's44', 's45', 's46', 's47'
sSO = 's80'
sWOFF = 's81'
sPO = 's3'
sXQ = ['s48', 's49', 's50', 's51']
vL16 = 'v1'
vD = ['v2', 'v3', 'v4', 'v5']
vK, vK2, vVa, vVa2, vVb, vVb2 = 'v6', 'v7', 'v8', 'v9', 'v10', 'v11'
vT = ['v12', 'v13', 'v14', 'v15']
vSUM = {4: 'v16', 1: 'v17', 2: 'v18'}
vSH, vSHP = 'v19', 'v20'
t0, t1, t2 = 'v21', 'v22', 'v23'
def vr(n): return f'v{n}'
def ar(n): return f'a{n}'
def Oacc(rt, ld): return vr(24 + (rt * 4 + ld) * 4) if ld < 4 else ar((rt * 4 + ld - 4) * 4)
def Vf(b, ld): return vr(104 + 32 * b + 4 * ld)
def Sb(k, t): return vr(168 + 8 * (k % 4) + 4 * t)
def Pb(k): return vr(200 + 4 * (k % 2))
def Mn(rt): return vr(208 + 4 * rt)
def Qf(rt, c): return ar(80 + (rt * 4 + c) * 4)
def Kf(b, t, c): return ar(160 + 32 * b + (t * 4 + c) * 4)
RS = {3: 'a224', 0: 'a228'}
ONES = 'a232'
aDwo, aDkv = 240, 244
def off(r, n): return f'{r[0]}{int(r[1:]) + n}'
vDwo = ['v228', 'v229', 'v230', 'v231']
vW = ['v232', 'v233', 'v234', 'v235']
vXd = 'v236'; vXdr = ['v236', 'v216', 'v217', 'v218', 'v219']; vXr = ['v237', 'v238']; vXr4 = ['v239', 'v240']; vPF, vPFd = 'v241', 'v242'
def Qacc(dt, rt): return vr(104 + (rt * 4 + dt) * 4)
def Wf(b, nt): return vr(184 + 16 * b + 4 * nt)
def Xf(c, rt):
    f = c * 5 + rt
    if f < 16: return ar(160 + 4 * f)
    if f < 56: return ar(4 * (f - 16))
    if f < 64: return ar(224 + 4 * (f - 56))
    return ar(160 + 4 * (f - 64))
STG = 216

stamp_n = [0]
def stamp(grp='a'):
    if not OPT['stamps'] or OPT['sg'] not in grp: return []
    i = stamp_n[0]; stamp_n[0] += 1
    if OPT['stamps'] == 3:
        assert i < 8
        return [raw('s_memtime s[98:99]'), raw('s_memrealtime s[100:101]'), wait(lg=0), salu('s_mov_b32', f's{82+i}', 's98'), salu('s_mov_b32', f's{90+i}', 's100')]
    op = 's_memrealtime' if OPT['stamps'] == 2 else 's_memtime'
    return [raw(f'{op} s[{82+2*i}:{83+2*i}]', wr=[f's{82+2*i}', f's{83+2*i}']), wait(lg=0)]

def setm0(base, const): return salu('s_add_u32', 'm0', base, const)

def kv_tile_dma(which, tile, tag):
    sig = 2 * (tile % 4) + (which == 'V')
    srd = SA if which == 'K' else SB
    q = [setm0(sLDS, sig * SL), salu('s_mov_b32', sSO, tile * 16384)]
    q += [dma(vD[k], srd, sSO, PC * k, OPT['kvpol'], tag=tag) for k in range(4)]
    return q

def setup():
    c = []
    A = c.append
    A(salu('s_cmp_ge_u32', 's2', 256)); A(br('s_cbranch_scc1', 'L_end'))
    A(raw('s_load_dwordx16 s[48:63], s[0:1], 0', wr=regs('s48', 16)))
    A(raw('s_load_dwordx4 s[64:67], s[0:1], 64', wr=regs('s64', 4)))
    A(raw('s_load_dwordx4 s[76:79], s[0:1], 88', wr=regs('s76', 4)))
    A(raw('s_load_dwordx2 s[68:69], s[0:1], 80', wr=regs('s68', 2)))
    L, G, Q, WV, KH, HH, RP, R4, C4 = ['v%d' % i for i in range(244, 253)]
    if OPT['scr']:
        A(salu('s_lshr_b32', sT1, 's2', 5)); A(salu('s_and_b32', 's2', 's2', 31)); A(salu('s_lshl_b32', 's2', 's2', 3)); A(salu('s_or_b32', 's2', 's2', sT1))
    A(salu('s_lshr_b32', sT1, 's2', 3))
    if OPT['cpf']:
        A(raw('s_getpc_b64 s[74:75]', wr=['s74', 's75']))
        A(label('L_pc'))
        A(salu('s_lshl_b32', sT2, sT1, 10))
        A(valu('v_lshrrev_b32', t0, 5, 'v0'))
        A(raw('s_min_u32 s46, s46, L_code_end-L_pc-1024', rd=['s46'], wr=['s46']))
        A(valu('v_lshlrev_b32', t0, 7, t0))
        A(salu('s_add_u32', 's74', 's74', sT2))
        A(salu('s_addc_u32', 's75', 's75', 0))
        A(I(f'global_load_dword {vPFd}, {t0}, s[74:75]', 'vld', rd=[t0, 's74', 's75'], wr=[vPFd], tag='cpf'))
    A(valu('v_lshrrev_b32', WV, 6, 'v0'))
    A(valu('v_bfe_u32', RP, 'v0', 3, 3))
    A(rfl(sW, WV))
    A(valu('v_and_b32', C4, 7, 'v0'))
    A(valu('v_and_b32', t1, 6, RP))
    A(valu('v_xor_b32', R4, C4, t1))
    A(valu('v_and_b32', t1, 4, RP))
    A(valu('v_add_u32', t1, t1, RP))
    A(valu('v_lshlrev_b32', t1, 13, t1))
    A(valu('v_lshl_add_u32', t1, WV, 7, t1))
    A(valu('v_lshl_add_u32', vW[0], R4, 4, t1))
    for k in range(1, 4):
        A(valu('v_add_u32', vW[k], (16 * (k % 2) + 4 * (k // 2)) * 8192 - PC * k, vW[0]))
    A(salu('s_and_b32', sT0, 's2', 3))
    A(salu('s_lshl_b32', sT0, sT0, 2))
    A(salu('s_and_b32', sT2, sT1, 3))
    A(salu('s_add_u32', sT0, sT0, sT2))
    A(salu('s_lshr_b32', sB, sT1, 2))
    A(salu('s_mul_i32', sWOFF, sB, OPT['rb']))
    A(salu('s_mul_i32', sT2, sT2, OPT['rp']))
    A(salu('s_add_u32', sWOFF, sWOFF, sT2))
    A(salu('s_and_b32', sWOFF, sWOFF, 15))
    A(salu('s_and_b32', sT2, sW, 2))
    A(salu('s_add_u32', 's3', sWOFF, sT2))
    A(salu('s_lshl_b32', 's3', 's3', 6))
    A(salu('s_lshl_b32', sWOFF, sWOFF, 18))
    A(salu('s_mul_i32', sT2, sT2, 2112))
    A(salu('s_and_b32', sT1, sW, 1))
    A(salu('s_mul_i32', sT1, sT1, 8448))
    A(salu('s_add_u32', sLDS, sT1, sT2))
    A(salu('s_lshl_b32', sT1, sT0, 9))
    A(salu('s_sub_u32', off(SWQ, 2), 512 * 8192, sT1))
    A(salu('s_mov_b32', off(SWQ, 3), 0x20000))
    A(setm0(sLDS, UP))
    A(valu('v_bfe_u32', t2, 'v0', 3, 4))
    A(valu('v_lshrrev_b32', t1, 1, t2))
    A(valu('v_xor_b32', t1, t1, C4))
    A(valu('v_lshlrev_b32', t1, 4, t1))
    A(valu('v_lshl_add_u32', vXd, t2, 10, t1))
    A(salu('s_mul_i32', sT2, sB, 81920))
    A(salu('s_bitcmp0_b32', 's2', 2))
    A(wait(lg=0))
    c += stamp('b')
    A(raw('s_cselect_b64 s[16:17], s[54:55], s[64:65]'))
    A(raw('s_cselect_b64 s[4:5], s[48:49], s[58:59]'))
    A(raw('s_cselect_b64 s[70:71], s[50:51], s[60:61]'))
    A(raw('s_cselect_b64 s[72:73], s[52:53], s[62:63]'))
    A(raw('s_cselect_b64 s[20:21], s[56:57], s[66:67]'))
    A(salu('s_add_u32', SWQ, SWQ, sT1))
    A(salu('s_addc_u32', off(SWQ, 1), off(SWQ, 1), 0))
    A(salu('s_and_b32', off(SWQ, 1), off(SWQ, 1), 0xffff))
    c += w_dma(0)[2:]
    c += stamp('b')
    A(salu('s_add_u32', SX, SX, sT2))
    A(salu('s_addc_u32', off(SX, 1), off(SX, 1), 0))
    A(salu('s_and_b32', off(SX, 1), off(SX, 1), 0xffff))
    A(salu('s_mov_b32', off(SX, 2), 81920))
    A(salu('s_mov_b32', off(SX, 3), 0x20000))
    A(salu('s_lshl_b32', sT3, sW, 10))
    A(salu('s_and_b32', sXQ[0], 's3', 1023))
    xd = x_dma(0, False)
    for rt in range(5):
        A(xd[2 * rt])
        A(valu('v_add_u32', vXdr[rt + 1], (rt + 1) * 16384, vXd) if rt < 4 else nop(0))
        A(xd[2 * rt + 1])
        if rt == 0: c += stamp('b')
    c += stamp('b')
    return c, (L, G, Q, WV, KH, HH, RP, R4, C4)

def setup2(R):
    L, G, Q, WV, KH, HH, RP, R4, C4 = R
    c = []
    A = c.append
    def srd(s, ptr, offreg, nrec):
        A(salu('s_add_u32', s, ptr, offreg))
        A(salu('s_addc_u32', off(s, 1), off(ptr, 1), 0))
        A(salu('s_and_b32', off(s, 1), off(s, 1), 0xffff))
        A(salu('s_mov_b32', off(s, 2), nrec))
        A(salu('s_mov_b32', off(s, 3), 0x20000))
    for q in range(1, 4):
        A(salu('s_add_u32', sXQ[q], 's3', q * 256))
        A(salu('s_and_b32', sXQ[q], sXQ[q], 1023))
    A(salu('s_bfe_u32', sBR, 's2', 0x10002))
    A(salu('s_and_b32', sHP, sT0, 1))
    A(salu('s_lshr_b32', sHKV, sT0, 1))
    A(valu('v_and_b32', L, 63, 'v0'))
    A(valu('v_lshlrev_b32', vL16, 4, L))
    A(valu('v_and_b32', KH, 1, WV))
    A(valu('v_lshrrev_b32', HH, 1, WV))
    A(valu('v_lshlrev_b32', t1, 10, RP))
    A(valu('v_lshl_add_u32', t1, WV, 8, t1))
    A(valu('v_lshl_add_u32', vDwo[0], R4, 4, t1))
    for k in range(1, 4):
        A(valu('v_add_u32', vDwo[k], (8192 - PC) * k, vDwo[0]))
    A(valu('v_lshlrev_b32', vPF, 7, 'v0'))
    A(salu('s_lshl_b32', sT1, sB, 3))
    A(salu('s_add_u32', sT1, sT1, sHKV))
    A(salu('s_lshl_b32', sT1, sT1, 19))
    for dst, p in ((sKb, 's70'), (sVb, 's72')):
        A(salu('s_add_u32', dst, p, sT1))
        A(salu('s_addc_u32', off(dst, 1), off(p, 1), 0))
        A(salu('s_sub_u32', dst, dst, 96))
        A(salu('s_subb_u32', off(dst, 1), off(dst, 1), 0))
        A(salu('s_and_b32', off(dst, 1), off(dst, 1), 0xffff))
    ca = c; c = []; A = c.append
    c += kv_mode()
    A(salu('s_mov_b32', off(SA, 3), 0x20000))
    A(salu('s_mov_b32', off(SB, 3), 0x20000))
    A(salu('s_lshl_b32', sT1, sT0, 18))
    srd(SWO, SWO, sT1, 262144)
    A(salu('s_lshl_b32', sT1, sBR, 3))
    A(salu('s_add_u32', sT1, sT1, sB))
    A(salu('s_lshl_b32', sT1, sT1, 4))
    A(salu('s_add_u32', sT1, sT1, sT0))
    A(salu('s_mul_i32', sT1, sT1, 81920))
    srd(SWS, 's78', sT1, 81920)
    A(salu('s_mov_b32', sPASS, 0))
    A(valu('v_lshrrev_b32', G, 4, L))
    A(valu('v_and_b32', Q, 15, L))
    A(valu('v_bfe_u32', R4, L, 2, 2))
    A(valu('v_and_b32', C4, 3, L))
    A(valu('v_lshrrev_b32', t0, 1, Q))
    A(valu('v_xor_b32', t0, t0, G))
    A(valu('v_lshlrev_b32', t0, 4, t0))
    A(valu('v_lshl_add_u32', vXr[0], Q, 7, t0))
    A(valu('v_xor_b32', vXr[1], 64, vXr[0]))
    A(valu('v_add_u32', vXr4[0], 8 * SL, vXr[0]))
    A(valu('v_add_u32', vXr4[1], 8 * SL, vXr[1]))
    A(valu('v_mul_u32_u24', t0, 4224, HH))
    A(valu('v_mul_u32_u24', t1, 8448, KH))
    A(valu('v_add_u32', t2, t0, vL16))
    A(valu('v_add_u32', vSH, t2, t1))
    A(valu('v_sub_u32', vSHP, t2, t1))
    A(valu('v_add_u32', vSHP, 8448, vSHP))
    A(valu('v_add_u32', t2, t0, t1))
    A(valu('v_and_b32', t0, 1, G))
    A(valu('v_lshl_add_u32', t0, t0, 2, R4))
    A(valu('v_lshl_add_u32', t2, t0, 7, t2))
    A(valu('v_lshl_add_u32', t2, C4, 3, t2))
    A(valu('v_lshrrev_b32', vT[3], 1, G))
    A(valu('v_mul_u32_u24', vT[3], PC, vT[3]))
    A(valu('v_add_u32', t2, t2, vT[3]))
    A(valu('v_add_u32', t2, UP, t2))
    A(valu('v_and_b32', t0, 6, t0))
    for nt in range(4):
        A(valu('v_xor_b32', vT[nt], 2 * nt, t0))
        A(valu('v_lshl_add_u32', vT[nt], vT[nt], 4, t2))
    A(valu('v_and_b32', t0, 7, Q))
    A(valu('v_mul_u32_u24', t0, PC, t0))
    A(valu('v_lshrrev_b32', t2, 3, Q))
    A(valu('v_lshl_add_u32', t0, t2, 8, t0))
    A(valu('v_lshl_add_u32', t0, G, 4, t0))
    A(valu('v_add_u32', vK, t0, t1))
    A(valu('v_add_u32', vK2, UP, vK))
    A(valu('v_bfe_u32', t0, L, 2, 3))
    A(valu('v_mul_u32_u24', t0, PC, t0))
    A(valu('v_lshrrev_b32', t2, 1, G))
    A(valu('v_lshl_add_u32', t0, t2, 8, t0))
    A(valu('v_lshl_add_u32', t0, C4, 3, t0))
    A(valu('v_add_u32', t0, t0, t1))
    A(valu('v_lshl_add_u32', vVa, KH, 7, t0))
    A(valu('v_xor_b32', t2, 1, KH))
    A(valu('v_lshl_add_u32', vVb, t2, 7, t0))
    A(valu('v_add_u32', vVa2, UP, vVa))
    A(valu('v_add_u32', vVb2, UP, vVb))
    A(valu('v_lshl_add_u32', t0, KH, 13, vL16))
    A(valu('v_lshl_add_u32', t0, HH, 12, t0))
    for k in range(4):
        A(valu('v_add_u32', vD[k], 96 - 32 * k, t0))
    A(valu('v_lshrrev_b32', t0, 1, G))
    A(valu('v_lshl_add_u32', t0, t0, 4, Q))
    A(valu('v_lshlrev_b32', t0, 4, t0))
    A(valu('v_and_b32', t2, 1, G))
    A(valu('v_lshl_add_u32', t0, t2, 3, t0))
    A(valu('v_sub_u32', t2, vSH, vL16))
    A(valu('v_add_u32', t0, t0, t2))
    A(valu('v_add_u32', t0, 6 * SL, t0))
    A(valu('v_mul_u32_u24', t1, 4224, HH))
    A(valu('v_add_u32', t1, t1, vL16))
    A(valu('v_add_u32', t1, 6 * SL, t1))
    A(valu('v_mul_u32_u24', t2, 8448, KH))
    A(valu('v_sub_u32', t2, vK, t2))
    return ca, c

def kv_mode():
    c = []
    A = c.append
    A(salu('s_mov_b32', SA, sKb)); A(salu('s_mov_b32', off(SA, 1), off(sKb, 1)))
    A(salu('s_mov_b32', SB, sVb)); A(salu('s_mov_b32', off(SB, 1), off(sVb, 1)))
    A(salu('s_mov_b32', sNR, 0 if 'Z' in OPT['xl'] else 524288 + 96))
    A(salu('s_mov_b32', off(SA, 2), sNR)); A(salu('s_mov_b32', off(SB, 2), sNR))
    A(salu('s_mov_b32', sSTEP, 0 if OPT['samekv'] else 16384))
    A(salu('s_mov_b32', sOFF, 3 * 16384))
    A(salu('s_mov_b32', sCNT, 6))
    A(salu('s_mov_b32', sLAST, 0))
    A(salu('s_lshl_b32', sPO, sB, 5)); A(salu('s_add_u32', sPO, sPO, sW)); A(salu('s_lshl_b32', sPO, sPO, 10))
    return c

def w_dma(c):
    q = [setm0(sLDS, UP + (c % 4) * SL)]
    if c: q += [salu('s_add_u32', sWOFF, sWOFF, 262144), salu('s_and_b32', sWOFF, sWOFF, 0x3fffff)]
    else: q += [nop(0)]
    q += [dma(vW[k], SWQ, sWOFF, PC * k, OPT['wpol0'] if c < OPT['wn0'] else OPT['wpol'], tag=f'W{c}') for k in range(4)]
    return q

def x_dma(qtr, pad=True):
    q = []
    for rt in range(5):
        base = (rt * 16384 if rt < 4 else 8 * SL) + qtr * 4096
        q += [setm0(sT3, base)] + ([nop(0)] if pad else []) + [dma(vXdr[rt], SX, sXQ[qtr], 0, OPT['xpol'], tag=f'XD{qtr}')]
    return q

def w_reads(c, tag):
    q = []
    for nt in range(4):
        for rd in range(2):
            x = dsr('ds_read_b64_tr_b16', off(Wf(c % 2, nt), 2 * rd), vT[nt], (c % 4) * SL + rd * 2 * PC, tag=tag)
            x.cost = 6
            q.append(x)
    return q

def x_read(c, rt):
    kp, par = c // 2, c % 2
    if rt < 4: return dsr('ds_read_b128', Xf(c, rt), vXr[par], rt * 16384 + kp * 2048, tag=f'X{c}')
    return dsr('ds_read_b128', Xf(c, rt), vXr4[par], kp * 2048, tag=f'X{c}')

def resolve_partial(prev, body):
    xq = OPT['xq']
    if not xq: return body
    out = []
    for x in body:
        if 'G' in xq and x.kind == 'dma' and x.tag[0] == 'W': x = I(x.text.replace('s[16:19]', 's[56:59]'), 'dma', tag=x.tag) if 'Z' in xq else I('s_nop 0', 'dma', tag=x.tag)
        if 'K' in xq and x.kind == 'dma' and x.tag[0] in 'KV': x = I('s_nop 0', 'dma', tag=x.tag)
        if 'T' in xq and x.kind == 'dsr' and x.tag[0] == 'T': x = I('s_nop 0', 'dsr', tag=x.tag)
        if 'X' in xq and x.kind == 'dsr' and x.tag[0] == 'X': x = I('s_nop 0', 'dsr', tag=x.tag)
        if 'V' in xq and x.kind == 'valu' and ('v_mov_b32' in x.text or ', 0' in x.text): continue
        out.append(x)
    return out

def qphase(R):
    c = []
    A = c.append
    w1 = w_dma(1)
    c += w1[:-1]
    s2a, s2b = setup2(R)
    c += s2a + s2b
    c += stamp('b')
    c += w1[-1:] + x_dma(1)
    c += stamp('ab')
    A(need(vm='XD0'))
    c += stamp('b')
    A(bar())
    c += stamp()
    c += w_reads(0, 'T0')
    for rt in range(5): A(x_read(0, rt))
    for rt in range(5): A(x_read(1, rt))
    mf, memq, valq, pre = [], [], [], {}
    xr = [(cc, rt) for cc in range(2, 16) for rt in range(5)]
    xdone = None
    kvq = [('K', 0), ('V', 0), ('K', 1), ('V', 1)]
    early = {0: w_dma(2) + w_dma(3), 1: x_dma(2, False) + w_dma(4), 2: x_dma(3, False) + w_dma(5), 3: w_dma(6) + w_dma(7)}
    xper = {0: 5, 1: 5, 2: 5, 3: 5, 4: 10, 5: 10, 6: 10, 7: 10, 8: 10}
    xlim = {0: 4, 1: 4, 2: 8, 3: 8}
    for ch in range(16):
        g0 = ch * 20
        pre[g0] = [need(lg=f'T{ch}')] if ch else [need(lg='X0')]
        if ch == 2: pre[g0] = [need(vm='XD1', lg='T2'), bar()]
        if ch == 4: pre[g0] = [need(vm='XD3', lg='T4'), bar()] + stamp('b')
        for rt in range(5):
            for dt in range(4):
                mf.append(mfma(Qacc(dt, rt), Wf(ch % 2, dt), Xf(ch, rt), Qacc(dt, rt) if ch else 0))
        if ch + 1 < 16:
            memq.append((g0, need(vm=f'W{ch+1}')))
            memq += [(g0, x) for x in w_reads(ch + 1, f'T{ch+1}')]
        if ch in early: memq += [(g0, x) for x in early[ch]]
        elif ch + 4 < 16: memq += [(g0, x) for x in w_dma(ch + 4)]
        elif ch == 12 + OPT['kvlate']: memq += [(g0, x) for x in kv_tile_dma('K', 2, 'K2')]
        elif ch == 13 + OPT['kvlate']: memq += [(g0, x) for x in kv_tile_dma('V', 2, 'V2')]
        n = 0
        while xr and n < xper.get(ch, 11):
            cc, rt = xr[0]
            if cc >= xlim.get(ch, 16): break
            if cc * 5 + rt >= 64 and (cc * 5 + rt - 64) // 5 >= ch: break
            xr.pop(0); memq.append((g0, x_read(cc, rt))); n += 1
            if not xr: xdone = ch
        if xdone is not None and ch == xdone + 1:
            pre[g0] = [wait(lg=0), bar()]
        if ch in (0, 1, 2, 3, 4, 6, 9, 12): pre[g0] += stamp('c')
        if ch in (0, 2, 4, 8, 12): pre[g0] += stamp('d')
        if xdone is not None and ch > xdone and kvq and ch >= OPT['kv0']:
            wh, tl = kvq.pop(0)
            memq += [(g0, x) for x in kv_tile_dma(wh, tl, f'{wh}{tl}')]
    print('xdone', xdone)
    assert not kvq
    for i in range(80): valq.append((0, valu('v_mov_b32', vr(24 + i), 0)))
    for s in vSUM.values(): valq.append((0, valu('v_mov_b32', s, 0)))
    for i in range(80): valq.append((8 * 20 + 4, valu('v_accvgpr_write_b32', ar(i), 0)))
    for i in range(8): valq.append((13 * 20 + 4, valu('v_accvgpr_write_b32', ar(224 + i), 0)))
    valq.append((13 * 20 + 4, valu('v_mov_b32', vPF, 0x3f803f80)))
    for i in range(4): valq.append((13 * 20 + 4, valu('v_accvgpr_write_b32', off(ONES, i), vPF)))
    for k in range(4):
        valq.append((13 * 20 + 4, valu('v_accvgpr_write_b32', ar(aDwo + k), vDwo[k])))
        valq.append((13 * 20 + 4, valu('v_accvgpr_write_b32', ar(aDkv + k), vD[k])))
    body = resolve_partial(c, weave(mf, memq, valq, pre, period=20))
    c += body
    c += stamp('acde')
    A(salu('s_mov_b32', sT1, f32(math.log2(math.e) / math.sqrt(128.0))))
    A(salu('s_mov_b32', sT0, sT1))
    A(nop(5))
    for rt in range(5):
        for dt in range(4):
            a = Qacc(dt, rt)
            for h in range(2):
                A(valu('v_pk_mul_f32', off(a, 2 * h), off(a, 2 * h), ('s[44:45]', ['s44', 's45']), w=2))
        for dt in range(4):
            a = Qacc(dt, rt); d = STG + (rt * 4 + dt) * 2
            for h in range(2):
                A(valu('v_cvt_pk_bf16_f32', vr(d + h), off(a, 2 * h), off(a, 2 * h + 1)))
        for dt in range(4):
            j = rt * 2 + dt // 2
            A(dsw('ds_write_b64', t0, vr(STG + (rt * 4 + dt) * 2), (j // 4) * SL + (j % 4) * 1024 + (dt % 2) * 512, tag='Qw'))
    for nt in range(4): A(valu('v_subrev_u32', vT[nt], UP, vT[nt]))
    A(need(vm='V0', lg='Qw')); A(bar())
    return c

def kv_frag_reads(i, which):
    j = i % 4; b = i % 2
    q = []
    if which == 'K':
        a = vK if j < 2 else vK2
        for t in range(2):
            for cc in range(4):
                q.append(dsr('ds_read_b128', Kf(b, t, cc), a, (2 * (j % 2)) * SL + t * 512 + cc * 64, tag='Kr'))
    else:
        for ld in range(8):
            a = (vVa if j < 2 else vVa2) if ld < 4 else (vVb if j < 2 else vVb2)
            for rd in range(2):
                q.append(dsr('ds_read_b64_tr_b16', off(Vf(b, ld), 2 * rd), a, (2 * (j % 2) + 1) * SL + rd * 512 + (ld % 4) * 32, tag='Vr'))
    return q

def state_init():
    c = []
    for i in range(32): c.append(valu('v_mov_b32', off(Vf(1, 0), i), 0))
    for i in range(8): c.append(valu('v_mov_b32', off(Sb(-1, 0), i), f32(-1e30)))
    for i in range(4): c.append(valu('v_mov_b32', off(Pb(-2), i), 0))
    return c

def max_finish():
    c = []
    A = c.append
    for op in ('v_permlane16_swap_b32', 'v_permlane32_swap_b32'):
        for rt in range(5): A(valu('v_mov_b32', off(Mn(rt), 1), Mn(rt)))
        for rt in range(5): A(perm(op, Mn(rt), off(Mn(rt), 1)))
        for rt in range(5): A(valu('v_max_f32', Mn(rt), Mn(rt), off(Mn(rt), 1)))
    for rt in range(5):
        for i in (3, 2, 1, 0): A(valu('v_mul_f32', off(Mn(rt), i), -1.0, Mn(rt)))
    return c

def prologue():
    c = []
    A = c.append
    for cc in range(4): A(dsr('ds_read_b128', Kf(1, 0, cc), t2, cc * 64, tag='Km'))
    for rt in range(5):
        for cc in range(4):
            j = rt * 2 + cc % 2
            A(dsr('ds_read_b128', Qf(rt, cc), t1, (cc // 2) * 8448 + (j // 4) * SL + (j % 4) * 1024, tag=f'Qr{rt}'))
    memq = [(0, x) for x in kv_frag_reads(0, 'K') + kv_frag_reads(0, 'V')]
    for x in memq: x[1].cost = 6
    mf, pre = [], {}
    for rt in range(5):
        pre[rt * 4] = [need(lg=f'Qr{rt}')]
        for cc in range(4): mf.append(mfma(Mn(rt), Kf(1, 0, cc), Qf(rt, cc), Mn(rt) if cc else 0))
    c += weave(mf, memq, [(0, x) for x in state_init()], pre)
    A(need(vm='V1', lg='Vr')); A(bar())
    c += kv_tile_dma('K', 3, 'K3') + kv_tile_dma('V', 3, 'V3')
    for rt in range(5): A(valu('v_max3_f32', Mn(rt), Mn(rt), off(Mn(rt), 1), off(Mn(rt), 2)))
    for rt in range(5): A(valu('v_max_f32', Mn(rt), Mn(rt), off(Mn(rt), 3)))
    c += max_finish()
    c += stamp('ade')
    if OPT['bst']: A(raw('s_mov_b64 s[98:99], 1'))
    A(br('s_branch', 'L_loop_in'))
    return c

GX = [2, 7, 12, 18, 23, 29, 35, 40]
RX = [0, 1, 3, 4, 5, 6, 9, 10]
TX = [13, 14, 15, 16, 17, 19, 21, 22, 24, 26, 27, 28, 30, 32, 33, 36]

def softmax_items(k):
    rt = k % 5
    E = [valu('v_exp_f32', off(Sb(k, 0), n), off(Sb(k, 0), n)) for n in range(8)]
    C = [valu('v_cvt_pk_bf16_f32', off(Pb(k), n), off(Sb(k, 0), 2 * n), off(Sb(k, 0), 2 * n + 1)) for n in range(4)]
    Ad = [valu('v_add_f32', vSUM[rt], vSUM[rt], off(Sb(k, 0), n)) for n in range(8)] if rt in vSUM else []
    return E, C, Ad

def pv(k, vb, order=range(8)):
    rt = k % 5
    m = [mfma(Oacc(rt, ld), Vf(vb, ld), Pb(k), Oacc(rt, ld)) for ld in order]
    if rt in RS: m.append(mfma(RS[rt], ONES, Pb(k), RS[rt]))
    return m

def block(j):
    out = [cmt(f'block {j}')]
    mem = {}
    for x, i in zip(RX, kv_frag_reads(j + 1, 'K')): mem[x] = i
    for x, i in zip(TX, kv_frag_reads(j + 1, 'V')): mem[x] = i
    for n, x in enumerate(GX):
        mem[x] = dma(vD[n % 4], SA if n < 4 else SB, sOFF, PC * (n % 4), OPT['kvpol'])
    assert len(mem) == 32
    if j == 1 and OPT['lpf']: mem[38] = vld('v228', 1, vL16, SWO, sPO, 0, OPT['opol'])
    sc = {1: [salu('s_add_u32', sOFF, sOFF, sSTEP)], 2: [setm0(sLDS, 2 * j * SL)], 20: [setm0(sLDS, (2 * j + 1) * SL)],
          24: [wait(lg=8)]}
    if j == 2: sc[0] = []
    if j == 1:
        sc[38] = [salu('s_mov_b32', off(SA, 2), sNR)]
    if j == 2:
        sc[10] = [salu('s_mov_b32', off(SB, 2), sNR)]
        if OPT['lpf']: sc[12] = [salu('s_add_u32', sPO, sPO, 4096)]
    if j == 3: sc[39] = [salu('s_sub_u32', sCNT, sCNT, 1)]
    cq, aq = [], []
    xi = ei = 0
    for s in range(5):
        kq, ke, kp = 5 * j + s, 5 * j + s - 1, 5 * j + s - 2
        if OPT['qkord']: mf = [mfma(Sb(kq, t), Kf(j % 2, t, cc), Qf(s, cc), Sb(kq, t) if cc else Mn(s)) for cc in range(4) for t in range(2)]
        else: mf = [mfma(Sb(kq, t), Kf(j % 2, t, cc), Qf(s, cc), Sb(kq, t) if cc else Mn(s)) for t in range(2) for cc in range(4)]
        mf += pv(kp, (j - 1) % 2 if s < 2 else j % 2)
        E, C, Ad = softmax_items(ke)
        for g, m in enumerate(mf):
            if s == 0 and g == 0 and j == 0:
                pass
            out.append(m)
            if g % 2 == 0 and g < 16:
                n = g // 2
                if s == 0 and g == 0:
                    out += [wait(vm=16, lg=0), bar()]
                    if j == 0: out.append(label('L_loop_mid'))
                    if OPT['bst']:
                        out += [raw('v_mov_b32 v242, s100\n    v_cndmask_b32 v243, v243, v242, s[98:99]', 'valu', rd=['s100'], wr=['v243']),
                                raw('s_memtime s[100:101]' if OPT['bst'] == 1 else 's_memrealtime s[100:101]'), raw('s_lshl_b64 s[98:99], s[98:99], 1')]
                out += sc.get(ei, [])
                out.append(E[n]); ei += 1
                if Ad: aq.append(Ad[n])
                if n % 2 == 1: cq.append(C[n // 2])
            else:
                nv = 2
                if xi in mem: out.append(mem[xi]); nv = 1
                xi += 1
                for _ in range(nv):
                    if cq: out.append(cq.pop(0))
                    elif aq: out.append(aq.pop(0))
    assert xi == 42 and ei == 40 and not cq and not aq, (xi, ei, len(cq), len(aq))
    xl = OPT['xl']
    if 'G' in xl: out = [x for x in out if x.kind != 'dma']
    if 'B' in xl: out = [x for x in out if x.kind != 'bar']
    if 'R' in xl: out = [x for x in out if x.kind != 'dsr']
    if 'E' in xl: out = [x for x in out if x.kind != 'trans']
    if 'V' in xl: out = [x for x in out if x.kind != 'valu']
    if 'W' in xl: out = [x for x in out if x.kind != 'wait']
    if 'w' in xl: out = [wait(lg=0) if (x.kind == 'wait' and x.arg[0] == 16) else x for x in out]
    if 'H' in xl:
        n = 0; o2 = []
        for x in out:
            if x.kind == 'dma':
                n += 1
                if n % 2 == 0: continue
            o2.append(x)
        out = [wait(vm=8, lg=0) if (x.kind == 'wait' and x.arg[0] == 16) else x for x in o2]
    return out

def switch_wo():
    c = []
    A = c.append
    A(salu('s_cmp_lg_u32', sLAST, 0)); A(br('s_cbranch_scc1', 'L_epi'))
    A(salu('s_mov_b32', sLAST, 1))
    A(salu('s_mov_b32', sCNT, 0))
    A(salu('s_mov_b32', SA, SWO)); A(salu('s_mov_b32', off(SA, 1), off(SWO, 1))); A(salu('s_mov_b32', off(SA, 2), 262144))
    A(salu('s_add_u32', SB, SWO, 32768)); A(salu('s_addc_u32', off(SB, 1), off(SWO, 1), 0)); A(salu('s_mov_b32', off(SB, 2), 262144 - 32768))
    A(salu('s_mov_b32', sSTEP, 65536))
    A(salu('s_mov_b32', sOFF, -65536 & 0xffffffff))
    A(salu('s_mov_b32', sNR, 0))
    for k in range(4): A(valu('v_accvgpr_read_b32', vD[k], ar(aDwo + k)))
    if OPT['pf']:
        A(salu('s_lshl_b32', sT1, sB, 15))
        A(salu('s_lshl_b32', sT2, sW, 13))
        A(salu('s_add_u32', sT1, sT1, sT2))
        A(valu('v_lshlrev_b32', t0, 3, vL16))
        for i in range(OPT['pf']): A(vld(off(t1, i), 1, t0, SWO, sT1, 64 * i, OPT['opol']))
    A(br('s_branch', 'L_loop'))
    return c

def epilogue():
    c = [label('L_epi')]
    A = c.append
    if OPT['bst']:
        A(wait(lg=0)); A(raw('v_mov_b32 v242, s100\n    v_cndmask_b32 v243, v243, v242, s[98:99]', 'valu', rd=['s100'], wr=['v243']))
        A(raw('s_memtime s[100:101]' if OPT['bst'] == 1 else 's_memrealtime s[100:101]')); A(raw('s_lshl_b64 s[98:99], s[98:99], 1')); A(wait(lg=0)); A(nop(3))
        A(raw('v_mov_b32 v242, s100\n    v_cndmask_b32 v243, v243, v242, s[98:99]', 'valu', rd=['s100'], wr=['v243'])); A(nop(1))
        A(valu('v_accvgpr_write_b32', 'a248', 'v243'))
    c += stamp('ae')
    A(wait(vm=0))
    A(valu('v_add_u32', t0, UP, vSH))
    A(valu('v_add_u32', t2, 8 * SL, vSH))
    def xw(rt, jd):
        if rt < 4: return dsw('ds_write_b128', t0, Oacc(rt, 4 + jd), rt * SL + jd * 1024, tag='Ow')
        return dsw('ds_write_b128', t2, Oacc(rt, 4 + jd), jd * 1024, tag='Ow')
    E, C, Ad = softmax_items(19)
    order = [4, 5, 6, 7, 0, 1, 2, 3]
    mf = pv(18, 1, order)
    for g, m in enumerate(mf):
        A(m)
        if g < 8: A(E[g])
        if g >= 2 and g % 2 == 0: A(C[g // 2 - 1])
    ws = [xw(rt, jd) for rt in range(4) for jd in range(4)]
    A(ws.pop(0)); A(ws.pop(0))
    for g, m in enumerate(pv(19, 1, order)):
        A(m); A(ws.pop(0)); A(Ad[g])
    for x in ws: A(x)
    LS = 184
    for rt in RS: A(valu('v_accvgpr_read_b32', vr(LS + rt), RS[rt]))
    for jd in range(4): A(xw(4, jd))
    for op in ('v_permlane16_swap_b32', 'v_permlane32_swap_b32'):
        for rt, s in vSUM.items(): A(valu('v_mov_b32', vr(LS + rt), s))
        A(nop(0))
        for rt, s in vSUM.items(): A(perm(op, s, vr(LS + rt)))
        for rt, s in vSUM.items(): A(valu('v_add_f32', s if op.startswith('v_permlane16') else vr(LS + rt), s, vr(LS + rt)))
    A(salu('s_lshl_b32', sT1, sW, 11))
    A(salu('s_add_u32', sT1, sT1, LX))
    A(salu('s_xor_b32', sT2, sT1, 2048))
    A(valu('v_add_u32', t0, sT1, vL16))
    A(valu('v_add_u32', t2, sT2, vL16))
    A(dsw('ds_write_b128', t0, vr(LS), 0)); A(dsw('ds_write_b32', t0, vr(LS + 4), 1024))
    A(valu('v_add_u32', t0, UP, vSHP))
    A(valu('v_add_u32', t1, 8 * SL, vSHP))
    A(wait(lg=0)); A(bar())
    c += stamp()
    LP = 192
    A(dsr('ds_read_b128', vr(LP), t2, 0, tag='l')); A(dsr('ds_read_b32', vr(LP + 4), t2, 1024, tag='l'))
    def TH(rt, jd): return vr(104 + (rt * 4 + jd) * 4)
    for rt in range(5):
        for jd in range(4):
            if rt < 4: A(dsr('ds_read_b128', TH(rt, jd), t0, rt * SL + jd * 1024, tag=f'Or{rt}'))
            else: A(dsr('ds_read_b128', TH(rt, jd), t1, jd * 1024, tag=f'Or{rt}'))
        if rt == 2:
            A(need(lg='l'))
            for r in range(5): A(valu('v_add_f32', vr(LS + r), vr(LS + r), vr(LP + r)))
            for r in range(5): A(valu('v_rcp_f32', vr(200 + 2 * r), vr(LS + r)))
            A(salu('s_mov_b32', sT1, f32(2.0 ** 24)))
            A(raw('s_mov_b64 s[46:47], 0', wr=['s46', 's47']))
            for r in range(5):
                A(vcmp('v_cmp_nge_f32', 'vcc', sT1, vr(LS + r)))
                A(nop(0))
                A(raw('s_or_b64 s[46:47], s[46:47], vcc', rd=['vcc', 's46', 's47'], wr=['s46', 's47']))
            A(salu('s_or_b32', sT2, sT2, sT3))
            A(salu('s_lshl_b32', sT1, sW, 2))
            A(salu('s_add_u32', sT1, sT1, LX + 8192))
            A(valu('v_mov_b32', vr(LP), sT1))
            A(valu('v_mov_b32', vr(LP + 1), sT2))
            A(dsw('ds_write_b32', vr(LP), vr(LP + 1), 0))
    for rt in range(5):
        A(need(lg=f'Or{rt}'))
        for jd in range(4):
            for h in range(2):
                A(valu('v_pk_add_f32', off(Oacc(rt, jd), 2 * h), off(Oacc(rt, jd), 2 * h), off(TH(rt, jd), 2 * h), w=2))
        for jd in range(4):
            for h in range(2):
                A(valu('v_pk_mul_f32', off(Oacc(rt, jd), 2 * h), off(Oacc(rt, jd), 2 * h), vr(200 + 2 * rt), w=2, mods='op_sel_hi:[1,0]'))
        for jd in range(4):
            for h in range(2):
                A(valu('v_cvt_pk_bf16_f32', vr(STG + rt * 8 + jd * 2 + h), off(Oacc(rt, jd), 2 * h), off(Oacc(rt, jd), 2 * h + 1)))
        for u in range(2):
            j = rt * 2 + u
            A(dsw('ds_write_b128', t0, vr(STG + j * 4), (j // 4) * SL + (j % 4) * 1024))
    A(valu('v_add_u32', t0, UP, vL16))
    A(valu('v_mov_b32', t1, LX + 8192))
    A(wait(lg=0)); A(bar())
    c += stamp('ae')
    return c

def Of(u, rt):
    f = u * 5 + rt
    return ar(4 * f) if f < 20 else ar(160 + 4 * (f - 20))

def ophase():
    c = []
    A = c.append
    def o_read(u, rt):
        wp, ul = u // 2, u % 2
        j = rt * 2 + ul
        return dsr('ds_read_b128', Of(u, rt), t0, (1 - wp % 2) * 8448 + (wp // 2) * 4224 + (j // 4) * SL + (j % 4) * 1024, tag=f'G{u}')
    def wo_dma(ch):
        q = [setm0(sLDS, (ch % 4) * SL), salu('s_mov_b32', sSO, (ch % 8) * 32768 + (ch // 8) * 128)]
        q += [dma(vD[k], SWO, sSO, PC * k, OPT['opol'], tag=f'W{ch}') for k in range(4)]
        return q
    def acc(half, nt, rt): return vr((24 if half == 0 else 104) + (rt * 4 + nt) * 4)
    A(dsr('ds_read_b128', vr(252), t1, 0, tag='vote'))
    c += w_reads(0, 'T0')
    for rt in range(5): A(o_read(0, rt))
    A(need(lg='vote'))
    A(valu('v_or3_b32', vr(252), vr(252), vr(253), vr(254)))
    A(valu('v_or_b32', vr(252), vr(252), vr(255)))
    A(salu('s_mul_i32', sT2, sW, 20480))
    A(rfl(sT1, vr(252)))
    A(valu('v_add_u32', t1, sT2, vL16))
    A(salu('s_andn2_b32', sT1, sT1, sPASS))
    if OPT['xl'] or OPT['xq']: A(salu('s_cmp_eq_u32', 0, 1))
    A(br('s_cbranch_scc1', 'L_fallback'))
    for rt in range(5): A(o_read(1, rt))
    sBLK = [0, 's48', 's49', 's50', 's51']
    for i in range(1, 5): A(salu('s_mov_b32', sBLK[i], i * 4096))
    mf, memq, valq, pre = [], [], [], {}
    orr = [(u, rt) for u in range(2, 8) for rt in range(5)]
    def fin(half, rt, ntp, g):
        d = STG + (rt * 2 + ntp) * 4
        v = []
        for q in range(2):
            a = acc(half, 2 * ntp + q, rt)
            for h in range(2): v.append(valu('v_cvt_pk_bf16_f32', vr(d + 2 * q + h), off(a, 2 * h), off(a, 2 * h + 1)))
        blk = (half * 2 + ntp) * 5 + rt
        st = [vst(vr(d), 4, t1, SWS, sBLK[blk // 4], (blk % 4) * 1024, OPT['stpol'], tag='st')]
        return v, st
    f0 = [fin(0, rt, ntp, 0) for rt in range(5) for ntp in range(2)]
    for ch in range(16):
        g0 = ch * 20; half, u = ch // 8, ch % 8
        pre[g0] = [need(lg=f'T{ch}')] if ch else [need(lg='G0')]
        for rt in range(5):
            for nt in range(4):
                mf.append(mfma(acc(half, nt, rt), Wf(ch % 2, nt), Of(u, rt), acc(half, nt, rt) if u else 0))
        if ch + 1 < 16:
            if ch + 1 >= 4: memq.append((g0, need(vm=f'W{ch+1}')))
            memq += [(g0, x) for x in w_reads(ch + 1, f'T{ch+1}')]
        if ch + 4 < 16: memq += [(g0, x) for x in wo_dma(ch + 4)]
        for _ in range(10):
            if orr: memq.append((g0, o_read(*orr.pop(0))))
        if ch in (11, 12):
            for v, st in f0[(ch - 11) * 5:(ch - 10) * 5]: memq += [(g0, x) for x in st]
    for v, st in f0: valq += [(8 * 20 + 4, x) for x in v]
    valq += [(13 * 20, x) for x in reduce_setup()]
    f1 = [fin(1, rt, ntp, 0) for rt in range(5) for ntp in range(2)]
    for n, (v, st) in enumerate(f1[:6]):
        valq += [(15 * 20 + 4 * (n // 2) + 8, x) for x in v + st]
    body, mleft, vleft = weave(mf, memq, valq, pre, flush=False, period=20)
    assert not mleft
    pos = {id(x): i for i, x in enumerate(body)}
    for v, st in f0: assert pos[id(st[-1])] > max(pos[id(x)] for x in v)
    c += body + [x for _, x in vleft]
    for v, st in f1[6:]: c += v + st
    c += stamp('ae')
    c += reduce_tail()
    return c

SG, SO, SD = SA, SB, SX
A1, A2 = 'v24', 'v28'
vLD, vST, vTD = 'v32', 'v33', 'v34'
def reduce_setup():
    c = []
    A = c.append
    N, G = 'v35', 'v36'
    A(valu('v_bfe_u32', N, vL16, 4, 4))
    A(valu('v_lshrrev_b32', G, 8, vL16))
    A(salu('s_lshl_b32', sT1, sBR, 3)); A(salu('s_add_u32', sT1, sT1, sB))
    A(salu('s_mul_i32', sT2, sT1, 16 * 81920))
    A(salu('s_add_u32', SG, 's78', sT2)); A(salu('s_addc_u32', off(SG, 1), 's79', 0)); A(salu('s_and_b32', off(SG, 1), off(SG, 1), 0xffff))
    A(salu('s_mov_b32', off(SG, 2), 16 * 81920))
    A(salu('s_mul_i32', sCNT, sT1, OPT['cstr'])); A(salu('s_add_u32', sCNT, sCNT, OPT['cbase']))
    A(salu('s_mov_b32', SD, 's76')); A(salu('s_and_b32', off(SD, 1), 's77', 0xffff)); A(salu('s_mov_b32', off(SD, 2), 256))
    A(salu('s_mul_i32', sT1, sB, 163840)); A(salu('s_lshl_b32', sT2, sBR, 10)); A(salu('s_add_u32', sT1, sT1, sT2))
    A(salu('s_add_u32', SO, 's68', sT1)); A(salu('s_addc_u32', off(SO, 1), 's69', 0)); A(salu('s_and_b32', off(SO, 1), off(SO, 1), 0xffff))
    A(salu('s_sub_u32', off(SO, 2), 8 * 163840, sT1))
    A(salu('s_lshl_b32', sOFF, sHKV, 1)); A(salu('s_add_u32', sOFF, sOFF, sHP))
    A(salu('s_mov_b32', sLAST, 0))
    A(valu('v_mul_u32_u24', vLD, 81920, G))
    A(valu('v_lshl_add_u32', vLD, N, 4, vLD))
    A(salu('s_lshl_b32', sT1, sW, 8))
    A(valu('v_add_u32', vLD, sT1, vLD))
    A(valu('v_and_b32', vST, 1, G))
    A(valu('v_lshlrev_b32', vST, 5, vST))
    A(valu('v_lshl_add_u32', vST, N, 11, vST))
    A(valu('v_lshrrev_b32', G, 1, G))
    A(valu('v_lshl_add_u32', vST, G, 15, vST))
    A(salu('s_lshl_b32', sT1, sW, 3))
    A(valu('v_add_u32', vST, sT1, vST))
    A(valu('v_mov_b32', vTD, LX + 8192 + 64))
    A(valu('v_and_b32', G, 1, N))
    A(valu('v_lshlrev_b32', G, 4, G))
    A(valu('v_mov_b32', 'v37', 0x3f80))
    A(valu('v_lshlrev_b32', G, G, 'v37'))
    A(valu('v_lshrrev_b32', N, 1, N))
    for d in range(8): A(vcmp('v_cmp_eq_u32', f's{52+2*d}', d, N))
    for d in range(8): A(valu('v_cndmask_b32', off(A1, d), 0, G, (f's[{52+2*d}:{53+2*d}]', [f's{52+2*d}', f's{53+2*d}'])))
    return c

def reduce_tail():
    c = []
    A = c.append
    V = 'v38'; Z = 'v39'
    def cnt_is(n):
        A(wait(vm=0)); A(rfl(sT2, V)); A(nop(0)); A(salu('s_and_b32', sT3, sT2, 0xff)); A(salu('s_cmp_eq_u32', sT3, n))
    def atom(op): return I(f'{op} {V}, {Z}, {rng(SD,4)}, {sCNT} offen sc0 sc1', 'vld', rd=[V, Z, sCNT] + regs(SD, 4), wr=[V])
    A(valu('v_mov_b32', V, 1)); A(valu('v_mov_b32', Z, 0))
    A(salu('s_lshl_b32', sT1, 1, sOFF))
    A(salu('s_cmp_lg_u32', sW, 0))
    A(wait(vm=0)); A(bar())
    c += stamp('e')
    A(br('s_cbranch_scc1', 'L_rwait'))
    A(raw('s_mov_b64 exec, 1', wr=['exec']))
    A(atom('buffer_atomic_add'))
    A(salu('s_mov_b32', sSTEP, OPT['limit']))
    cnt_is(15)
    A(br('s_cbranch_scc0', 'L_poll'))
    A(salu('s_lshr_b32', sT2, sT2, 16)); A(salu('s_or_b32', sT1, sT1, sT2))
    A(br('s_branch', 'L_go'))
    A(label('L_poll'))
    A(vld(V, 1, Z, SD, sCNT, 0, 'sc1'))
    cnt_is(16)
    A(br('s_cbranch_scc1', 'L_go'))
    A(salu('s_sub_u32', sSTEP, sSTEP, 1))
    A(br('s_cbranch_scc0', 'L_poll'))
    A(salu('s_lshl_b32', sT2, sT1, 16))
    A(valu('v_mov_b32', V, sT2))
    A(atom('buffer_atomic_or'))
    cnt_is(16)
    A(br('s_cbranch_scc1', 'L_go'))
    A(salu('s_mov_b32', sT1, 0))
    A(label('L_go'))
    A(valu('v_mov_b32', V, sT1))
    A(dsw('ds_write_b32', vTD, V, 0))
    A(raw('s_mov_b64 exec, -1', wr=['exec']))
    A(wait(lg=0))
    A(label('L_rwait'))
    A(bar())
    c += stamp('e')
    A(dsr('ds_read_b32', V, vTD, 0))
    A(label('L_red'))
    A(salu('s_mul_i32', sT1, sOFF, 5120))
    so = ['s48', 's49', 's50', 's51']
    def D(rt, i): return vr(104 + (rt * 4 + i) * 4)
    body = []
    for i in range(4): A(salu('s_add_u32', so[i], sT1, i * 4 * 81920))
    for rt in range(4):
        for i in range(4): body.append(vld(D(rt, i), 4, vLD, SG, so[i], rt * 1024, OPT['ldpol'], tag=f'r{rt}{i}'))
    for i in range(4): body.append(salu('s_add_u32', so[i], so[i], 4096))
    for i in range(4): body.append(vld(D(4, i), 4, vLD, SG, so[i], 0, OPT['ldpol'], tag=f'r4{i}'))
    body += [wait(lg=0), rfl(sT2, V), salu('s_lshl_b32', sT3, 1, sOFF), salu('s_lshl_b32', sT1, sOFF, 6),
             salu('s_and_b32', sNR, sT2, sT3), br('s_cbranch_scc0', 'L_fin'),
             salu('s_or_b32', sLAST, sLAST, sT3), salu('s_andn2_b32', sNR, sT2, sLAST),
             salu('s_add_u32', sT2, sT1, 65536), salu('s_add_u32', sT3, sT1, 131072)]
    def acc(p): return vr(40 + 4 * p)
    for rt in range(5):
        for i in range(4):
            body.append(need(vm=f'r{rt}{i}'))
            body.append(mfma(acc(rt // 2), A2 if rt % 2 else A1, D(rt, i), acc(rt // 2) if (rt % 2 or i) else 0))
    def fin(p):
        return [valu('v_cvt_pk_bf16_f32', vr(52 + 2 * p + h), off(acc(p), 2 * h), off(acc(p), 2 * h + 1)) for h in range(2)]
    body += fin(0) + fin(1) + [vst(vr(52), 2, vST, SO, sT1, 0), vst(vr(54), 2, vST, SO, sT2, 0), nop(1)] + fin(2)
    body += [raw('s_mov_b64 exec, 0xffffffff', wr=['exec']), vst(vr(56), 2, vST, SO, sT3, 0), raw('s_mov_b64 exec, -1', wr=['exec'])]
    c += body
    A(raw(f's_ff1_i32_b32 {sOFF}, {sNR}', rd=[sNR], wr=[sOFF]))
    A(salu('s_cmp_lg_u32', sNR, 0))
    A(br('s_cbranch_scc1', 'L_red'))
    A(label('L_fin'))
    return c

def fallback():
    c = [label('L_fallback')]
    A = c.append
    A(wait(vm=0, lg=0)); A(bar())
    A(salu('s_mov_b32', sPASS, -1))
    c += kv_mode()
    for k in range(4): A(valu('v_accvgpr_read_b32', vD[k], ar(aDkv + k)))
    for rt in range(5): A(valu('v_mov_b32', Mn(rt), 0xff800000))
    A(salu('s_and_b32', sT1, sW, 1))
    A(salu('s_mul_i32', sT1, sT1, 8448))
    A(valu('v_subrev_u32', t2, sT1, vK))
    A(salu('s_mov_b32', sSO, 0))
    A(setm0(sLDS, 0))
    A(label('L_fb_loop'))
    A(nop(0))
    for k in range(4): A(dma(vD[k], SA, sSO, PC * k))
    A(wait(vm=0)); A(bar())
    for hf in range(2):
        for t in range(2):
            for cc in range(4): A(dsr('ds_read_b128', Kf(hf, t, cc), t2, hf * 8448 + t * 512 + cc * 64))
    A(wait(lg=0)); A(bar())
    for rt in range(5):
        for hf in range(2):
            for t in range(2):
                for cc in range(4): A(mfma(Sb(hf, t), Kf(hf, t, cc), Qf(rt, cc), Sb(hf, t) if cc else 0))
        A(nop(7))
        for n in range(0, 16, 2): A(valu('v_max3_f32', Mn(rt), Mn(rt), off(Sb(0, 0), n), off(Sb(0, 0), n + 1)))
    A(salu('s_add_u32', sSO, sSO, 16384))
    A(salu('s_cmp_lt_u32', sSO, 524288))
    A(br('s_cbranch_scc1', 'L_fb_loop'))
    c += max_finish()
    for i in range(4):
        c += kv_tile_dma('K', i, 'x') + kv_tile_dma('V', i, 'x')
    for i in range(80): A(valu('v_mov_b32', vr(24 + i), 0))
    for s in vSUM.values(): A(valu('v_mov_b32', s, 0))
    for i in range(80): A(valu('v_accvgpr_write_b32', ar(i), 0))
    for i in range(8): A(valu('v_accvgpr_write_b32', ar(224 + i), 0))
    A(valu('v_mov_b32', t0, 0x3f803f80))
    for i in range(4): A(valu('v_accvgpr_write_b32', off(ONES, i), t0))
    c += state_init()
    A(wait(vm=0)); A(bar())
    c += kv_frag_reads(0, 'K') + kv_frag_reads(0, 'V')
    A(wait(lg=0)); A(bar())
    A(br('s_branch', 'L_loop_in'))
    return c

def stamps_out():
    if OPT['bst']:
        c = []
        A = c.append
        A(salu('s_add_u32', 's4', 's78', 66 << 20)); A(salu('s_addc_u32', 's5', 's79', 0)); A(salu('s_and_b32', 's5', 's5', 0xffff))
        A(salu('s_mov_b32', 's6', 1 << 20)); A(salu('s_mov_b32', 's7', 0x20000))
        A(salu('s_lshl_b32', sT1, 's2', 10))
        A(valu('v_lshlrev_b32', t0, 2, 'v0'))
        A(valu('v_accvgpr_read_b32', t2, 'a248'))
        A(vst(t2, 1, t0, 's4', sT1, 0))
        return c
    if not OPT['stamps']: return []
    c = []
    A = c.append
    n = stamp_n[0]
    A(wait(vm=0))
    c += stamp('abe')
    n = stamp_n[0]
    if OPT['dbg']:
        A(salu('s_mov_b32', 's4', 's76')); A(salu('s_and_b32', 's5', 's77', 0xffff)); A(salu('s_mov_b32', 's6', 256)); A(salu('s_mov_b32', 's7', 0x20000))
        A(salu('s_lshl_b32', sT1, 's2', 2)); A(salu('s_add_u32', sT1, sT1, sW))
        A(salu('s_cmp_lg_u32', sT1, OPT['dbg'])); A(br('s_cbranch_scc1', 'L_end'))
        A(valu('v_mov_b32', t0, 0))
        for i in range(1, n):
            A(salu('s_sub_u32', sT1, f's{82+2*i}', 's82'))
            A(valu('v_mov_b32', t1, sT1))
            A(vst(t1, 1, t0, 's4', 0, 4 * i))
            A(wait(vm=0))
        return c
    A(salu('s_add_u32', 's4', 's78', 64 << 20)); A(salu('s_addc_u32', 's5', 's79', 0)); A(salu('s_and_b32', 's5', 's5', 0xffff))
    A(salu('s_mov_b32', 's6', 1 << 20)); A(salu('s_mov_b32', 's7', 0x20000))
    A(salu('s_lshl_b32', sT1, 's2', 2)); A(salu('s_add_u32', sT1, sT1, sW)); A(salu('s_lshl_b32', sT1, sT1, 6))
    A(valu('v_mov_b32', t0, 0))
    for i in range(16 if OPT['stamps'] == 3 else n):
        A(valu('v_mov_b32', t1, f's{82+i}' if OPT['stamps'] == 3 else f's{82+2*i}'))
        A(vst(t1, 1, t0, 's4', sT1, 4 * i))
        A(wait(vm=0))
    return c

def kernel1():
    st0 = stamp('abcde')
    pre, R = setup()
    pre = pre[:2] + st0 + pre[2:]
    part1 = resolve(pre + qphase(R) + prologue())
    blocks = [block(j) for j in range(4)]
    first = [x for x in blocks[0] if x.kind == 'mfma'][0]
    entry = [label('L_loop_in'), first, br('s_branch', 'L_loop_mid')]
    loop = [label('L_loop')] + sum(blocks, []) + [br('s_cbranch_scc0', 'L_loop')]
    sw = switch_wo()
    part3 = resolve(epilogue() + ophase()) + stamps_out() + [label('L_end'), raw('s_endpgm')]
    fb = fallback()
    mid = [i for i, x in enumerate(loop) if x.kind == 'label' and x.arg == 'L_loop_mid'][0]
    tr = part1 + entry + loop[mid:] + loop + sw + loop + sw[:2] + part3
    errs = check(tr, 'k1')
    vb = [i for i, x in enumerate(part3) if x.kind == 'br' and x.arg == 'L_fallback'][0]
    errs += check(part3[:vb + 1] + fb + entry + loop[mid:] + loop, 'fb')
    assert part1[-1].kind == 'br'
    code = part1[:-1] + entry + [raw('.p2align 6', 'cmt')] + loop + sw + part3 + fb
    return code, errs

def kernel2():
    c = []
    A = c.append
    A(salu('s_cmp_ge_u32', 's2', 320)); A(br('s_cbranch_scc1', 'L2_end'))
    if OPT['stamps']: A(raw('s_memrealtime s[30:31]'))
    A(raw('s_load_dwordx2 s[4:5], s[0:1], 96', wr=['s4', 's5']))
    if OPT['stamps']: A(raw('s_load_dwordx2 s[40:41], s[0:1], 96'))
    A(raw('s_load_dwordx2 s[8:9], s[0:1], 80', wr=['s8', 's9']))
    A(salu('s_mul_hi_u32', 's12', 's2', 0xcccccccd)); A(salu('s_lshr_b32', 's12', 's12', 4))
    A(salu('s_mul_i32', 's13', 's12', 20)); A(salu('s_sub_u32', 's13', 's2', 's13'))
    A(valu('v_lshrrev_b32', 'v1', 6, 'v0'))
    A(valu('v_lshlrev_b32', 'v2', 4, 'v0'))
    A(rfl('s14', 'v1'))
    A(salu('s_lshl_b32', 's15', 's13', 12))
    A(valu('v_add_u32', 'v2', 's15', 'v2'))
    A(salu('s_mul_i32', 's16', 's12', 16 * 81920))
    A(wait(lg=0))
    A(salu('s_add_u32', 's4', 's4', 's16')); A(salu('s_addc_u32', 's5', 's5', 0)); A(salu('s_and_b32', 's5', 's5', 0xffff))
    A(salu('s_mov_b32', 's6', 16 * 81920)); A(salu('s_mov_b32', 's7', 0x20000))
    for p in range(16):
        A(salu('s_mov_b32', 's17', p * 81920))
        A(vld(vr(16 + 4 * p), 4, 'v2', 's4', 's17', 0, OPT['ldpol'], tag=f'p{p}'))
    A(salu('s_and_b32', 's9', 's9', 0xffff)); A(salu('s_mov_b32', 's10', 8 * 80 * 1024 * 2)); A(salu('s_mov_b32', 's11', 0x20000))
    A(salu('s_lshl_b32', 's15', 's13', 2)); A(salu('s_add_u32', 's15', 's15', 's14'))
    A(salu('s_and_b32', 's18', 's15', 1))
    A(salu('s_lshr_b32', 's15', 's15', 1))
    A(salu('s_mul_i32', 's19', 's15', 205)); A(salu('s_lshr_b32', 's19', 's19', 10))
    A(salu('s_mul_i32', 's20', 's19', 5)); A(salu('s_sub_u32', 's20', 's15', 's20'))
    A(salu('s_and_b32', 's21', 's12', 7))
    A(salu('s_lshr_b32', 's22', 's12', 3))
    A(salu('s_mul_i32', 's21', 's21', 5)); A(salu('s_add_u32', 's21', 's21', 's20')); A(salu('s_lshl_b32', 's21', 's21', 15))
    A(salu('s_lshl_b32', 's22', 's22', 10)); A(salu('s_add_u32', 's21', 's21', 's22'))
    A(salu('s_lshl_b32', 's19', 's19', 7)); A(salu('s_add_u32', 's21', 's21', 's19'))
    A(salu('s_lshl_b32', 's18', 's18', 6)); A(salu('s_add_u32', 's21', 's21', 's18'))
    A(valu('v_and_b32', 'v3', 15, 'v0')); A(valu('v_lshlrev_b32', 'v3', 11, 'v3'))
    A(valu('v_bfe_u32', 'v4', 'v0', 4, 2)); A(valu('v_lshl_add_u32', 'v3', 'v4', 3, 'v3'))
    A(salu('s_mov_b32', 's23', 0xffff0000))
    for p in range(16):
        A(need(vm=f'p{p}'))
        for i in range(4):
            src = vr(16 + 4 * p + i)
            if p == 0:
                A(valu('v_lshlrev_b32', vr(8 + 2 * i), 16, src)); A(valu('v_and_b32', vr(9 + 2 * i), 's23', src))
            else:
                A(valu('v_lshlrev_b32', vr(80 + 2 * i), 16, src)); A(valu('v_and_b32', vr(81 + 2 * i), 's23', src))
        if p:
            for i in range(4): A(valu('v_pk_add_f32', vr(8 + 2 * i), vr(8 + 2 * i), vr(80 + 2 * i), w=2))
    for i in range(4): A(valu('v_cvt_pk_bf16_f32', vr(4 + i), vr(8 + 2 * i), vr(9 + 2 * i)))
    A(vst('v4', 2, 'v3', 's8', 's21', 0)); A(vst('v6', 2, 'v3', 's8', 's21', 32))
    if OPT['stamps']:
        A(wait(vm=0)); A(raw('s_memrealtime s[32:33]')); A(wait(lg=0))
        A(salu('s_add_u32', 's40', 's40', 65 << 20)); A(salu('s_addc_u32', 's41', 's41', 0)); A(salu('s_and_b32', 's41', 's41', 0xffff))
        A(salu('s_mov_b32', 's42', 1 << 20)); A(salu('s_mov_b32', 's43', 0x20000))
        A(salu('s_lshl_b32', 's34', 's2', 2)); A(salu('s_add_u32', 's34', 's34', 's14')); A(salu('s_lshl_b32', 's34', 's34', 3))
        A(valu('v_mov_b32', 'v1', 0)); A(valu('v_mov_b32', 'v10', 's30')); A(valu('v_mov_b32', 'v11', 's32'))
        A(vst('v10', 2, 'v1', 's40', 's34', 0))
    A(label('L2_end')); A(raw('s_endpgm'))
    c = resolve(c)
    return c, check(c, 'k2')

def desc(name, vg, acc):
    return f""".p2align 6
.amdhsa_kernel {name}
  .amdhsa_next_free_vgpr {vg}
  .amdhsa_next_free_sgpr 102
  .amdhsa_accum_offset {acc}
  .amdhsa_group_segment_fixed_size 0
  .amdhsa_kernarg_size 104
  .amdhsa_user_sgpr_count 2
  .amdhsa_user_sgpr_kernarg_segment_ptr 1
  .amdhsa_system_sgpr_workgroup_id_x 1
.end_amdhsa_kernel
"""

def main():
    assert (LX // 2048) % 2 == 0 or True
    k1, e1 = kernel1()
    k2, e2 = kernel2()
    for e in e1 + e2: print('HAZARD', e)
    K1, K2 = NAME + '_kernel', 'reduce_parts_kernel'
    hdr = open('cdna_kernels/' + NAME + '.s.ref').read().split('; Override launch')[0]
    s = hdr
    s += f'; @launch grid=(256,1,1) block=(256,1,1) lds=163840\n'
    s += '.amdgcn_target "amdgcn-amd-amdhsa--gfx950"\n.text\n'
    for n, k in ((K1, k1),):
        s += f'.globl {n}\n.p2align 8\n.type {n},@function\n{n}:\n' + render(k)
    s += 'L_code_end:\n'
    s += '.section .rodata,"a"\n' + desc(K1, 512, 256)
    open(sys.argv[1], 'w').write(s)
    print('instrs', len(k1), len(k2), 'errors', len(e1) + len(e2))
main()
```

```python
import sys, math, struct
from asmlib import *

NAME = 'concat_heads__gqa_block_cached__gqa_block_cached__near_ridge'
OPT = dict(slp=0, sout=0, fuse=1, cbase=0, cstr=16, limit=2000, scr=0, lpf=1, cpf=1, rb=8, rp=8, xq='', wpol0='', wn0=2, xpol='', opol='', wpol='', bst=0, qkord=0, xl='', kvpf=0, kv0=11, kvlate=2, rot=1, sg='a', samekv=0, stamps=0, kvpol='nt', pf=0, stpol='sc1', ldpol='sc1', dbg=0)
for a in sys.argv[2:]:
    k, v = a.split('=')
    OPT[k] = int(v) if v.lstrip('-').isdigit() else v.replace('+', ' ')

SL = 16896
PC = 1056
UP = 4 * SL
LX = 9 * SL
def f32(x): return struct.unpack('<I', struct.pack('<f', x))[0]

SX, SA, SB, SWQ, SWO, SWS = 's4', 's8', 's12', 's16', 's20', 's24'
sKb, sVb = 's28', 's30'
sW, sB, sHKV, sHP, sBR, sCNT, sOFF, sSTEP, sLDS, sPASS, sNR, sLAST = ['s%d' % i for i in range(32, 44)]
sT0, sT1, sT2, sT3 = 's44', 's45', 's46', 's47'
sSO = 's80'
sWOFF = 's81'
sPO = 's3'
sXQ = ['s48', 's49', 's50', 's51']
vL16 = 'v1'
vD = ['v2', 'v3', 'v4', 'v5']
vK, vK2, vVa, vVa2, vVb, vVb2 = 'v6', 'v7', 'v8', 'v9', 'v10', 'v11'
vT = ['v12', 'v13', 'v14', 'v15']
vSUM = {4: 'v16', 1: 'v17', 2: 'v18'}
vSH, vSHP = 'v19', 'v20'
t0, t1, t2 = 'v21', 'v22', 'v23'
def vr(n): return f'v{n}'
def ar(n): return f'a{n}'
def Oacc(rt, ld): return vr(24 + (rt * 4 + ld) * 4) if ld < 4 else ar((rt * 4 + ld - 4) * 4)
def Vf(b, ld): return vr(104 + 32 * b + 4 * ld)
def Sb(k, t): return vr(168 + 8 * (k % 4) + 4 * t)
def Pb(k): return vr(200 + 4 * (k % 2))
def Mn(rt): return vr(208 + 4 * rt)
def Qf(rt, c): return ar(80 + (rt * 4 + c) * 4)
def Kf(b, t, c): return ar(160 + 32 * b + (t * 4 + c) * 4)
RS = {3: 'a224', 0: 'a228'}
ONES = 'a232'
aDwo, aDkv = 240, 244
def off(r, n): return f'{r[0]}{int(r[1:]) + n}'
vDwo = ['v228', 'v229', 'v230', 'v231']
vW = ['v232', 'v233', 'v234', 'v235']
vXd = 'v236'; vXdr = ['v236', 'v216', 'v217', 'v218', 'v219']; vXr = ['v237', 'v238']; vXr4 = ['v239', 'v240']; vPF, vPFd = 'v241', 'v242'
def Qacc(dt, rt): return vr(104 + (rt * 4 + dt) * 4)
def Wf(b, nt): return vr(184 + 16 * b + 4 * nt)
def Xf(c, rt):
    f = c * 5 + rt
    if f < 16: return ar(160 + 4 * f)
    if f < 56: return ar(4 * (f - 16))
    if f < 64: return ar(224 + 4 * (f - 56))
    return ar(160 + 4 * (f - 64))
STG = 216

stamp_n = [0]
def stamp(grp='a'):
    if not OPT['stamps'] or OPT['sg'] not in grp: return []
    i = stamp_n[0]; stamp_n[0] += 1
    if OPT['stamps'] == 3:
        assert i < 8
        return [raw('s_memtime s[98:99]'), raw('s_memrealtime s[100:101]'), wait(lg=0), salu('s_mov_b32', f's{82+i}', 's98'), salu('s_mov_b32', f's{90+i}', 's100')]
    op = 's_memrealtime' if OPT['stamps'] == 2 else 's_memtime'
    return [raw(f'{op} s[{82+2*i}:{83+2*i}]', wr=[f's{82+2*i}', f's{83+2*i}']), wait(lg=0)]

def setm0(base, const): return salu('s_add_u32', 'm0', base, const)

def kv_tile_dma(which, tile, tag):
    sig = 2 * (tile % 4) + (which == 'V')
    srd = SA if which == 'K' else SB
    q = [setm0(sLDS, sig * SL), salu('s_mov_b32', sSO, tile * 16384)]
    q += [dma(vD[k], srd, sSO, PC * k, OPT['kvpol'], tag=tag) for k in range(4)]
    return q

def setup():
    c = []
    A = c.append
    A(salu('s_cmp_ge_u32', 's2', 256)); A(br('s_cbranch_scc1', 'L_end'))
    A(raw('s_load_dwordx16 s[48:63], s[0:1], 0', wr=regs('s48', 16)))
    A(raw('s_load_dwordx4 s[64:67], s[0:1], 64', wr=regs('s64', 4)))
    A(raw('s_load_dwordx4 s[76:79], s[0:1], 88', wr=regs('s76', 4)))
    A(raw('s_load_dwordx2 s[68:69], s[0:1], 80', wr=regs('s68', 2)))
    L, G, Q, WV, KH, HH, RP, R4, C4 = ['v%d' % i for i in range(244, 253)]
    if OPT['scr']:
        A(salu('s_lshr_b32', sT1, 's2', 5)); A(salu('s_and_b32', 's2', 's2', 31)); A(salu('s_lshl_b32', 's2', 's2', 3)); A(salu('s_or_b32', 's2', 's2', sT1))
    A(salu('s_lshr_b32', sT1, 's2', 3))
    if OPT['cpf']:
        A(raw('s_getpc_b64 s[74:75]', wr=['s74', 's75']))
        A(label('L_pc'))
        A(salu('s_lshl_b32', sT2, sT1, 10))
        A(valu('v_lshrrev_b32', t0, 5, 'v0'))
        A(raw('s_min_u32 s46, s46, L_code_end-L_pc-1024', rd=['s46'], wr=['s46']))
        A(valu('v_lshlrev_b32', t0, 7, t0))
        A(salu('s_add_u32', 's74', 's74', sT2))
        A(salu('s_addc_u32', 's75', 's75', 0))
        A(I(f'global_load_dword {vPFd}, {t0}, s[74:75]', 'vld', rd=[t0, 's74', 's75'], wr=[vPFd], tag='cpf'))
    A(valu('v_lshrrev_b32', WV, 6, 'v0'))
    A(valu('v_bfe_u32', RP, 'v0', 3, 3))
    A(rfl(sW, WV))
    A(valu('v_and_b32', C4, 7, 'v0'))
    A(valu('v_and_b32', t1, 6, RP))
    A(valu('v_xor_b32', R4, C4, t1))
    A(valu('v_and_b32', t1, 4, RP))
    A(valu('v_add_u32', t1, t1, RP))
    A(valu('v_lshlrev_b32', t1, 13, t1))
    A(valu('v_lshl_add_u32', t1, WV, 7, t1))
    A(valu('v_lshl_add_u32', vW[0], R4, 4, t1))
    for k in range(1, 4):
        A(valu('v_add_u32', vW[k], (16 * (k % 2) + 4 * (k // 2)) * 8192 - PC * k, vW[0]))
    A(salu('s_and_b32', sT0, 's2', 3))
    A(salu('s_lshl_b32', sT0, sT0, 2))
    A(salu('s_and_b32', sT2, sT1, 3))
    A(salu('s_add_u32', sT0, sT0, sT2))
    A(salu('s_lshr_b32', sB, sT1, 2))
    A(salu('s_mul_i32', sWOFF, sB, OPT['rb']))
    A(salu('s_mul_i32', sT2, sT2, OPT['rp']))
    A(salu('s_add_u32', sWOFF, sWOFF, sT2))
    A(salu('s_and_b32', sWOFF, sWOFF, 15))
    A(salu('s_and_b32', sT2, sW, 2))
    A(salu('s_add_u32', 's3', sWOFF, sT2))
    A(salu('s_lshl_b32', 's3', 's3', 6))
    A(salu('s_lshl_b32', sWOFF, sWOFF, 18))
    A(salu('s_mul_i32', sT2, sT2, 2112))
    A(salu('s_and_b32', sT1, sW, 1))
    A(salu('s_mul_i32', sT1, sT1, 8448))
    A(salu('s_add_u32', sLDS, sT1, sT2))
    A(salu('s_lshl_b32', sT1, sT0, 9))
    A(salu('s_sub_u32', off(SWQ, 2), 512 * 8192, sT1))
    A(salu('s_mov_b32', off(SWQ, 3), 0x20000))
    A(setm0(sLDS, UP))
    A(valu('v_bfe_u32', t2, 'v0', 3, 4))
    A(valu('v_lshrrev_b32', t1, 1, t2))
    A(valu('v_xor_b32', t1, t1, C4))
    A(valu('v_lshlrev_b32', t1, 4, t1))
    A(valu('v_lshl_add_u32', vXd, t2, 10, t1))
    A(salu('s_mul_i32', sT2, sB, 81920))
    A(salu('s_bitcmp0_b32', 's2', 2))
    A(wait(lg=0))
    c += stamp('b')
    A(raw('s_cselect_b64 s[16:17], s[54:55], s[64:65]'))
    A(raw('s_cselect_b64 s[4:5], s[48:49], s[58:59]'))
    A(raw('s_cselect_b64 s[70:71], s[50:51], s[60:61]'))
    A(raw('s_cselect_b64 s[72:73], s[52:53], s[62:63]'))
    A(raw('s_cselect_b64 s[20:21], s[56:57], s[66:67]'))
    A(salu('s_add_u32', SWQ, SWQ, sT1))
    A(salu('s_addc_u32', off(SWQ, 1), off(SWQ, 1), 0))
    A(salu('s_and_b32', off(SWQ, 1), off(SWQ, 1), 0xffff))
    c += w_dma(0)[2:]
    c += stamp('b')
    A(salu('s_add_u32', SX, SX, sT2))
    A(salu('s_addc_u32', off(SX, 1), off(SX, 1), 0))
    A(salu('s_and_b32', off(SX, 1), off(SX, 1), 0xffff))
    A(salu('s_mov_b32', off(SX, 2), 81920))
    A(salu('s_mov_b32', off(SX, 3), 0x20000))
    A(salu('s_lshl_b32', sT3, sW, 10))
    A(salu('s_and_b32', sXQ[0], 's3', 1023))
    xd = x_dma(0, False)
    for rt in range(5):
        A(xd[2 * rt])
        A(valu('v_add_u32', vXdr[rt + 1], (rt + 1) * 16384, vXd) if rt < 4 else nop(0))
        A(xd[2 * rt + 1])
        if rt == 0: c += stamp('b')
    c += stamp('b')
    return c, (L, G, Q, WV, KH, HH, RP, R4, C4)

def setup2(R):
    L, G, Q, WV, KH, HH, RP, R4, C4 = R
    c = []
    A = c.append
    def srd(s, ptr, offreg, nrec):
        A(salu('s_add_u32', s, ptr, offreg))
        A(salu('s_addc_u32', off(s, 1), off(ptr, 1), 0))
        A(salu('s_and_b32', off(s, 1), off(s, 1), 0xffff))
        A(salu('s_mov_b32', off(s, 2), nrec))
        A(salu('s_mov_b32', off(s, 3), 0x20000))
    for q in range(1, 4):
        A(salu('s_add_u32', sXQ[q], 's3', q * 256))
        A(salu('s_and_b32', sXQ[q], sXQ[q], 1023))
    A(salu('s_bfe_u32', sBR, 's2', 0x10002))
    A(salu('s_and_b32', sHP, sT0, 1))
    A(salu('s_lshr_b32', sHKV, sT0, 1))
    A(valu('v_and_b32', L, 63, 'v0'))
    A(valu('v_lshlrev_b32', vL16, 4, L))
    A(valu('v_and_b32', KH, 1, WV))
    A(valu('v_lshrrev_b32', HH, 1, WV))
    A(valu('v_lshlrev_b32', t1, 10, RP))
    A(valu('v_lshl_add_u32', t1, WV, 8, t1))
    A(valu('v_lshl_add_u32', vDwo[0], R4, 4, t1))
    for k in range(1, 4):
        A(valu('v_add_u32', vDwo[k], (8192 - PC) * k, vDwo[0]))
    A(valu('v_lshlrev_b32', vPF, 7, 'v0'))
    A(salu('s_lshl_b32', sT1, sB, 3))
    A(salu('s_add_u32', sT1, sT1, sHKV))
    A(salu('s_lshl_b32', sT1, sT1, 19))
    for dst, p in ((sKb, 's70'), (sVb, 's72')):
        A(salu('s_add_u32', dst, p, sT1))
        A(salu('s_addc_u32', off(dst, 1), off(p, 1), 0))
        A(salu('s_sub_u32', dst, dst, 96))
        A(salu('s_subb_u32', off(dst, 1), off(dst, 1), 0))
        A(salu('s_and_b32', off(dst, 1), off(dst, 1), 0xffff))
    ca = c; c = []; A = c.append
    c += kv_mode()
    A(salu('s_mov_b32', off(SA, 3), 0x20000))
    A(salu('s_mov_b32', off(SB, 3), 0x20000))
    A(salu('s_lshl_b32', sT1, sT0, 18))
    srd(SWO, SWO, sT1, 262144)
    A(salu('s_lshl_b32', sT1, sBR, 3))
    A(salu('s_add_u32', sT1, sT1, sB))
    A(salu('s_lshl_b32', sT1, sT1, 4))
    A(salu('s_add_u32', sT1, sT1, sT0))
    A(salu('s_mul_i32', sT1, sT1, 81920))
    srd(SWS, 's78', sT1, 81920)
    A(salu('s_mov_b32', sPASS, 0))
    A(valu('v_lshrrev_b32', G, 4, L))
    A(valu('v_and_b32', Q, 15, L))
    A(valu('v_bfe_u32', R4, L, 2, 2))
    A(valu('v_and_b32', C4, 3, L))
    A(valu('v_lshrrev_b32', t0, 1, Q))
    A(valu('v_xor_b32', t0, t0, G))
    A(valu('v_lshlrev_b32', t0, 4, t0))
    A(valu('v_lshl_add_u32', vXr[0], Q, 7, t0))
    A(valu('v_xor_b32', vXr[1], 64, vXr[0]))
    A(valu('v_add_u32', vXr4[0], 8 * SL, vXr[0]))
    A(valu('v_add_u32', vXr4[1], 8 * SL, vXr[1]))
    A(valu('v_mul_u32_u24', t0, 4224, HH))
    A(valu('v_mul_u32_u24', t1, 8448, KH))
    A(valu('v_add_u32', t2, t0, vL16))
    A(valu('v_add_u32', vSH, t2, t1))
    A(valu('v_sub_u32', vSHP, t2, t1))
    A(valu('v_add_u32', vSHP, 8448, vSHP))
    A(valu('v_add_u32', t2, t0, t1))
    A(valu('v_and_b32', t0, 1, G))
    A(valu('v_lshl_add_u32', t0, t0, 2, R4))
    A(valu('v_lshl_add_u32', t2, t0, 7, t2))
    A(valu('v_lshl_add_u32', t2, C4, 3, t2))
    A(valu('v_lshrrev_b32', vT[3], 1, G))
    A(valu('v_mul_u32_u24', vT[3], PC, vT[3]))
    A(valu('v_add_u32', t2, t2, vT[3]))
    A(valu('v_add_u32', t2, UP, t2))
    A(valu('v_and_b32', t0, 6, t0))
    for nt in range(4):
        A(valu('v_xor_b32', vT[nt], 2 * nt, t0))
        A(valu('v_lshl_add_u32', vT[nt], vT[nt], 4, t2))
    A(valu('v_and_b32', t0, 7, Q))
    A(valu('v_mul_u32_u24', t0, PC, t0))
    A(valu('v_lshrrev_b32', t2, 3, Q))
    A(valu('v_lshl_add_u32', t0, t2, 8, t0))
    A(valu('v_lshl_add_u32', t0, G, 4, t0))
    A(valu('v_add_u32', vK, t0, t1))
    A(valu('v_add_u32', vK2, UP, vK))
    A(valu('v_bfe_u32', t0, L, 2, 3))
    A(valu('v_mul_u32_u24', t0, PC, t0))
    A(valu('v_lshrrev_b32', t2, 1, G))
    A(valu('v_lshl_add_u32', t0, t2, 8, t0))
    A(valu('v_lshl_add_u32', t0, C4, 3, t0))
    A(valu('v_add_u32', t0, t0, t1))
    A(valu('v_lshl_add_u32', vVa, KH, 7, t0))
    A(valu('v_xor_b32', t2, 1, KH))
    A(valu('v_lshl_add_u32', vVb, t2, 7, t0))
    A(valu('v_add_u32', vVa2, UP, vVa))
    A(valu('v_add_u32', vVb2, UP, vVb))
    A(valu('v_lshl_add_u32', t0, KH, 13, vL16))
    A(valu('v_lshl_add_u32', t0, HH, 12, t0))
    for k in range(4):
        A(valu('v_add_u32', vD[k], 96 - 32 * k, t0))
    A(valu('v_lshrrev_b32', t0, 1, G))
    A(valu('v_lshl_add_u32', t0, t0, 4, Q))
    A(valu('v_lshlrev_b32', t0, 4, t0))
    A(valu('v_and_b32', t2, 1, G))
    A(valu('v_lshl_add_u32', t0, t2, 3, t0))
    A(valu('v_sub_u32', t2, vSH, vL16))
    A(valu('v_add_u32', t0, t0, t2))
    A(valu('v_add_u32', t0, 6 * SL, t0))
    A(valu('v_mul_u32_u24', t1, 4224, HH))
    A(valu('v_add_u32', t1, t1, vL16))
    A(valu('v_add_u32', t1, 6 * SL, t1))
    A(valu('v_mul_u32_u24', t2, 8448, KH))
    A(valu('v_sub_u32', t2, vK, t2))
    return ca, c

def kv_mode():
    c = []
    A = c.append
    A(salu('s_mov_b32', SA, sKb)); A(salu('s_mov_b32', off(SA, 1), off(sKb, 1)))
    A(salu('s_mov_b32', SB, sVb)); A(salu('s_mov_b32', off(SB, 1), off(sVb, 1)))
    A(salu('s_mov_b32', sNR, 0 if 'Z' in OPT['xl'] else 524288 + 96))
    A(salu('s_mov_b32', off(SA, 2), sNR)); A(salu('s_mov_b32', off(SB, 2), sNR))
    A(salu('s_mov_b32', sSTEP, 0 if OPT['samekv'] else 16384))
    A(salu('s_mov_b32', sOFF, 3 * 16384))
    A(salu('s_mov_b32', sCNT, 6))
    A(salu('s_mov_b32', sLAST, 0))
    A(salu('s_lshl_b32', sPO, sB, 5)); A(salu('s_add_u32', sPO, sPO, sW)); A(salu('s_lshl_b32', sPO, sPO, 10))
    return c

def w_dma(c):
    q = [setm0(sLDS, UP + (c % 4) * SL)]
    if c: q += [salu('s_add_u32', sWOFF, sWOFF, 262144), salu('s_and_b32', sWOFF, sWOFF, 0x3fffff)]
    else: q += [nop(0)]
    q += [dma(vW[k], SWQ, sWOFF, PC * k, OPT['wpol0'] if c < OPT['wn0'] else OPT['wpol'], tag=f'W{c}') for k in range(4)]
    return q

def x_dma(qtr, pad=True):
    q = []
    for rt in range(5):
        base = (rt * 16384 if rt < 4 else 8 * SL) + qtr * 4096
        q += [setm0(sT3, base)] + ([nop(0)] if pad else []) + [dma(vXdr[rt], SX, sXQ[qtr], 0, OPT['xpol'], tag=f'XD{qtr}')]
    return q

def w_reads(c, tag):
    q = []
    for nt in range(4):
        for rd in range(2):
            x = dsr('ds_read_b64_tr_b16', off(Wf(c % 2, nt), 2 * rd), vT[nt], (c % 4) * SL + rd * 2 * PC, tag=tag)
            x.cost = 6
            q.append(x)
    return q

def x_read(c, rt):
    kp, par = c // 2, c % 2
    if rt < 4: return dsr('ds_read_b128', Xf(c, rt), vXr[par], rt * 16384 + kp * 2048, tag=f'X{c}')
    return dsr('ds_read_b128', Xf(c, rt), vXr4[par], kp * 2048, tag=f'X{c}')

def resolve_partial(prev, body):
    xq = OPT['xq']
    if not xq: return body
    out = []
    for x in body:
        if 'G' in xq and x.kind == 'dma' and x.tag[0] == 'W': x = I(x.text.replace('s[16:19]', 's[56:59]'), 'dma', tag=x.tag) if 'Z' in xq else I('s_nop 0', 'dma', tag=x.tag)
        if 'K' in xq and x.kind == 'dma' and x.tag[0] in 'KV': x = I('s_nop 0', 'dma', tag=x.tag)
        if 'T' in xq and x.kind == 'dsr' and x.tag[0] == 'T': x = I('s_nop 0', 'dsr', tag=x.tag)
        if 'X' in xq and x.kind == 'dsr' and x.tag[0] == 'X': x = I('s_nop 0', 'dsr', tag=x.tag)
        if 'V' in xq and x.kind == 'valu' and ('v_mov_b32' in x.text or ', 0' in x.text): continue
        out.append(x)
    return out

def qphase(R):
    c = []
    A = c.append
    w1 = w_dma(1)
    c += w1[:-1]
    s2a, s2b = setup2(R)
    c += s2a + s2b
    c += stamp('b')
    c += w1[-1:] + x_dma(1)
    c += stamp('ab')
    A(need(vm='XD0'))
    c += stamp('b')
    A(bar())
    c += stamp()
    c += w_reads(0, 'T0')
    for rt in range(5): A(x_read(0, rt))
    for rt in range(5): A(x_read(1, rt))
    mf, memq, valq, pre = [], [], [], {}
    xr = [(cc, rt) for cc in range(2, 16) for rt in range(5)]
    xdone = None
    kvq = [('K', 0), ('V', 0), ('K', 1), ('V', 1)]
    early = {0: w_dma(2) + w_dma(3), 1: x_dma(2, False) + w_dma(4), 2: x_dma(3, False) + w_dma(5), 3: w_dma(6) + w_dma(7)}
    xper = {0: 5, 1: 5, 2: 5, 3: 5, 4: 10, 5: 10, 6: 10, 7: 10, 8: 10}
    xlim = {0: 4, 1: 4, 2: 8, 3: 8}
    for ch in range(16):
        g0 = ch * 20
        pre[g0] = [need(lg=f'T{ch}')] if ch else [need(lg='X0')]
        if ch == 2: pre[g0] = [need(vm='XD1', lg='T2'), bar()]
        if ch == 4: pre[g0] = [need(vm='XD3', lg='T4'), bar()] + stamp('b')
        for rt in range(5):
            for dt in range(4):
                mf.append(mfma(Qacc(dt, rt), Wf(ch % 2, dt), Xf(ch, rt), Qacc(dt, rt) if ch else 0))
        if ch + 1 < 16:
            memq.append((g0, need(vm=f'W{ch+1}')))
            memq += [(g0, x) for x in w_reads(ch + 1, f'T{ch+1}')]
        if ch in early: memq += [(g0, x) for x in early[ch]]
        elif ch + 4 < 16: memq += [(g0, x) for x in w_dma(ch + 4)]
        elif ch == 12 + OPT['kvlate']: memq += [(g0, x) for x in kv_tile_dma('K', 2, 'K2')]
        elif ch == 13 + OPT['kvlate']: memq += [(g0, x) for x in kv_tile_dma('V', 2, 'V2')]
        n = 0
        while xr and n < xper.get(ch, 11):
            cc, rt = xr[0]
            if cc >= xlim.get(ch, 16): break
            if cc * 5 + rt >= 64 and (cc * 5 + rt - 64) // 5 >= ch: break
            xr.pop(0); memq.append((g0, x_read(cc, rt))); n += 1
            if not xr: xdone = ch
        if xdone is not None and ch == xdone + 1:
            pre[g0] = [wait(lg=0), bar()]
        if ch in (0, 1, 2, 3, 4, 6, 9, 12): pre[g0] += stamp('c')
        if ch in (0, 2, 4, 8, 12): pre[g0] += stamp('d')
        if xdone is not None and ch > xdone and kvq and ch >= OPT['kv0']:
            wh, tl = kvq.pop(0)
            memq += [(g0, x) for x in kv_tile_dma(wh, tl, f'{wh}{tl}')]
    print('xdone', xdone)
    assert not kvq
    for i in range(80): valq.append((0, valu('v_mov_b32', vr(24 + i), 0)))
    for s in vSUM.values(): valq.append((0, valu('v_mov_b32', s, 0)))
    for i in range(80): valq.append((8 * 20 + 4, valu('v_accvgpr_write_b32', ar(i), 0)))
    for i in range(8): valq.append((13 * 20 + 4, valu('v_accvgpr_write_b32', ar(224 + i), 0)))
    valq.append((13 * 20 + 4, valu('v_mov_b32', vPF, 0x3f803f80)))
    for i in range(4): valq.append((13 * 20 + 4, valu('v_accvgpr_write_b32', off(ONES, i), vPF)))
    for k in range(4):
        valq.append((13 * 20 + 4, valu('v_accvgpr_write_b32', ar(aDwo + k), vDwo[k])))
        valq.append((13 * 20 + 4, valu('v_accvgpr_write_b32', ar(aDkv + k), vD[k])))
    body = resolve_partial(c, weave(mf, memq, valq, pre, period=20))
    c += body
    c += stamp('acde')
    A(salu('s_mov_b32', sT1, f32(math.log2(math.e) / math.sqrt(128.0))))
    A(salu('s_mov_b32', sT0, sT1))
    A(nop(5))
    for rt in range(5):
        for dt in range(4):
            a = Qacc(dt, rt)
            for h in range(2):
                A(valu('v_pk_mul_f32', off(a, 2 * h), off(a, 2 * h), ('s[44:45]', ['s44', 's45']), w=2))
        for dt in range(4):
            a = Qacc(dt, rt); d = STG + (rt * 4 + dt) * 2
            for h in range(2):
                A(valu('v_cvt_pk_bf16_f32', vr(d + h), off(a, 2 * h), off(a, 2 * h + 1)))
        for dt in range(4):
            j = rt * 2 + dt // 2
            A(dsw('ds_write_b64', t0, vr(STG + (rt * 4 + dt) * 2), (j // 4) * SL + (j % 4) * 1024 + (dt % 2) * 512, tag='Qw'))
    for nt in range(4): A(valu('v_subrev_u32', vT[nt], UP, vT[nt]))
    A(need(vm='V0', lg='Qw')); A(bar())
    return c

def kv_frag_reads(i, which):
    j = i % 4; b = i % 2
    q = []
    if which == 'K':
        a = vK if j < 2 else vK2
        for t in range(2):
            for cc in range(4):
                q.append(dsr('ds_read_b128', Kf(b, t, cc), a, (2 * (j % 2)) * SL + t * 512 + cc * 64, tag='Kr'))
    else:
        for ld in range(8):
            a = (vVa if j < 2 else vVa2) if ld < 4 else (vVb if j < 2 else vVb2)
            for rd in range(2):
                q.append(dsr('ds_read_b64_tr_b16', off(Vf(b, ld), 2 * rd), a, (2 * (j % 2) + 1) * SL + rd * 512 + (ld % 4) * 32, tag='Vr'))
    return q

def state_init():
    c = []
    for i in range(32): c.append(valu('v_mov_b32', off(Vf(1, 0), i), 0))
    for i in range(8): c.append(valu('v_mov_b32', off(Sb(-1, 0), i), f32(-1e30)))
    for i in range(4): c.append(valu('v_mov_b32', off(Pb(-2), i), 0))
    return c

def max_finish():
    c = []
    A = c.append
    for op in ('v_permlane16_swap_b32', 'v_permlane32_swap_b32'):
        for rt in range(5): A(valu('v_mov_b32', off(Mn(rt), 1), Mn(rt)))
        for rt in range(5): A(perm(op, Mn(rt), off(Mn(rt), 1)))
        for rt in range(5): A(valu('v_max_f32', Mn(rt), Mn(rt), off(Mn(rt), 1)))
    for rt in range(5):
        for i in (3, 2, 1, 0): A(valu('v_mul_f32', off(Mn(rt), i), -1.0, Mn(rt)))
    return c

def prologue():
    c = []
    A = c.append
    for cc in range(4): A(dsr('ds_read_b128', Kf(1, 0, cc), t2, cc * 64, tag='Km'))
    for rt in range(5):
        for cc in range(4):
            j = rt * 2 + cc % 2
            A(dsr('ds_read_b128', Qf(rt, cc), t1, (cc // 2) * 8448 + (j // 4) * SL + (j % 4) * 1024, tag=f'Qr{rt}'))
    memq = [(0, x) for x in kv_frag_reads(0, 'K') + kv_frag_reads(0, 'V')]
    for x in memq: x[1].cost = 6
    mf, pre = [], {}
    for rt in range(5):
        pre[rt * 4] = [need(lg=f'Qr{rt}')]
        for cc in range(4): mf.append(mfma(Mn(rt), Kf(1, 0, cc), Qf(rt, cc), Mn(rt) if cc else 0))
    c += weave(mf, memq, [(0, x) for x in state_init()], pre)
    A(need(vm='V1', lg='Vr')); A(bar())
    c += kv_tile_dma('K', 3, 'K3') + kv_tile_dma('V', 3, 'V3')
    for rt in range(5): A(valu('v_max3_f32', Mn(rt), Mn(rt), off(Mn(rt), 1), off(Mn(rt), 2)))
    for rt in range(5): A(valu('v_max_f32', Mn(rt), Mn(rt), off(Mn(rt), 3)))
    c += max_finish()
    c += stamp('ade')
    if OPT['bst']: A(raw('s_mov_b64 s[98:99], 1'))
    A(br('s_branch', 'L_loop_in'))
    return c

GX = [2, 7, 12, 18, 23, 29, 35, 40]
RX = [0, 1, 3, 4, 5, 6, 9, 10]
TX = [13, 14, 15, 16, 17, 19, 21, 22, 24, 26, 27, 28, 30, 32, 33, 36]

def softmax_items(k):
    rt = k % 5
    E = [valu('v_exp_f32', off(Sb(k, 0), n), off(Sb(k, 0), n)) for n in range(8)]
    C = [valu('v_cvt_pk_bf16_f32', off(Pb(k), n), off(Sb(k, 0), 2 * n), off(Sb(k, 0), 2 * n + 1)) for n in range(4)]
    Ad = [valu('v_add_f32', vSUM[rt], vSUM[rt], off(Sb(k, 0), n)) for n in range(8)] if rt in vSUM else []
    return E, C, Ad

def pv(k, vb, order=range(8)):
    rt = k % 5
    m = [mfma(Oacc(rt, ld), Vf(vb, ld), Pb(k), Oacc(rt, ld)) for ld in order]
    if rt in RS: m.append(mfma(RS[rt], ONES, Pb(k), RS[rt]))
    return m

def block(j):
    out = [cmt(f'block {j}')]
    mem = {}
    for x, i in zip(RX, kv_frag_reads(j + 1, 'K')): mem[x] = i
    for x, i in zip(TX, kv_frag_reads(j + 1, 'V')): mem[x] = i
    for n, x in enumerate(GX):
        mem[x] = dma(vD[n % 4], SA if n < 4 else SB, sOFF, PC * (n % 4), OPT['kvpol'])
    assert len(mem) == 32
    if j == 1 and OPT['lpf']: mem[38] = vld('v228', 1, vL16, SWO, sPO, 0, OPT['opol'])
    sc = {1: [salu('s_add_u32', sOFF, sOFF, sSTEP)], 2: [setm0(sLDS, 2 * j * SL)], 20: [setm0(sLDS, (2 * j + 1) * SL)],
          24: [wait(lg=8)]}
    if j == 2: sc[0] = []
    if j == 1:
        sc[38] = [salu('s_mov_b32', off(SA, 2), sNR)]
    if j == 2:
        sc[10] = [salu('s_mov_b32', off(SB, 2), sNR)]
        if OPT['lpf']: sc[12] = [salu('s_add_u32', sPO, sPO, 4096)]
    if j == 3: sc[39] = [salu('s_sub_u32', sCNT, sCNT, 1)]
    cq, aq = [], []
    xi = ei = 0
    for s in range(5):
        kq, ke, kp = 5 * j + s, 5 * j + s - 1, 5 * j + s - 2
        if OPT['qkord']: mf = [mfma(Sb(kq, t), Kf(j % 2, t, cc), Qf(s, cc), Sb(kq, t) if cc else Mn(s)) for cc in range(4) for t in range(2)]
        else: mf = [mfma(Sb(kq, t), Kf(j % 2, t, cc), Qf(s, cc), Sb(kq, t) if cc else Mn(s)) for t in range(2) for cc in range(4)]
        mf += pv(kp, (j - 1) % 2 if s < 2 else j % 2)
        E, C, Ad = softmax_items(ke)
        for g, m in enumerate(mf):
            if s == 0 and g == 0 and j == 0:
                pass
            out.append(m)
            if g % 2 == 0 and g < 16:
                n = g // 2
                if s == 0 and g == 0:
                    out += [wait(vm=16, lg=0), bar()]
                    if j == 0: out.append(label('L_loop_mid'))
                    if OPT['bst']:
                        out += [raw('v_mov_b32 v242, s100\n    v_cndmask_b32 v243, v243, v242, s[98:99]', 'valu', rd=['s100'], wr=['v243']),
                                raw('s_memtime s[100:101]' if OPT['bst'] == 1 else 's_memrealtime s[100:101]'), raw('s_lshl_b64 s[98:99], s[98:99], 1')]
                out += sc.get(ei, [])
                out.append(E[n]); ei += 1
                if Ad: aq.append(Ad[n])
                if n % 2 == 1: cq.append(C[n // 2])
            else:
                nv = 2
                if xi in mem: out.append(mem[xi]); nv = 1
                xi += 1
                for _ in range(nv):
                    if cq: out.append(cq.pop(0))
                    elif aq: out.append(aq.pop(0))
    assert xi == 42 and ei == 40 and not cq and not aq, (xi, ei, len(cq), len(aq))
    xl = OPT['xl']
    if 'G' in xl: out = [x for x in out if x.kind != 'dma']
    if 'B' in xl: out = [x for x in out if x.kind != 'bar']
    if 'R' in xl: out = [x for x in out if x.kind != 'dsr']
    if 'E' in xl: out = [x for x in out if x.kind != 'trans']
    if 'V' in xl: out = [x for x in out if x.kind != 'valu']
    if 'W' in xl: out = [x for x in out if x.kind != 'wait']
    if 'w' in xl: out = [wait(lg=0) if (x.kind == 'wait' and x.arg[0] == 16) else x for x in out]
    if 'H' in xl:
        n = 0; o2 = []
        for x in out:
            if x.kind == 'dma':
                n += 1
                if n % 2 == 0: continue
            o2.append(x)
        out = [wait(vm=8, lg=0) if (x.kind == 'wait' and x.arg[0] == 16) else x for x in o2]
    return out

def switch_wo():
    c = []
    A = c.append
    A(salu('s_cmp_lg_u32', sLAST, 0)); A(br('s_cbranch_scc1', 'L_epi'))
    A(salu('s_mov_b32', sLAST, 1))
    A(salu('s_mov_b32', sCNT, 0))
    A(salu('s_mov_b32', SA, SWO)); A(salu('s_mov_b32', off(SA, 1), off(SWO, 1))); A(salu('s_mov_b32', off(SA, 2), 262144))
    A(salu('s_add_u32', SB, SWO, 32768)); A(salu('s_addc_u32', off(SB, 1), off(SWO, 1), 0)); A(salu('s_mov_b32', off(SB, 2), 262144 - 32768))
    A(salu('s_mov_b32', sSTEP, 65536))
    A(salu('s_mov_b32', sOFF, -65536 & 0xffffffff))
    A(salu('s_mov_b32', sNR, 0))
    for k in range(4): A(valu('v_accvgpr_read_b32', vD[k], ar(aDwo + k)))
    if OPT['pf']:
        A(salu('s_lshl_b32', sT1, sB, 15))
        A(salu('s_lshl_b32', sT2, sW, 13))
        A(salu('s_add_u32', sT1, sT1, sT2))
        A(valu('v_lshlrev_b32', t0, 3, vL16))
        for i in range(OPT['pf']): A(vld(off(t1, i), 1, t0, SWO, sT1, 64 * i, OPT['opol']))
    A(br('s_branch', 'L_loop'))
    return c

def epilogue():
    c = [label('L_epi')]
    A = c.append
    if OPT['bst']:
        A(wait(lg=0)); A(raw('v_mov_b32 v242, s100\n    v_cndmask_b32 v243, v243, v242, s[98:99]', 'valu', rd=['s100'], wr=['v243']))
        A(raw('s_memtime s[100:101]' if OPT['bst'] == 1 else 's_memrealtime s[100:101]')); A(raw('s_lshl_b64 s[98:99], s[98:99], 1')); A(wait(lg=0)); A(nop(3))
        A(raw('v_mov_b32 v242, s100\n    v_cndmask_b32 v243, v243, v242, s[98:99]', 'valu', rd=['s100'], wr=['v243'])); A(nop(1))
        A(valu('v_accvgpr_write_b32', 'a248', 'v243'))
    c += stamp('ae')
    A(wait(vm=0))
    A(valu('v_add_u32', t0, UP, vSH))
    A(valu('v_add_u32', t2, 8 * SL, vSH))
    def xw(rt, jd):
        if rt < 4: return dsw('ds_write_b128', t0, Oacc(rt, 4 + jd), rt * SL + jd * 1024, tag='Ow')
        return dsw('ds_write_b128', t2, Oacc(rt, 4 + jd), jd * 1024, tag='Ow')
    E, C, Ad = softmax_items(19)
    order = [4, 5, 6, 7, 0, 1, 2, 3]
    mf = pv(18, 1, order)
    for g, m in enumerate(mf):
        A(m)
        if g < 8: A(E[g])
        if g >= 2 and g % 2 == 0: A(C[g // 2 - 1])
    ws = [xw(rt, jd) for rt in range(4) for jd in range(4)]
    A(ws.pop(0)); A(ws.pop(0))
    for g, m in enumerate(pv(19, 1, order)):
        A(m); A(ws.pop(0)); A(Ad[g])
    for x in ws: A(x)
    LS = 184
    for rt in RS: A(valu('v_accvgpr_read_b32', vr(LS + rt), RS[rt]))
    for jd in range(4): A(xw(4, jd))
    for op in ('v_permlane16_swap_b32', 'v_permlane32_swap_b32'):
        for rt, s in vSUM.items(): A(valu('v_mov_b32', vr(LS + rt), s))
        A(nop(0))
        for rt, s in vSUM.items(): A(perm(op, s, vr(LS + rt)))
        for rt, s in vSUM.items(): A(valu('v_add_f32', s if op.startswith('v_permlane16') else vr(LS + rt), s, vr(LS + rt)))
    A(salu('s_lshl_b32', sT1, sW, 11))
    A(salu('s_add_u32', sT1, sT1, LX))
    A(salu('s_xor_b32', sT2, sT1, 2048))
    A(valu('v_add_u32', t0, sT1, vL16))
    A(valu('v_add_u32', t2, sT2, vL16))
    A(dsw('ds_write_b128', t0, vr(LS), 0)); A(dsw('ds_write_b32', t0, vr(LS + 4), 1024))
    A(valu('v_add_u32', t0, UP, vSHP))
    A(valu('v_add_u32', t1, 8 * SL, vSHP))
    A(wait(lg=0)); A(bar())
    c += stamp()
    LP = 192
    A(dsr('ds_read_b128', vr(LP), t2, 0, tag='l')); A(dsr('ds_read_b32', vr(LP + 4), t2, 1024, tag='l'))
    def TH(rt, jd): return vr(104 + (rt * 4 + jd) * 4)
    for rt in range(5):
        for jd in range(4):
            if rt < 4: A(dsr('ds_read_b128', TH(rt, jd), t0, rt * SL + jd * 1024, tag=f'Or{rt}'))
            else: A(dsr('ds_read_b128', TH(rt, jd), t1, jd * 1024, tag=f'Or{rt}'))
        if rt == 2:
            A(need(lg='l'))
            for r in range(5): A(valu('v_add_f32', vr(LS + r), vr(LS + r), vr(LP + r)))
            for r in range(5): A(valu('v_rcp_f32', vr(200 + 2 * r), vr(LS + r)))
            A(salu('s_mov_b32', sT1, f32(2.0 ** 24)))
            A(raw('s_mov_b64 s[46:47], 0', wr=['s46', 's47']))
            for r in range(5):
                A(vcmp('v_cmp_nge_f32', 'vcc', sT1, vr(LS + r)))
                A(nop(0))
                A(raw('s_or_b64 s[46:47], s[46:47], vcc', rd=['vcc', 's46', 's47'], wr=['s46', 's47']))
            A(salu('s_or_b32', sT2, sT2, sT3))
            A(salu('s_lshl_b32', sT1, sW, 2))
            A(salu('s_add_u32', sT1, sT1, LX + 8192))
            A(valu('v_mov_b32', vr(LP), sT1))
            A(valu('v_mov_b32', vr(LP + 1), sT2))
            A(dsw('ds_write_b32', vr(LP), vr(LP + 1), 0))
    for rt in range(5):
        A(need(lg=f'Or{rt}'))
        for jd in range(4):
            for h in range(2):
                A(valu('v_pk_add_f32', off(Oacc(rt, jd), 2 * h), off(Oacc(rt, jd), 2 * h), off(TH(rt, jd), 2 * h), w=2))
        for jd in range(4):
            for h in range(2):
                A(valu('v_pk_mul_f32', off(Oacc(rt, jd), 2 * h), off(Oacc(rt, jd), 2 * h), vr(200 + 2 * rt), w=2, mods='op_sel_hi:[1,0]'))
        for jd in range(4):
            for h in range(2):
                A(valu('v_cvt_pk_bf16_f32', vr(STG + rt * 8 + jd * 2 + h), off(Oacc(rt, jd), 2 * h), off(Oacc(rt, jd), 2 * h + 1)))
        for u in range(2):
            j = rt * 2 + u
            A(dsw('ds_write_b128', t0, vr(STG + j * 4), (j // 4) * SL + (j % 4) * 1024))
    A(valu('v_add_u32', t0, UP, vL16))
    A(valu('v_mov_b32', t1, LX + 8192))
    A(wait(lg=0)); A(bar())
    c += stamp('ae')
    return c

def Of(u, rt):
    f = u * 5 + rt
    return ar(4 * f) if f < 20 else ar(160 + 4 * (f - 20))

def ophase():
    c = []
    A = c.append
    def o_read(u, rt):
        wp, ul = u // 2, u % 2
        j = rt * 2 + ul
        return dsr('ds_read_b128', Of(u, rt), t0, (1 - wp % 2) * 8448 + (wp // 2) * 4224 + (j // 4) * SL + (j % 4) * 1024, tag=f'G{u}')
    def wo_dma(ch):
        q = [setm0(sLDS, (ch % 4) * SL), salu('s_mov_b32', sSO, (ch % 8) * 32768 + (ch // 8) * 128)]
        q += [dma(vD[k], SWO, sSO, PC * k, OPT['opol'], tag=f'W{ch}') for k in range(4)]
        return q
    def acc(half, nt, rt): return vr((24 if half == 0 else 104) + (rt * 4 + nt) * 4)
    A(dsr('ds_read_b128', vr(252), t1, 0, tag='vote'))
    c += w_reads(0, 'T0')
    for rt in range(5): A(o_read(0, rt))
    A(need(lg='vote'))
    A(valu('v_or3_b32', vr(252), vr(252), vr(253), vr(254)))
    A(valu('v_or_b32', vr(252), vr(252), vr(255)))
    A(salu('s_mul_i32', sT2, sW, 20480))
    A(rfl(sT1, vr(252)))
    A(valu('v_add_u32', t1, sT2, vL16))
    A(salu('s_andn2_b32', sT1, sT1, sPASS))
    if OPT['xl'] or OPT['xq']: A(salu('s_cmp_eq_u32', 0, 1))
    A(br('s_cbranch_scc1', 'L_fallback'))
    for rt in range(5): A(o_read(1, rt))
    sBLK = [0, 's48', 's49', 's50', 's51']
    for i in range(1, 5): A(salu('s_mov_b32', sBLK[i], i * 4096))
    mf, memq, valq, pre = [], [], [], {}
    orr = [(u, rt) for u in range(2, 8) for rt in range(5)]
    def fin(half, rt, ntp, g):
        d = STG + (rt * 2 + ntp) * 4
        v = []
        for q in range(2):
            a = acc(half, 2 * ntp + q, rt)
            for h in range(2): v.append(valu('v_cvt_pk_bf16_f32', vr(d + 2 * q + h), off(a, 2 * h), off(a, 2 * h + 1)))
        blk = (half * 2 + ntp) * 5 + rt
        st = [vst(vr(d), 4, t1, SWS, sBLK[blk // 4], (blk % 4) * 1024, OPT['stpol'], tag='st')]
        return v, st
    f0 = [fin(0, rt, ntp, 0) for rt in range(5) for ntp in range(2)]
    for ch in range(16):
        g0 = ch * 20; half, u = ch // 8, ch % 8
        pre[g0] = [need(lg=f'T{ch}')] if ch else [need(lg='G0')]
        for rt in range(5):
            for nt in range(4):
                mf.append(mfma(acc(half, nt, rt), Wf(ch % 2, nt), Of(u, rt), acc(half, nt, rt) if u else 0))
        if ch + 1 < 16:
            if ch + 1 >= 4: memq.append((g0, need(vm=f'W{ch+1}')))
            memq += [(g0, x) for x in w_reads(ch + 1, f'T{ch+1}')]
        if ch + 4 < 16: memq += [(g0, x) for x in wo_dma(ch + 4)]
        for _ in range(10):
            if orr: memq.append((g0, o_read(*orr.pop(0))))
        if ch in (11, 12):
            for v, st in f0[(ch - 11) * 5:(ch - 10) * 5]: memq += [(g0, x) for x in st]
    for v, st in f0: valq += [(8 * 20 + 4, x) for x in v]
    valq += [(13 * 20, x) for x in reduce_setup()]
    f1 = [fin(1, rt, ntp, 0) for rt in range(5) for ntp in range(2)]
    for n, (v, st) in enumerate(f1[:6]):
        valq += [(15 * 20 + 4 * (n // 2) + 8, x) for x in v + st]
    body, mleft, vleft = weave(mf, memq, valq, pre, flush=False, period=20)
    assert not mleft
    pos = {id(x): i for i, x in enumerate(body)}
    for v, st in f0: assert pos[id(st[-1])] > max(pos[id(x)] for x in v)
    c += body + [x for _, x in vleft]
    for v, st in f1[6:]: c += v + st
    c += stamp('ae')
    c += reduce_tail()
    return c

SG, SO, SD = SA, SB, SX
A1, A2 = 'v24', 'v28'
vLD, vST, vTD = 'v32', 'v33', 'v34'
def reduce_setup():
    c = []
    A = c.append
    N, G = 'v35', 'v36'
    A(valu('v_bfe_u32', N, vL16, 4, 4))
    A(valu('v_lshrrev_b32', G, 8, vL16))
    A(salu('s_lshl_b32', sT1, sBR, 3)); A(salu('s_add_u32', sT1, sT1, sB))
    A(salu('s_mul_i32', sT2, sT1, 16 * 81920))
    A(salu('s_add_u32', SG, 's78', sT2)); A(salu('s_addc_u32', off(SG, 1), 's79', 0)); A(salu('s_and_b32', off(SG, 1), off(SG, 1), 0xffff))
    A(salu('s_mov_b32', off(SG, 2), 16 * 81920))
    A(salu('s_mul_i32', sCNT, sT1, OPT['cstr'])); A(salu('s_add_u32', sCNT, sCNT, OPT['cbase']))
    A(salu('s_mov_b32', SD, 's76')); A(salu('s_and_b32', off(SD, 1), 's77', 0xffff)); A(salu('s_mov_b32', off(SD, 2), 256))
    A(salu('s_mul_i32', sT1, sB, 163840)); A(salu('s_lshl_b32', sT2, sBR, 10)); A(salu('s_add_u32', sT1, sT1, sT2))
    if OPT['sout']:
        A(salu('s_add_u32', SO, sT1, 70 << 20)); A(salu('s_add_u32', SO, 's78', SO)); A(salu('s_addc_u32', off(SO, 1), 's79', 0)); A(salu('s_and_b32', off(SO, 1), off(SO, 1), 0xffff))
    else:
        A(salu('s_add_u32', SO, 's68', sT1)); A(salu('s_addc_u32', off(SO, 1), 's69', 0)); A(salu('s_and_b32', off(SO, 1), off(SO, 1), 0xffff))
    A(salu('s_sub_u32', off(SO, 2), 8 * 163840, sT1))
    A(salu('s_lshl_b32', sOFF, sHKV, 1)); A(salu('s_add_u32', sOFF, sOFF, sHP))
    A(salu('s_mov_b32', sLAST, 0))
    A(valu('v_mul_u32_u24', vLD, 81920, G))
    A(valu('v_lshl_add_u32', vLD, N, 4, vLD))
    A(salu('s_lshl_b32', sT1, sW, 8))
    A(valu('v_add_u32', vLD, sT1, vLD))
    A(valu('v_and_b32', vST, 1, G))
    A(valu('v_lshlrev_b32', vST, 5, vST))
    A(valu('v_lshl_add_u32', vST, N, 11, vST))
    A(valu('v_lshrrev_b32', G, 1, G))
    A(valu('v_lshl_add_u32', vST, G, 15, vST))
    A(salu('s_lshl_b32', sT1, sW, 3))
    A(valu('v_add_u32', vST, sT1, vST))
    A(valu('v_mov_b32', vTD, LX + 8192 + 64))
    A(valu('v_and_b32', G, 1, N))
    A(valu('v_lshlrev_b32', G, 4, G))
    A(valu('v_mov_b32', 'v37', 0x3f80))
    A(valu('v_lshlrev_b32', G, G, 'v37'))
    A(valu('v_lshrrev_b32', N, 1, N))
    for d in range(8): A(vcmp('v_cmp_eq_u32', f's{52+2*d}', d, N))
    for d in range(8): A(valu('v_cndmask_b32', off(A1, d), 0, G, (f's[{52+2*d}:{53+2*d}]', [f's{52+2*d}', f's{53+2*d}'])))
    return c

def reduce_tail():
    c = []
    A = c.append
    V = 'v38'; Z = 'v39'
    def cnt_is(n):
        A(wait(vm=0)); A(rfl(sT2, V)); A(nop(0)); A(salu('s_and_b32', sT3, sT2, 0xff)); A(salu('s_cmp_eq_u32', sT3, n))
    def atom(op): return I(f'{op} {V}, {Z}, {rng(SD,4)}, {sCNT} offen sc0 sc1', 'vld', rd=[V, Z, sCNT] + regs(SD, 4), wr=[V])
    A(valu('v_mov_b32', V, 1)); A(valu('v_mov_b32', Z, 0))
    A(salu('s_lshl_b32', sT1, 1, sOFF))
    A(salu('s_cmp_lg_u32', sW, 0))
    A(wait(vm=0)); A(bar())
    c += stamp('e')
    A(br('s_cbranch_scc1', 'L_rwait'))
    A(raw('s_mov_b64 exec, 1', wr=['exec']))
    A(atom('buffer_atomic_add'))
    A(salu('s_mov_b32', sSTEP, OPT['limit']))
    cnt_is(15)
    A(br('s_cbranch_scc0', 'L_poll'))
    A(salu('s_lshr_b32', sT2, sT2, 16)); A(salu('s_or_b32', sT1, sT1, sT2))
    A(br('s_branch', 'L_go'))
    A(label('L_poll'))
    if OPT['slp']: A(raw(f"s_sleep {OPT['slp']}"))
    A(vld(V, 1, Z, SD, sCNT, 0, 'sc1'))
    cnt_is(16)
    A(br('s_cbranch_scc1', 'L_go'))
    A(salu('s_sub_u32', sSTEP, sSTEP, 1))
    A(br('s_cbranch_scc0', 'L_poll'))
    A(salu('s_lshl_b32', sT2, sT1, 16))
    A(valu('v_mov_b32', V, sT2))
    A(atom('buffer_atomic_or'))
    cnt_is(16)
    A(br('s_cbranch_scc1', 'L_go'))
    A(salu('s_mov_b32', sT1, 0))
    A(label('L_go'))
    A(valu('v_mov_b32', V, sT1))
    A(dsw('ds_write_b32', vTD, V, 0))
    A(raw('s_mov_b64 exec, -1', wr=['exec']))
    A(wait(lg=0))
    A(label('L_rwait'))
    A(bar())
    c += stamp('e')
    A(dsr('ds_read_b32', V, vTD, 0))
    A(label('L_red'))
    A(salu('s_mul_i32', sT1, sOFF, 5120))
    so = ['s48', 's49', 's50', 's51']
    def D(rt, i): return vr(104 + (rt * 4 + i) * 4)
    body = []
    for i in range(4): A(salu('s_add_u32', so[i], sT1, i * 4 * 81920))
    for rt in range(4):
        for i in range(4): body.append(vld(D(rt, i), 4, vLD, SG, so[i], rt * 1024, OPT['ldpol'], tag=f'r{rt}{i}'))
    for i in range(4): body.append(salu('s_add_u32', so[i], so[i], 4096))
    for i in range(4): body.append(vld(D(4, i), 4, vLD, SG, so[i], 0, OPT['ldpol'], tag=f'r4{i}'))
    body += [wait(lg=0), rfl(sT2, V), salu('s_lshl_b32', sT3, 1, sOFF), salu('s_lshl_b32', sT1, sOFF, 6),
             salu('s_and_b32', sNR, sT2, sT3), br('s_cbranch_scc0', 'L_fin'),
             salu('s_or_b32', sLAST, sLAST, sT3), salu('s_andn2_b32', sNR, sT2, sLAST),
             salu('s_add_u32', sT2, sT1, 65536), salu('s_add_u32', sT3, sT1, 131072)]
    def acc(p): return vr(40 + 4 * p)
    for rt in range(5):
        for i in range(4):
            body.append(need(vm=f'r{rt}{i}'))
            body.append(mfma(acc(rt // 2), A2 if rt % 2 else A1, D(rt, i), acc(rt // 2) if (rt % 2 or i) else 0))
    def fin(p):
        return [valu('v_cvt_pk_bf16_f32', vr(52 + 2 * p + h), off(acc(p), 2 * h), off(acc(p), 2 * h + 1)) for h in range(2)]
    body += fin(0) + fin(1) + [vst(vr(52), 2, vST, SO, sT1, 0), vst(vr(54), 2, vST, SO, sT2, 0), nop(1)] + fin(2)
    body += [raw('s_mov_b64 exec, 0xffffffff', wr=['exec']), vst(vr(56), 2, vST, SO, sT3, 0), raw('s_mov_b64 exec, -1', wr=['exec'])]
    c += body
    A(raw(f's_ff1_i32_b32 {sOFF}, {sNR}', rd=[sNR], wr=[sOFF]))
    A(salu('s_cmp_lg_u32', sNR, 0))
    A(br('s_cbranch_scc1', 'L_red'))
    A(label('L_fin'))
    return c

def fallback():
    c = [label('L_fallback')]
    A = c.append
    A(wait(vm=0, lg=0)); A(bar())
    A(salu('s_mov_b32', sPASS, -1))
    c += kv_mode()
    for k in range(4): A(valu('v_accvgpr_read_b32', vD[k], ar(aDkv + k)))
    for rt in range(5): A(valu('v_mov_b32', Mn(rt), 0xff800000))
    A(salu('s_and_b32', sT1, sW, 1))
    A(salu('s_mul_i32', sT1, sT1, 8448))
    A(valu('v_subrev_u32', t2, sT1, vK))
    A(salu('s_mov_b32', sSO, 0))
    A(setm0(sLDS, 0))
    A(label('L_fb_loop'))
    A(nop(0))
    for k in range(4): A(dma(vD[k], SA, sSO, PC * k))
    A(wait(vm=0)); A(bar())
    for hf in range(2):
        for t in range(2):
            for cc in range(4): A(dsr('ds_read_b128', Kf(hf, t, cc), t2, hf * 8448 + t * 512 + cc * 64))
    A(wait(lg=0)); A(bar())
    for rt in range(5):
        for hf in range(2):
            for t in range(2):
                for cc in range(4): A(mfma(Sb(hf, t), Kf(hf, t, cc), Qf(rt, cc), Sb(hf, t) if cc else 0))
        A(nop(7))
        for n in range(0, 16, 2): A(valu('v_max3_f32', Mn(rt), Mn(rt), off(Sb(0, 0), n), off(Sb(0, 0), n + 1)))
    A(salu('s_add_u32', sSO, sSO, 16384))
    A(salu('s_cmp_lt_u32', sSO, 524288))
    A(br('s_cbranch_scc1', 'L_fb_loop'))
    c += max_finish()
    for i in range(4):
        c += kv_tile_dma('K', i, 'x') + kv_tile_dma('V', i, 'x')
    for i in range(80): A(valu('v_mov_b32', vr(24 + i), 0))
    for s in vSUM.values(): A(valu('v_mov_b32', s, 0))
    for i in range(80): A(valu('v_accvgpr_write_b32', ar(i), 0))
    for i in range(8): A(valu('v_accvgpr_write_b32', ar(224 + i), 0))
    A(valu('v_mov_b32', t0, 0x3f803f80))
    for i in range(4): A(valu('v_accvgpr_write_b32', off(ONES, i), t0))
    c += state_init()
    A(wait(vm=0)); A(bar())
    c += kv_frag_reads(0, 'K') + kv_frag_reads(0, 'V')
    A(wait(lg=0)); A(bar())
    A(br('s_branch', 'L_loop_in'))
    return c

def stamps_out():
    if OPT['bst']:
        c = []
        A = c.append
        A(salu('s_add_u32', 's4', 's78', 66 << 20)); A(salu('s_addc_u32', 's5', 's79', 0)); A(salu('s_and_b32', 's5', 's5', 0xffff))
        A(salu('s_mov_b32', 's6', 1 << 20)); A(salu('s_mov_b32', 's7', 0x20000))
        A(salu('s_lshl_b32', sT1, 's2', 10))
        A(valu('v_lshlrev_b32', t0, 2, 'v0'))
        A(valu('v_accvgpr_read_b32', t2, 'a248'))
        A(vst(t2, 1, t0, 's4', sT1, 0))
        return c
    if not OPT['stamps']: return []
    c = []
    A = c.append
    n = stamp_n[0]
    A(wait(vm=0))
    c += stamp('abe')
    n = stamp_n[0]
    if OPT['dbg']:
        A(salu('s_mov_b32', 's4', 's76')); A(salu('s_and_b32', 's5', 's77', 0xffff)); A(salu('s_mov_b32', 's6', 256)); A(salu('s_mov_b32', 's7', 0x20000))
        A(salu('s_lshl_b32', sT1, 's2', 2)); A(salu('s_add_u32', sT1, sT1, sW))
        A(salu('s_cmp_lg_u32', sT1, OPT['dbg'])); A(br('s_cbranch_scc1', 'L_end'))
        A(valu('v_mov_b32', t0, 0))
        for i in range(1, n):
            A(salu('s_sub_u32', sT1, f's{82+2*i}', 's82'))
            A(valu('v_mov_b32', t1, sT1))
            A(vst(t1, 1, t0, 's4', 0, 4 * i))
            A(wait(vm=0))
        return c
    if OPT['sout']:
        A(salu('s_mov_b32', 's4', 's68')); A(salu('s_and_b32', 's5', 's69', 0xffff))
        A(raw('s_getreg_b32 s100, hwreg(HW_REG_XCC_ID)')); A(raw('s_getreg_b32 s101, hwreg(HW_REG_HW_ID)'))
    else:
        A(salu('s_add_u32', 's4', 's78', 64 << 20)); A(salu('s_addc_u32', 's5', 's79', 0)); A(salu('s_and_b32', 's5', 's5', 0xffff))
    A(salu('s_mov_b32', 's6', 1 << 20)); A(salu('s_mov_b32', 's7', 0x20000))
    A(salu('s_lshl_b32', sT1, 's2', 2)); A(salu('s_add_u32', sT1, sT1, sW)); A(salu('s_lshl_b32', sT1, sT1, 6))
    if OPT['sout']:
        A(valu('v_mov_b32', t0, 0))
        A(valu('v_mov_b32', t1, 's100')); A(vst(t1, 1, t0, 's4', sT1, 56)); A(wait(vm=0))
        A(valu('v_mov_b32', t1, 's101')); A(vst(t1, 1, t0, 's4', sT1, 60)); A(wait(vm=0))
    A(valu('v_mov_b32', t0, 0))
    for i in range(16 if OPT['stamps'] == 3 else n):
        A(valu('v_mov_b32', t1, f's{82+i}' if OPT['stamps'] == 3 else f's{82+2*i}'))
        A(vst(t1, 1, t0, 's4', sT1, 4 * i))
        A(wait(vm=0))
    return c

def kernel1():
    st0 = stamp('abcde')
    pre, R = setup()
    pre = pre[:2] + st0 + pre[2:]
    part1 = resolve(pre + qphase(R) + prologue())
    blocks = [block(j) for j in range(4)]
    first = [x for x in blocks[0] if x.kind == 'mfma'][0]
    entry = [label('L_loop_in'), first, br('s_branch', 'L_loop_mid')]
    loop = [label('L_loop')] + sum(blocks, []) + [br('s_cbranch_scc0', 'L_loop')]
    sw = switch_wo()
    part3 = resolve(epilogue() + ophase()) + stamps_out() + [label('L_end'), raw('s_endpgm')]
    fb = fallback()
    mid = [i for i, x in enumerate(loop) if x.kind == 'label' and x.arg == 'L_loop_mid'][0]
    tr = part1 + entry + loop[mid:] + loop + sw + loop + sw[:2] + part3
    errs = check(tr, 'k1')
    vb = [i for i, x in enumerate(part3) if x.kind == 'br' and x.arg == 'L_fallback'][0]
    errs += check(part3[:vb + 1] + fb + entry + loop[mid:] + loop, 'fb')
    assert part1[-1].kind == 'br'
    code = part1[:-1] + entry + [raw('.p2align 6', 'cmt')] + loop + sw + part3 + fb
    return code, errs

def kernel2():
    c = []
    A = c.append
    A(salu('s_cmp_ge_u32', 's2', 320)); A(br('s_cbranch_scc1', 'L2_end'))
    if OPT['stamps']: A(raw('s_memrealtime s[30:31]'))
    A(raw('s_load_dwordx2 s[4:5], s[0:1], 96', wr=['s4', 's5']))
    if OPT['stamps']: A(raw('s_load_dwordx2 s[40:41], s[0:1], 96'))
    A(raw('s_load_dwordx2 s[8:9], s[0:1], 80', wr=['s8', 's9']))
    A(salu('s_mul_hi_u32', 's12', 's2', 0xcccccccd)); A(salu('s_lshr_b32', 's12', 's12', 4))
    A(salu('s_mul_i32', 's13', 's12', 20)); A(salu('s_sub_u32', 's13', 's2', 's13'))
    A(valu('v_lshrrev_b32', 'v1', 6, 'v0'))
    A(valu('v_lshlrev_b32', 'v2', 4, 'v0'))
    A(rfl('s14', 'v1'))
    A(salu('s_lshl_b32', 's15', 's13', 12))
    A(valu('v_add_u32', 'v2', 's15', 'v2'))
    A(salu('s_mul_i32', 's16', 's12', 16 * 81920))
    A(wait(lg=0))
    A(salu('s_add_u32', 's4', 's4', 's16')); A(salu('s_addc_u32', 's5', 's5', 0)); A(salu('s_and_b32', 's5', 's5', 0xffff))
    A(salu('s_mov_b32', 's6', 16 * 81920)); A(salu('s_mov_b32', 's7', 0x20000))
    for p in range(16):
        A(salu('s_mov_b32', 's17', p * 81920))
        A(vld(vr(16 + 4 * p), 4, 'v2', 's4', 's17', 0, OPT['ldpol'], tag=f'p{p}'))
    A(salu('s_and_b32', 's9', 's9', 0xffff)); A(salu('s_mov_b32', 's10', 8 * 80 * 1024 * 2)); A(salu('s_mov_b32', 's11', 0x20000))
    A(salu('s_lshl_b32', 's15', 's13', 2)); A(salu('s_add_u32', 's15', 's15', 's14'))
    A(salu('s_and_b32', 's18', 's15', 1))
    A(salu('s_lshr_b32', 's15', 's15', 1))
    A(salu('s_mul_i32', 's19', 's15', 205)); A(salu('s_lshr_b32', 's19', 's19', 10))
    A(salu('s_mul_i32', 's20', 's19', 5)); A(salu('s_sub_u32', 's20', 's15', 's20'))
    A(salu('s_and_b32', 's21', 's12', 7))
    A(salu('s_lshr_b32', 's22', 's12', 3))
    A(salu('s_mul_i32', 's21', 's21', 5)); A(salu('s_add_u32', 's21', 's21', 's20')); A(salu('s_lshl_b32', 's21', 's21', 15))
    A(salu('s_lshl_b32', 's22', 's22', 10)); A(salu('s_add_u32', 's21', 's21', 's22'))
    A(salu('s_lshl_b32', 's19', 's19', 7)); A(salu('s_add_u32', 's21', 's21', 's19'))
    A(salu('s_lshl_b32', 's18', 's18', 6)); A(salu('s_add_u32', 's21', 's21', 's18'))
    A(valu('v_and_b32', 'v3', 15, 'v0')); A(valu('v_lshlrev_b32', 'v3', 11, 'v3'))
    A(valu('v_bfe_u32', 'v4', 'v0', 4, 2)); A(valu('v_lshl_add_u32', 'v3', 'v4', 3, 'v3'))
    A(salu('s_mov_b32', 's23', 0xffff0000))
    for p in range(16):
        A(need(vm=f'p{p}'))
        for i in range(4):
            src = vr(16 + 4 * p + i)
            if p == 0:
                A(valu('v_lshlrev_b32', vr(8 + 2 * i), 16, src)); A(valu('v_and_b32', vr(9 + 2 * i), 's23', src))
            else:
                A(valu('v_lshlrev_b32', vr(80 + 2 * i), 16, src)); A(valu('v_and_b32', vr(81 + 2 * i), 's23', src))
        if p:
            for i in range(4): A(valu('v_pk_add_f32', vr(8 + 2 * i), vr(8 + 2 * i), vr(80 + 2 * i), w=2))
    for i in range(4): A(valu('v_cvt_pk_bf16_f32', vr(4 + i), vr(8 + 2 * i), vr(9 + 2 * i)))
    A(vst('v4', 2, 'v3', 's8', 's21', 0)); A(vst('v6', 2, 'v3', 's8', 's21', 32))
    if OPT['stamps']:
        A(wait(vm=0)); A(raw('s_memrealtime s[32:33]')); A(wait(lg=0))
        A(salu('s_add_u32', 's40', 's40', 65 << 20)); A(salu('s_addc_u32', 's41', 's41', 0)); A(salu('s_and_b32', 's41', 's41', 0xffff))
        A(salu('s_mov_b32', 's42', 1 << 20)); A(salu('s_mov_b32', 's43', 0x20000))
        A(salu('s_lshl_b32', 's34', 's2', 2)); A(salu('s_add_u32', 's34', 's34', 's14')); A(salu('s_lshl_b32', 's34', 's34', 3))
        A(valu('v_mov_b32', 'v1', 0)); A(valu('v_mov_b32', 'v10', 's30')); A(valu('v_mov_b32', 'v11', 's32'))
        A(vst('v10', 2, 'v1', 's40', 's34', 0))
    A(label('L2_end')); A(raw('s_endpgm'))
    c = resolve(c)
    return c, check(c, 'k2')

def desc(name, vg, acc):
    return f""".p2align 6
.amdhsa_kernel {name}
  .amdhsa_next_free_vgpr {vg}
  .amdhsa_next_free_sgpr 102
  .amdhsa_accum_offset {acc}
  .amdhsa_group_segment_fixed_size 0
  .amdhsa_kernarg_size 104
  .amdhsa_user_sgpr_count 2
  .amdhsa_user_sgpr_kernarg_segment_ptr 1
  .amdhsa_system_sgpr_workgroup_id_x 1
.end_amdhsa_kernel
"""

def main():
    assert (LX // 2048) % 2 == 0 or True
    k1, e1 = kernel1()
    k2, e2 = kernel2()
    for e in e1 + e2: print('HAZARD', e)
    K1, K2 = NAME + '_kernel', 'reduce_parts_kernel'
    hdr = open('cdna_kernels/' + NAME + '.s.ref').read().split('; Override launch')[0]
    s = hdr
    s += f'; @launch grid=(256,1,1) block=(256,1,1) lds=163840\n'
    s += '.amdgcn_target "amdgcn-amd-amdhsa--gfx950"\n.text\n'
    for n, k in ((K1, k1),):
        s += f'.globl {n}\n.p2align 8\n.type {n},@function\n{n}:\n' + render(k)
    s += 'L_code_end:\n'
    s += '.section .rodata,"a"\n' + desc(K1, 512, 256)
    open(sys.argv[1], 'w').write(s)
    print('instrs', len(k1), len(k2), 'errors', len(e1) + len(e2))
main()
```

```python
import re

def regs(base, n=1):
    k, i = base[0], int(base[1:])
    return [f'{k}{i+j}' for j in range(n)]

def rng(base, n):
    k, i = base[0], int(base[1:])
    return base if n == 1 else f'{k}[{i}:{i+n-1}]'

class I:
    __slots__ = ('text', 'kind', 'rd', 'wr', 'c', 'tag', 'arg', 'cost')
    def __init__(s, text, kind, rd=(), wr=(), c=(), tag=None, arg=None, cost=None):
        s.text, s.kind, s.rd, s.wr, s.c, s.tag, s.arg = text, kind, list(rd), list(wr), list(c), tag, arg
        s.cost = cost
    def __repr__(s): return s.text

def isreg(x): return isinstance(x, str) and re.fullmatch(r'[vas]\d+|vcc|m0|exec', x) is not None

def mfma(d, a, b, c):
    cs = rng(c, 4) if isinstance(c, str) else str(c)
    cr = regs(c, 4) if isinstance(c, str) else []
    return I(f'v_mfma_f32_16x16x32_bf16 {rng(d,4)}, {rng(a,4)}, {rng(b,4)}, {cs}', 'mfma',
             rd=regs(a, 4) + regs(b, 4), wr=regs(d, 4), c=cr)

TRANS = ('v_exp_f32', 'v_rcp_f32', 'v_log_f32')
def valu(op, d, *srcs, w=1, mods=''):
    def f(x):
        if isinstance(x, tuple): return x[0]
        if isreg(x) and x[0] in 'va' and x not in ('vcc',): return rng(x, w)
        return str(x)
    rd = []
    for x in srcs:
        if isinstance(x, tuple): rd += x[1]
        elif isreg(x): rd += regs(x, w) if (x[0] in 'va' and x != 'vcc') else [x]
        elif isinstance(x, str) and x.startswith('-') and isreg(x[1:]): rd += [x[1:]]
    kind = 'trans' if op in TRANS else 'valu'
    wr = regs(d, w) if (d[0] in 'va' and d != 'vcc') else [d]
    if op in ('v_fmac_f32',): rd += wr
    return I(f'{op} {f(d)}, ' + ', '.join(f(x) for x in srcs) + (' ' + mods if mods else ''), kind, rd=rd, wr=wr)

def perm(op, a, b):
    return I(f'{op} {a}, {b}', 'perm', rd=[a, b], wr=[a, b])

def rfl(s, v):
    return I(f'v_readfirstlane_b32 {s}, {v}', 'rfl', rd=[v], wr=[s])

def vcmp(op, d, a, b):
    wr = ['vcc'] if d == 'vcc' else regs(d, 2)
    ds = 'vcc' if d == 'vcc' else rng(d, 2)
    return I(f'{op} {ds}, {a}, {b}', 'valu', rd=[x for x in (a, b) if isreg(x)], wr=wr)

def dsr(op, d, addr, off=0, tag=None):
    n = {'ds_read_b128': 4, 'ds_read_b64_tr_b16': 2, 'ds_read_b64': 2, 'ds_read_b32': 1}[op]
    assert 0 <= off < 65536, off
    return I(f'{op} {rng(d,n)}, {addr}' + (f' offset:{off}' if off else ''), 'dsr', rd=[addr], wr=regs(d, n), tag=tag)

def dsw(op, addr, d, off=0, tag=None):
    n = {'ds_write_b128': 4, 'ds_write_b64': 2, 'ds_write_b32': 1, 'ds_add_u32': 1}[op]
    assert 0 <= off < 65536, off
    return I(f'{op} {addr}, {rng(d,n)}' + (f' offset:{off}' if off else ''), 'dsw', rd=[addr] + regs(d, n), tag=tag)

def dma(voff, srd, soff, off=0, pol='', tag=None):
    assert 0 <= off < 4096
    return I(f'buffer_load_dwordx4 {voff}, {rng(srd,4)}, {soff} offen' + (f' offset:{off}' if off else '')
             + (f' {pol}' if pol else '') + ' lds', 'dma',
             rd=[voff, 'm0'] + regs(srd, 4) + ([soff] if isreg(soff) else []), tag=tag)

def vld(d, n, voff, srd, soff, off=0, pol='', tag=None):
    op = {1: 'buffer_load_dword', 2: 'buffer_load_dwordx2', 4: 'buffer_load_dwordx4'}[n]
    return I(f'{op} {rng(d,n)}, {voff}, {rng(srd,4)}, {soff} offen' + (f' offset:{off}' if off else '') + (f' {pol}' if pol else ''),
             'vld', rd=[voff] + regs(srd, 4) + ([soff] if isreg(soff) else []), wr=regs(d, n), tag=tag)

def vst(d, n, voff, srd, soff, off=0, pol='', tag=None):
    op = {1: 'buffer_store_dword', 2: 'buffer_store_dwordx2', 4: 'buffer_store_dwordx4'}[n]
    return I(f'{op} {rng(d,n)}, {voff}, {rng(srd,4)}, {soff} offen' + (f' offset:{off}' if off else '') + (f' {pol}' if pol else ''),
             'vst', rd=[voff] + regs(srd, 4) + regs(d, n) + ([soff] if isreg(soff) else []), tag=tag, arg=regs(d, n))

def salu(op, d, *srcs):
    def f(x): return hex(x) if isinstance(x, int) and (x > 64 or x < -16) else str(x)
    rd = [x for x in srcs if isreg(x)]
    if op.startswith('s_cmp') or op.startswith('s_bitcmp'):
        return I(f'{op} {f(d)}, ' + ', '.join(f(x) for x in srcs), 'salu', rd=rd + ([d] if isreg(d) else []), wr=['scc'])
    return I(f'{op} {d}, ' + ', '.join(f(x) for x in srcs), 'salu', rd=rd, wr=[d])

def raw(text, kind='salu', rd=(), wr=()): return I(text, kind, rd=rd, wr=wr)
def nop(n): return I(f's_nop {n}', 'nop', arg=n)
def bar(): return I('s_barrier', 'bar')
def wait(vm=None, lg=None):
    t = 's_waitcnt' + (f' vmcnt({vm})' if vm is not None else '') + (f' lgkmcnt({lg})' if lg is not None else '')
    return I(t, 'wait', arg=(vm, lg))
def need(vm=None, lg=None):
    return I('<need>', 'need', arg=(vm, lg))
def label(n): return I(f'{n}:', 'label', arg=n)
def br(op, n): return I(f'{op} {n}', 'br', arg=n)
def cmt(t): return I(f'; {t}', 'cmt')

VMK = ('dma', 'vld', 'vst')
LGK = ('dsr', 'dsw')

def resolve(seq):
    out = []
    vm, lg = [], []
    for x in seq:
        if x.kind == 'need':
            tv, tl = x.arg
            nv = nl = None
            if tv is not None:
                idx = [i for i, t in enumerate(vm) if t == tv]
                assert idx, f'vm tag {tv} never issued'
                nv = min(63, len(vm) - 1 - idx[-1])
            if tl is not None:
                idx = [i for i, t in enumerate(lg) if t == tl]
                assert idx, f'lgkm tag {tl} never issued'
                nl = min(15, len(lg) - 1 - idx[-1])
            out.append(wait(nv, nl))
            continue
        if x.kind in VMK: vm.append(x.tag)
        if x.kind in LGK: lg.append(x.tag)
        out.append(x)
    return out

COST = {'salu': 4, 'wait': 4, 'need': 4, 'nop': 4, 'bar': 4, 'dsr': 8, 'dsw': 8, 'dma': 8, 'vld': 8, 'vst': 8,
        'valu': 4, 'trans': 8, 'perm': 4, 'rfl': 4, 'cmt': 0, 'br': 4}
def cost(x): return x.cost if x.cost is not None else COST[x.kind]

def weave(mf, memq, valq, pre=None, flush=True, period=None):
    out = []
    memq, valq = list(memq), list(valq)
    pre = pre or {}
    for g, m in enumerate(mf):
        if period and g % period == 0: assert not memq or memq[0][0] >= g, ('memq spill', g, memq[0])
        out += pre.get(g, [])
        out.append(m)
        used = 0
        while memq and memq[0][0] <= g and used + cost(memq[0][1]) <= 12:
            if memq[0][1].kind == 'dma' and 'm0' in out[-1].wr: break
            x = memq.pop(0)[1]; used += cost(x); out.append(x)
        used = max(used, 4)
        while valq and valq[0][0] <= g and used + cost(valq[0][1]) <= 12:
            x = valq.pop(0)[1]; used += cost(x); out.append(x)
    if flush:
        out += [x for _, x in memq] + [x for _, x in valq]
        return out
    return out, memq, valq

def check(trace, name=''):
    errs = []
    t = 0
    lv, lt, lm, lc, ls, lst = {}, {}, {}, {}, {}, {}
    lm0 = -99
    vm, lg = [], []
    lscc = None
    def E(i, x, msg): errs.append(f'{name}[{i}] {x.text}: {msg}')
    for i, x in enumerate(trace):
        k = x.kind
        if k in ('cmt', 'label'): continue
        assert k != 'need'
        touched = set(x.rd) | set(x.wr) | set(x.c)
        op = x.text.split()[0]
        if op in ('s_addc_u32', 's_subb_u32'):
            want = 's_add_u32' if op == 's_addc_u32' else 's_sub_u32'
            if not (lscc and lscc.text.split()[0] == want and int(lscc.wr[0][1:]) + 1 == int(x.wr[0][1:])): E(i, x, f'carry from {lscc}')
        if op.startswith('s_cselect') and not (lscc and lscc.text.split()[0].startswith(('s_cmp', 's_bitcmp', 's_add_u32', 's_or_b32', 's_and_b32')) and 'm0' not in lscc.wr): E(i, x, f'scc from {lscc}')
        if op.startswith('s_cbranch_scc') and (lscc is None or 'm0' in lscc.wr): E(i, x, f'scc from {lscc}')
        if re.match(r's_(add|sub|addc|subb|and|or|xor|andn2|lshl|lshr|ashr|bfe|cmp|bitcmp|min|max|not|abs)', op): lscc = x
        for q, nm in ((vm, 'vm'), (lg, 'lgkm')):
            for d in q:
                if d & touched: E(i, x, f'touches pending {nm} load dst {sorted(d & touched)}')
        isv = k in ('valu', 'trans', 'perm', 'rfl')
        def dist(tab, r): return t - tab[r] - 1 if r in tab else 99
        if k == 'mfma':
            for r in x.rd + x.c:
                if dist(lv, r) < 2: E(i, x, f'VALU->MFMA {r} dist {dist(lv, r)}')
            for r in x.rd:
                if r in lm and t - lm[r][0] - 1 < 8: E(i, x, f'MFMA D->A/B {r}')
            for r in x.c:
                if r in lm and lm[r][1] != x.c[0] and t - lm[r][0] - 1 < 6: E(i, x, f'MFMA D->C overlap {r}')
            for r in x.wr:
                pass
        else:
            if isv or k in VMK or k in LGK:
                for r in touched:
                    if r in lm and t - lm[r][0] - 1 < 8: E(i, x, f'MFMA D->{k} {r} dist {t - lm[r][0] - 1}')
            if isv:
                for r in x.wr:
                    if dist(lc, r) < 3: E(i, x, f'MFMA C read -> VALU write {r}')
                    if dist(lst, r) < 2: E(i, x, f'store data WAR {r}')
                if k != 'trans':
                    for r in x.rd:
                        if dist(lt, r) < 1: E(i, x, f'trans->valu {r}')
                for r in x.rd:
                    if dist(ls, r) < 2: E(i, x, f'VALU sgpr write -> VALU read {r}')
            if k in ('dsr', 'vld'):
                for r in x.wr:
                    if dist(lst, r) < 1: E(i, x, f'store data WAR {r}')
            if k == 'perm':
                for r in x.rd:
                    if dist(lv, r) < 2: E(i, x, f'VALU->permlane {r}')
            if k == 'rfl':
                for r in x.rd:
                    if dist(lv, r) < 1: E(i, x, f'VALU->readfirstlane {r}')
            if k in VMK:
                for r in x.rd:
                    if dist(ls, r) < 5: E(i, x, f'VALU sgpr write -> VMEM {r}')
            if k == 'dma' and t - lm0 - 1 < 1: E(i, x, 'm0 write -> dma')
            if k == 'salu':
                for r in x.rd:
                    if dist(ls, r) < 1: E(i, x, f'VALU sgpr write -> SALU read {r} (pad)')
        if k == 'wait':
            nv, nl = x.arg
            if nv is not None and len(vm) > nv: vm = vm[len(vm) - nv:] if nv else []
            if nl is not None and len(lg) > nl: lg = lg[len(lg) - nl:] if nl else []
        if k in VMK:
            vm.append(set(x.wr))
            if len(vm) > 63: E(i, x, 'vmcnt overflow')
        if k in LGK: lg.append(set(x.wr))
        if k == 'mfma':
            for r in x.wr: lm[r] = (t, x.wr[0])
            for r in x.c: lc[r] = t
        elif isv:
            for r in x.wr:
                if r[0] in 'va' and r != 'vcc': lv[r] = t
                else: ls[r] = t
                lm.pop(r, None)
                lt.pop(r, None)
            if k == 'trans':
                for r in x.wr: lt[r] = t
        if k == 'vst' and len(x.arg) > 2:
            for r in x.arg: lst[r] = t
        if k == 'salu' and 'm0' in x.wr: lm0 = t
        t += (x.arg + 1) if k == 'nop' else 1
    return errs

def render(seq):
    o = []
    for x in seq:
        o.append(x.text if x.kind == 'label' else '    ' + x.text)
    return '\n'.join(o) + '\n'
```

```python
import sys, math, struct
from asmlib import *

NAME = 'concat_heads__gqa_block_cached__gqa_block_cached__near_ridge'
OPT = dict(delay=0, f0ch=10, fl0=6, MB=256, slp=0, sout=0, fuse=1, cbase=0, cstr=16, limit=2000, scr=0, lpf=1, cpf=1, rb=8, rp=8, xq='', wpol0='', wn0=2, xpol='', opol='', wpol='', bst=0, qkord=0, xl='', kvpf=0, kv0=11, kvlate=2, rot=1, sg='a', samekv=0, stamps=0, kvpol='nt', pf=0, stpol='sc1', ldpol='sc1', dbg=0)
for a in sys.argv[2:]:
    k, v = a.split('=')
    OPT[k] = int(v) if v.lstrip('-').isdigit() else v.replace('+', ' ')

SL = 16896
PC = 1056
UP = 4 * SL
LX = 9 * SL
GS = 16 * 81920 + 16 * OPT['MB']
def f32(x): return struct.unpack('<I', struct.pack('<f', x))[0]

SX, SA, SB, SWQ, SWO, SWS = 's4', 's8', 's12', 's16', 's20', 's24'
SD = SX
sKb, sVb = 's28', 's30'
sW, sB, sHKV, sHP, sBR, sCNT, sOFF, sSTEP, sLDS, sPASS, sNR, sLAST = ['s%d' % i for i in range(32, 44)]
sT0, sT1, sT2, sT3 = 's44', 's45', 's46', 's47'
sSO = 's80'
sWOFF = 's81'
sPO = 's3'
sGRP, sPART, sTODO, sFL = 's70', 's71', 's72', 's73'
sXQ = ['s48', 's49', 's50', 's51']
vL16 = 'v1'
vD = ['v2', 'v3', 'v4', 'v5']
vK, vK2, vVa, vVa2, vVb, vVb2 = 'v6', 'v7', 'v8', 'v9', 'v10', 'v11'
vT = ['v12', 'v13', 'v14', 'v15']
vSUM = {4: 'v16', 1: 'v17', 2: 'v18'}
vSH, vSHP = 'v19', 'v20'
t0, t1, t2 = 'v21', 'v22', 'v23'
def vr(n): return f'v{n}'
def ar(n): return f'a{n}'
def Oacc(rt, ld): return vr(24 + (rt * 4 + ld) * 4) if ld < 4 else ar((rt * 4 + ld - 4) * 4)
def Vf(b, ld): return vr(104 + 32 * b + 4 * ld)
def Sb(k, t): return vr(168 + 8 * (k % 4) + 4 * t)
def Pb(k): return vr(200 + 4 * (k % 2))
def Mn(rt): return vr(208 + 4 * rt)
def Qf(rt, c): return ar(80 + (rt * 4 + c) * 4)
def Kf(b, t, c): return ar(160 + 32 * b + (t * 4 + c) * 4)
RS = {3: 'a224', 0: 'a228'}
ONES = 'a232'
aDwo, aDkv = 240, 244
def off(r, n): return f'{r[0]}{int(r[1:]) + n}'
vDwo = ['v228', 'v229', 'v230', 'v231']
vW = ['v232', 'v233', 'v234', 'v235']
vXd = 'v236'; vXdr = ['v236', 'v216', 'v217', 'v218', 'v219']; vXr = ['v237', 'v238']; vXr4 = ['v239', 'v240']; vPF, vPFd = 'v241', 'v242'
def Qacc(dt, rt): return vr(104 + (rt * 4 + dt) * 4)
def Wf(b, nt): return vr(184 + 16 * b + 4 * nt)
def Xf(c, rt):
    f = c * 5 + rt
    if f < 16: return ar(160 + 4 * f)
    if f < 56: return ar(4 * (f - 16))
    if f < 64: return ar(224 + 4 * (f - 56))
    return ar(160 + 4 * (f - 64))
STG = 216

stamp_n = [0]
def stamp(grp='a'):
    if not OPT['stamps'] or OPT['sg'] not in grp: return []
    i = stamp_n[0]; stamp_n[0] += 1
    if OPT['stamps'] == 3:
        assert i < 8
        return [raw('s_memtime s[98:99]'), raw('s_memrealtime s[100:101]'), wait(lg=0), salu('s_mov_b32', f's{82+i}', 's98'), salu('s_mov_b32', f's{90+i}', 's100')]
    op = 's_memrealtime' if OPT['stamps'] == 2 else 's_memtime'
    return [raw(f'{op} s[{82+2*i}:{83+2*i}]', wr=[f's{82+2*i}', f's{83+2*i}']), wait(lg=0)]

def setm0(base, const): return salu('s_add_u32', 'm0', base, const)

def kv_tile_dma(which, tile, tag):
    sig = 2 * (tile % 4) + (which == 'V')
    srd = SA if which == 'K' else SB
    q = [setm0(sLDS, sig * SL), salu('s_mov_b32', sSO, tile * 16384)]
    q += [dma(vD[k], srd, sSO, PC * k, OPT['kvpol'], tag=tag) for k in range(4)]
    return q

def setup():
    c = []
    A = c.append
    A(salu('s_cmp_ge_u32', 's2', 256)); A(br('s_cbranch_scc1', 'L_end'))
    A(raw('s_load_dwordx16 s[48:63], s[0:1], 0', wr=regs('s48', 16)))
    A(raw('s_load_dwordx4 s[64:67], s[0:1], 64', wr=regs('s64', 4)))
    A(raw('s_load_dwordx4 s[76:79], s[0:1], 88', wr=regs('s76', 4)))
    A(raw('s_load_dwordx2 s[68:69], s[0:1], 80', wr=regs('s68', 2)))
    L, G, Q, WV, KH, HH, RP, R4, C4 = ['v%d' % i for i in range(244, 253)]
    if OPT['delay']:
        A(salu('s_and_b32', sT1, 's2', 0x1b)); A(salu('s_cmp_lg_u32', sT1, 0x0a)); A(br('s_cbranch_scc1', 'L_nodelay'))
        A(salu('s_mov_b32', sT1, OPT['delay']))
        A(label('L_delay')); A(raw('s_sleep 127')); A(salu('s_sub_u32', sT1, sT1, 1)); A(br('s_cbranch_scc0', 'L_delay'))
        A(label('L_nodelay'))
    if OPT['scr']:
        A(salu('s_lshr_b32', sT1, 's2', 5)); A(salu('s_and_b32', 's2', 's2', 31)); A(salu('s_lshl_b32', 's2', 's2', 3)); A(salu('s_or_b32', 's2', 's2', sT1))
    A(salu('s_lshr_b32', sT1, 's2', 3))
    if OPT['cpf']:
        A(raw('s_getpc_b64 s[74:75]', wr=['s74', 's75']))
        A(label('L_pc'))
        A(salu('s_lshl_b32', sT2, sT1, 10))
        A(valu('v_lshrrev_b32', t0, 5, 'v0'))
        A(raw('s_min_u32 s46, s46, L_code_end-L_pc-1024', rd=['s46'], wr=['s46']))
        A(valu('v_lshlrev_b32', t0, 7, t0))
        A(salu('s_add_u32', 's74', 's74', sT2))
        A(salu('s_addc_u32', 's75', 's75', 0))
        A(I(f'global_load_dword {vPFd}, {t0}, s[74:75]', 'vld', rd=[t0, 's74', 's75'], wr=[vPFd], tag='cpf'))
    A(valu('v_lshrrev_b32', WV, 6, 'v0'))
    A(valu('v_bfe_u32', RP, 'v0', 3, 3))
    A(rfl(sW, WV))
    A(valu('v_and_b32', C4, 7, 'v0'))
    A(valu('v_and_b32', t1, 6, RP))
    A(valu('v_xor_b32', R4, C4, t1))
    A(valu('v_and_b32', t1, 4, RP))
    A(valu('v_add_u32', t1, t1, RP))
    A(valu('v_lshlrev_b32', t1, 13, t1))
    A(valu('v_lshl_add_u32', t1, WV, 7, t1))
    A(valu('v_lshl_add_u32', vW[0], R4, 4, t1))
    for k in range(1, 4):
        A(valu('v_add_u32', vW[k], (16 * (k % 2) + 4 * (k // 2)) * 8192 - PC * k, vW[0]))
    A(salu('s_and_b32', sT0, 's2', 3))
    A(salu('s_lshl_b32', sT0, sT0, 2))
    A(salu('s_and_b32', sT2, sT1, 3))
    A(salu('s_add_u32', sT0, sT0, sT2))
    A(salu('s_lshr_b32', sB, sT1, 2))
    A(salu('s_mul_i32', sWOFF, sB, OPT['rb']))
    A(salu('s_mul_i32', sT2, sT2, OPT['rp']))
    A(salu('s_add_u32', sWOFF, sWOFF, sT2))
    A(salu('s_and_b32', sWOFF, sWOFF, 15))
    A(salu('s_and_b32', sT2, sW, 2))
    A(salu('s_add_u32', 's3', sWOFF, sT2))
    A(salu('s_lshl_b32', 's3', 's3', 6))
    A(salu('s_lshl_b32', sWOFF, sWOFF, 18))
    A(salu('s_mul_i32', sT2, sT2, 2112))
    A(salu('s_and_b32', sT1, sW, 1))
    A(salu('s_mul_i32', sT1, sT1, 8448))
    A(salu('s_add_u32', sLDS, sT1, sT2))
    A(salu('s_lshl_b32', sT1, sT0, 9))
    A(salu('s_sub_u32', off(SWQ, 2), 512 * 8192, sT1))
    A(salu('s_mov_b32', off(SWQ, 3), 0x20000))
    A(setm0(sLDS, UP))
    A(valu('v_bfe_u32', t2, 'v0', 3, 4))
    A(valu('v_lshrrev_b32', t1, 1, t2))
    A(valu('v_xor_b32', t1, t1, C4))
    A(valu('v_lshlrev_b32', t1, 4, t1))
    A(valu('v_lshl_add_u32', vXd, t2, 10, t1))
    A(salu('s_mul_i32', sT2, sB, 81920))
    A(salu('s_bitcmp0_b32', 's2', 2))
    A(wait(lg=0))
    c += stamp('b')
    A(raw('s_cselect_b64 s[16:17], s[54:55], s[64:65]'))
    A(raw('s_cselect_b64 s[4:5], s[48:49], s[58:59]'))
    A(raw('s_cselect_b64 s[70:71], s[50:51], s[60:61]'))
    A(raw('s_cselect_b64 s[72:73], s[52:53], s[62:63]'))
    A(raw('s_cselect_b64 s[20:21], s[56:57], s[66:67]'))
    A(salu('s_add_u32', SWQ, SWQ, sT1))
    A(salu('s_addc_u32', off(SWQ, 1), off(SWQ, 1), 0))
    A(salu('s_and_b32', off(SWQ, 1), off(SWQ, 1), 0xffff))
    c += w_dma(0)[2:]
    c += stamp('b')
    A(salu('s_add_u32', SX, SX, sT2))
    A(salu('s_addc_u32', off(SX, 1), off(SX, 1), 0))
    A(salu('s_and_b32', off(SX, 1), off(SX, 1), 0xffff))
    A(salu('s_mov_b32', off(SX, 2), 81920))
    A(salu('s_mov_b32', off(SX, 3), 0x20000))
    A(salu('s_lshl_b32', sT3, sW, 10))
    A(salu('s_and_b32', sXQ[0], 's3', 1023))
    xd = x_dma(0, False)
    for rt in range(5):
        A(xd[2 * rt])
        A(valu('v_add_u32', vXdr[rt + 1], (rt + 1) * 16384, vXd) if rt < 4 else nop(0))
        A(xd[2 * rt + 1])
        if rt == 0: c += stamp('b')
    c += stamp('b')
    return c, (L, G, Q, WV, KH, HH, RP, R4, C4)

def setup2(R):
    L, G, Q, WV, KH, HH, RP, R4, C4 = R
    c = []
    A = c.append
    def srd(s, ptr, offreg, nrec):
        A(salu('s_add_u32', s, ptr, offreg))
        A(salu('s_addc_u32', off(s, 1), off(ptr, 1), 0))
        A(salu('s_and_b32', off(s, 1), off(s, 1), 0xffff))
        A(salu('s_mov_b32', off(s, 2), nrec))
        A(salu('s_mov_b32', off(s, 3), 0x20000))
    for q in range(1, 4):
        A(salu('s_add_u32', sXQ[q], 's3', q * 256))
        A(salu('s_and_b32', sXQ[q], sXQ[q], 1023))
    A(salu('s_bfe_u32', sBR, 's2', 0x10002))
    A(salu('s_and_b32', sHP, sT0, 1))
    A(salu('s_lshr_b32', sHKV, sT0, 1))
    A(valu('v_and_b32', L, 63, 'v0'))
    A(valu('v_lshlrev_b32', vL16, 4, L))
    A(valu('v_and_b32', KH, 1, WV))
    A(valu('v_lshrrev_b32', HH, 1, WV))
    A(valu('v_lshlrev_b32', t1, 10, RP))
    A(valu('v_lshl_add_u32', t1, WV, 8, t1))
    A(valu('v_lshl_add_u32', vDwo[0], R4, 4, t1))
    for k in range(1, 4):
        A(valu('v_add_u32', vDwo[k], (8192 - PC) * k, vDwo[0]))
    A(valu('v_lshlrev_b32', vPF, 7, 'v0'))
    A(salu('s_lshl_b32', sT1, sB, 3))
    A(salu('s_add_u32', sT1, sT1, sHKV))
    A(salu('s_lshl_b32', sT1, sT1, 19))
    for dst, p in ((sKb, 's70'), (sVb, 's72')):
        A(salu('s_add_u32', dst, p, sT1))
        A(salu('s_addc_u32', off(dst, 1), off(p, 1), 0))
        A(salu('s_sub_u32', dst, dst, 96))
        A(salu('s_subb_u32', off(dst, 1), off(dst, 1), 0))
        A(salu('s_and_b32', off(dst, 1), off(dst, 1), 0xffff))
    ca = c; c = []; A = c.append
    c += kv_mode()
    A(salu('s_mov_b32', off(SA, 3), 0x20000))
    A(salu('s_mov_b32', off(SB, 3), 0x20000))
    A(salu('s_lshl_b32', sT1, sT0, 18))
    srd(SWO, SWO, sT1, 262144)
    A(salu('s_lshl_b32', sT1, sBR, 3))
    A(salu('s_add_u32', sGRP, sT1, sB))
    A(salu('s_mul_i32', sT1, sGRP, GS))
    srd(SWS, 's78', sT1, GS)
    A(salu('s_mov_b32', sPART, sT0))
    A(salu('s_mov_b32', sPASS, 0))
    A(valu('v_lshrrev_b32', G, 4, L))
    A(valu('v_and_b32', Q, 15, L))
    A(valu('v_bfe_u32', R4, L, 2, 2))
    A(valu('v_and_b32', C4, 3, L))
    A(valu('v_lshrrev_b32', t0, 1, Q))
    A(valu('v_xor_b32', t0, t0, G))
    A(valu('v_lshlrev_b32', t0, 4, t0))
    A(valu('v_lshl_add_u32', vXr[0], Q, 7, t0))
    A(valu('v_xor_b32', vXr[1], 64, vXr[0]))
    A(valu('v_add_u32', vXr4[0], 8 * SL, vXr[0]))
    A(valu('v_add_u32', vXr4[1], 8 * SL, vXr[1]))
    A(valu('v_mul_u32_u24', t0, 4224, HH))
    A(valu('v_mul_u32_u24', t1, 8448, KH))
    A(valu('v_add_u32', t2, t0, vL16))
    A(valu('v_add_u32', vSH, t2, t1))
    A(valu('v_sub_u32', vSHP, t2, t1))
    A(valu('v_add_u32', vSHP, 8448, vSHP))
    A(valu('v_add_u32', t2, t0, t1))
    A(valu('v_and_b32', t0, 1, G))
    A(valu('v_lshl_add_u32', t0, t0, 2, R4))
    A(valu('v_lshl_add_u32', t2, t0, 7, t2))
    A(valu('v_lshl_add_u32', t2, C4, 3, t2))
    A(valu('v_lshrrev_b32', vT[3], 1, G))
    A(valu('v_mul_u32_u24', vT[3], PC, vT[3]))
    A(valu('v_add_u32', t2, t2, vT[3]))
    A(valu('v_add_u32', t2, UP, t2))
    A(valu('v_and_b32', t0, 6, t0))
    for nt in range(4):
        A(valu('v_xor_b32', vT[nt], 2 * nt, t0))
        A(valu('v_lshl_add_u32', vT[nt], vT[nt], 4, t2))
    A(valu('v_and_b32', t0, 7, Q))
    A(valu('v_mul_u32_u24', t0, PC, t0))
    A(valu('v_lshrrev_b32', t2, 3, Q))
    A(valu('v_lshl_add_u32', t0, t2, 8, t0))
    A(valu('v_lshl_add_u32', t0, G, 4, t0))
    A(valu('v_add_u32', vK, t0, t1))
    A(valu('v_add_u32', vK2, UP, vK))
    A(valu('v_bfe_u32', t0, L, 2, 3))
    A(valu('v_mul_u32_u24', t0, PC, t0))
    A(valu('v_lshrrev_b32', t2, 1, G))
    A(valu('v_lshl_add_u32', t0, t2, 8, t0))
    A(valu('v_lshl_add_u32', t0, C4, 3, t0))
    A(valu('v_add_u32', t0, t0, t1))
    A(valu('v_lshl_add_u32', vVa, KH, 7, t0))
    A(valu('v_xor_b32', t2, 1, KH))
    A(valu('v_lshl_add_u32', vVb, t2, 7, t0))
    A(valu('v_add_u32', vVa2, UP, vVa))
    A(valu('v_add_u32', vVb2, UP, vVb))
    A(valu('v_lshl_add_u32', t0, KH, 13, vL16))
    A(valu('v_lshl_add_u32', t0, HH, 12, t0))
    for k in range(4):
        A(valu('v_add_u32', vD[k], 96 - 32 * k, t0))
    A(valu('v_lshrrev_b32', t0, 1, G))
    A(valu('v_lshl_add_u32', t0, t0, 4, Q))
    A(valu('v_lshlrev_b32', t0, 4, t0))
    A(valu('v_and_b32', t2, 1, G))
    A(valu('v_lshl_add_u32', t0, t2, 3, t0))
    A(valu('v_sub_u32', t2, vSH, vL16))
    A(valu('v_add_u32', t0, t0, t2))
    A(valu('v_add_u32', t0, 6 * SL, t0))
    A(valu('v_mul_u32_u24', t1, 4224, HH))
    A(valu('v_add_u32', t1, t1, vL16))
    A(valu('v_add_u32', t1, 6 * SL, t1))
    A(valu('v_mul_u32_u24', t2, 8448, KH))
    A(valu('v_sub_u32', t2, vK, t2))
    return ca, c

def kv_mode():
    c = []
    A = c.append
    A(salu('s_mov_b32', SA, sKb)); A(salu('s_mov_b32', off(SA, 1), off(sKb, 1)))
    A(salu('s_mov_b32', SB, sVb)); A(salu('s_mov_b32', off(SB, 1), off(sVb, 1)))
    A(salu('s_mov_b32', sNR, 0 if 'Z' in OPT['xl'] else 524288 + 96))
    A(salu('s_mov_b32', off(SA, 2), sNR)); A(salu('s_mov_b32', off(SB, 2), sNR))
    A(salu('s_mov_b32', sSTEP, 0 if OPT['samekv'] else 16384))
    A(salu('s_mov_b32', sOFF, 3 * 16384))
    A(salu('s_mov_b32', sCNT, 6))
    A(salu('s_mov_b32', sLAST, 0))
    A(salu('s_lshl_b32', sPO, sB, 5)); A(salu('s_add_u32', sPO, sPO, sW)); A(salu('s_lshl_b32', sPO, sPO, 10))
    return c

def w_dma(c):
    q = [setm0(sLDS, UP + (c % 4) * SL)]
    if c: q += [salu('s_add_u32', sWOFF, sWOFF, 262144), salu('s_and_b32', sWOFF, sWOFF, 0x3fffff)]
    else: q += [nop(0)]
    q += [dma(vW[k], SWQ, sWOFF, PC * k, OPT['wpol0'] if c < OPT['wn0'] else OPT['wpol'], tag=f'W{c}') for k in range(4)]
    return q

def x_dma(qtr, pad=True):
    q = []
    for rt in range(5):
        base = (rt * 16384 if rt < 4 else 8 * SL) + qtr * 4096
        q += [setm0(sT3, base)] + ([nop(0)] if pad else []) + [dma(vXdr[rt], SX, sXQ[qtr], 0, OPT['xpol'], tag=f'XD{qtr}')]
    return q

def w_reads(c, tag):
    q = []
    for nt in range(4):
        for rd in range(2):
            x = dsr('ds_read_b64_tr_b16', off(Wf(c % 2, nt), 2 * rd), vT[nt], (c % 4) * SL + rd * 2 * PC, tag=tag)
            x.cost = 6
            q.append(x)
    return q

def x_read(c, rt):
    kp, par = c // 2, c % 2
    if rt < 4: return dsr('ds_read_b128', Xf(c, rt), vXr[par], rt * 16384 + kp * 2048, tag=f'X{c}')
    return dsr('ds_read_b128', Xf(c, rt), vXr4[par], kp * 2048, tag=f'X{c}')

def resolve_partial(prev, body):
    xq = OPT['xq']
    if not xq: return body
    out = []
    for x in body:
        if 'G' in xq and x.kind == 'dma' and x.tag[0] == 'W': x = I(x.text.replace('s[16:19]', 's[56:59]'), 'dma', tag=x.tag) if 'Z' in xq else I('s_nop 0', 'dma', tag=x.tag)
        if 'K' in xq and x.kind == 'dma' and x.tag[0] in 'KV': x = I('s_nop 0', 'dma', tag=x.tag)
        if 'T' in xq and x.kind == 'dsr' and x.tag[0] == 'T': x = I('s_nop 0', 'dsr', tag=x.tag)
        if 'X' in xq and x.kind == 'dsr' and x.tag[0] == 'X': x = I('s_nop 0', 'dsr', tag=x.tag)
        if 'V' in xq and x.kind == 'valu' and ('v_mov_b32' in x.text or ', 0' in x.text): continue
        out.append(x)
    return out

def qphase(R):
    c = []
    A = c.append
    w1 = w_dma(1)
    c += w1[:-1]
    s2a, s2b = setup2(R)
    c += s2a + s2b
    c += stamp('b')
    c += w1[-1:] + x_dma(1)
    c += stamp('ab')
    A(need(vm='XD0'))
    c += stamp('b')
    A(bar())
    c += stamp()
    c += w_reads(0, 'T0')
    for rt in range(5): A(x_read(0, rt))
    for rt in range(5): A(x_read(1, rt))
    mf, memq, valq, pre = [], [], [], {}
    xr = [(cc, rt) for cc in range(2, 16) for rt in range(5)]
    xdone = None
    kvq = [('K', 0), ('V', 0), ('K', 1), ('V', 1)]
    early = {0: w_dma(2) + w_dma(3), 1: x_dma(2, False) + w_dma(4), 2: x_dma(3, False) + w_dma(5), 3: w_dma(6) + w_dma(7)}
    xper = {0: 5, 1: 5, 2: 5, 3: 5, 4: 10, 5: 10, 6: 10, 7: 10, 8: 10}
    xlim = {0: 4, 1: 4, 2: 8, 3: 8}
    for ch in range(16):
        g0 = ch * 20
        pre[g0] = [need(lg=f'T{ch}')] if ch else [need(lg='X0')]
        if ch == 2: pre[g0] = [need(vm='XD1', lg='T2'), bar()]
        if ch == 4: pre[g0] = [need(vm='XD3', lg='T4'), bar()] + stamp('b')
        for rt in range(5):
            for dt in range(4):
                mf.append(mfma(Qacc(dt, rt), Wf(ch % 2, dt), Xf(ch, rt), Qacc(dt, rt) if ch else 0))
        if ch + 1 < 16:
            memq.append((g0, need(vm=f'W{ch+1}')))
            memq += [(g0, x) for x in w_reads(ch + 1, f'T{ch+1}')]
        if ch in early: memq += [(g0, x) for x in early[ch]]
        elif ch + 4 < 16: memq += [(g0, x) for x in w_dma(ch + 4)]
        elif ch == 12 + OPT['kvlate']: memq += [(g0, x) for x in kv_tile_dma('K', 2, 'K2')]
        elif ch == 13 + OPT['kvlate']: memq += [(g0, x) for x in kv_tile_dma('V', 2, 'V2')]
        n = 0
        while xr and n < xper.get(ch, 11):
            cc, rt = xr[0]
            if cc >= xlim.get(ch, 16): break
            if cc * 5 + rt >= 64 and (cc * 5 + rt - 64) // 5 >= ch: break
            xr.pop(0); memq.append((g0, x_read(cc, rt))); n += 1
            if not xr: xdone = ch
        if xdone is not None and ch == xdone + 1:
            pre[g0] = [wait(lg=0), bar()]
        if ch in (0, 1, 2, 3, 4, 6, 9, 12): pre[g0] += stamp('c')
        if ch in (0, 2, 4, 8, 12): pre[g0] += stamp('d')
        if xdone is not None and ch > xdone and kvq and ch >= OPT['kv0']:
            wh, tl = kvq.pop(0)
            memq += [(g0, x) for x in kv_tile_dma(wh, tl, f'{wh}{tl}')]
    print('xdone', xdone)
    assert not kvq
    for i in range(80): valq.append((0, valu('v_mov_b32', vr(24 + i), 0)))
    for s in vSUM.values(): valq.append((0, valu('v_mov_b32', s, 0)))
    for i in range(80): valq.append((8 * 20 + 4, valu('v_accvgpr_write_b32', ar(i), 0)))
    for i in range(8): valq.append((13 * 20 + 4, valu('v_accvgpr_write_b32', ar(224 + i), 0)))
    valq.append((13 * 20 + 4, valu('v_mov_b32', vPF, 0x3f803f80)))
    for i in range(4): valq.append((13 * 20 + 4, valu('v_accvgpr_write_b32', off(ONES, i), vPF)))
    for k in range(4):
        valq.append((13 * 20 + 4, valu('v_accvgpr_write_b32', ar(aDwo + k), vDwo[k])))
        valq.append((13 * 20 + 4, valu('v_accvgpr_write_b32', ar(aDkv + k), vD[k])))
    for x in [salu('s_mul_i32', sGRP, sGRP, OPT['cstr']), salu('s_add_u32', sGRP, sGRP, OPT['cbase']),
              salu('s_mov_b32', SD, 's76'), salu('s_and_b32', off(SD, 1), 's77', 0xffff),
              salu('s_add_u32', off(SD, 2), sGRP, 4), salu('s_mov_b32', sTODO, 0),
              salu('s_mul_i32', sFL, sW, 4 * OPT['MB']), salu('s_lshl_b32', sT1, sPART, 2), salu('s_add_u32', sFL, sFL, sT1),
              salu('s_add_u32', sFL, sFL, 16 * 81920)]:
        valq.append((13 * 20 + 4, x))
    body = resolve_partial(c, weave(mf, memq, valq, pre, period=20))
    c += body
    c += stamp('acde')
    A(salu('s_mov_b32', sT1, f32(math.log2(math.e) / math.sqrt(128.0))))
    A(salu('s_mov_b32', sT0, sT1))
    A(nop(5))
    for rt in range(5):
        for dt in range(4):
            a = Qacc(dt, rt)
            for h in range(2):
                A(valu('v_pk_mul_f32', off(a, 2 * h), off(a, 2 * h), ('s[44:45]', ['s44', 's45']), w=2))
        for dt in range(4):
            a = Qacc(dt, rt); d = STG + (rt * 4 + dt) * 2
            for h in range(2):
                A(valu('v_cvt_pk_bf16_f32', vr(d + h), off(a, 2 * h), off(a, 2 * h + 1)))
        for dt in range(4):
            j = rt * 2 + dt // 2
            A(dsw('ds_write_b64', t0, vr(STG + (rt * 4 + dt) * 2), (j // 4) * SL + (j % 4) * 1024 + (dt % 2) * 512, tag='Qw'))
    for nt in range(4): A(valu('v_subrev_u32', vT[nt], UP, vT[nt]))
    A(need(vm='V0', lg='Qw')); A(bar())
    return c

def kv_frag_reads(i, which):
    j = i % 4; b = i % 2
    q = []
    if which == 'K':
        a = vK if j < 2 else vK2
        for t in range(2):
            for cc in range(4):
                q.append(dsr('ds_read_b128', Kf(b, t, cc), a, (2 * (j % 2)) * SL + t * 512 + cc * 64, tag='Kr'))
    else:
        for ld in range(8):
            a = (vVa if j < 2 else vVa2) if ld < 4 else (vVb if j < 2 else vVb2)
            for rd in range(2):
                q.append(dsr('ds_read_b64_tr_b16', off(Vf(b, ld), 2 * rd), a, (2 * (j % 2) + 1) * SL + rd * 512 + (ld % 4) * 32, tag='Vr'))
    return q

def state_init():
    c = []
    for i in range(32): c.append(valu('v_mov_b32', off(Vf(1, 0), i), 0))
    for i in range(8): c.append(valu('v_mov_b32', off(Sb(-1, 0), i), f32(-1e30)))
    for i in range(4): c.append(valu('v_mov_b32', off(Pb(-2), i), 0))
    c.append(valu('v_mov_b32', 'v231', 1))
    return c

def atom(op, d, voff, srd, soff):
    return I(f'{op} {d}, {voff}, {rng(srd,4)}, {soff} offen sc0 sc1', 'vld', rd=[d, voff] + regs(srd, 4) + ([soff] if isreg(soff) else []), wr=[d])

def flag_addr(d, tmp):
    return [valu('v_lshrrev_b32', tmp, 6, vL16), valu('v_mul_u32_u24', d, OPT['MB'] // 16, vL16), valu('v_lshl_add_u32', d, tmp, 24, d)]

def max_finish():
    c = []
    A = c.append
    for op in ('v_permlane16_swap_b32', 'v_permlane32_swap_b32'):
        for rt in range(5): A(valu('v_mov_b32', off(Mn(rt), 1), Mn(rt)))
        for rt in range(5): A(perm(op, Mn(rt), off(Mn(rt), 1)))
        for rt in range(5): A(valu('v_max_f32', Mn(rt), Mn(rt), off(Mn(rt), 1)))
    for rt in range(5):
        for i in (3, 2, 1, 0): A(valu('v_mul_f32', off(Mn(rt), i), -1.0, Mn(rt)))
    return c

def prologue():
    c = []
    A = c.append
    for cc in range(4): A(dsr('ds_read_b128', Kf(1, 0, cc), t2, cc * 64, tag='Km'))
    for rt in range(5):
        for cc in range(4):
            j = rt * 2 + cc % 2
            A(dsr('ds_read_b128', Qf(rt, cc), t1, (cc // 2) * 8448 + (j // 4) * SL + (j % 4) * 1024, tag=f'Qr{rt}'))
    memq = [(0, x) for x in kv_frag_reads(0, 'K') + kv_frag_reads(0, 'V')]
    for x in memq: x[1].cost = 6
    mf, pre = [], {}
    for rt in range(5):
        pre[rt * 4] = [need(lg=f'Qr{rt}')]
        for cc in range(4): mf.append(mfma(Mn(rt), Kf(1, 0, cc), Qf(rt, cc), Mn(rt) if cc else 0))
    c += weave(mf, memq, [(0, x) for x in state_init() + flag_addr('v230', 'v229') + [valu('v_mov_b32', 'v229', 0)]], pre)
    A(need(vm='V1', lg='Vr')); A(bar())
    c += kv_tile_dma('K', 3, 'K3') + kv_tile_dma('V', 3, 'V3')
    A(atom('buffer_atomic_swap', 'v229', 'v230', SWS, sFL))
    for rt in range(5): A(valu('v_max3_f32', Mn(rt), Mn(rt), off(Mn(rt), 1), off(Mn(rt), 2)))
    for rt in range(5): A(valu('v_max_f32', Mn(rt), Mn(rt), off(Mn(rt), 3)))
    c += max_finish()
    c += stamp('ade')
    if OPT['bst']: A(raw('s_mov_b64 s[98:99], 1'))
    A(br('s_branch', 'L_loop_in'))
    return c

GX = [2, 7, 12, 18, 23, 29, 35, 40]
RX = [0, 1, 3, 4, 5, 6, 9, 10]
TX = [13, 14, 15, 16, 17, 19, 21, 22, 24, 26, 27, 28, 30, 32, 33, 36]

def softmax_items(k):
    rt = k % 5
    E = [valu('v_exp_f32', off(Sb(k, 0), n), off(Sb(k, 0), n)) for n in range(8)]
    C = [valu('v_cvt_pk_bf16_f32', off(Pb(k), n), off(Sb(k, 0), 2 * n), off(Sb(k, 0), 2 * n + 1)) for n in range(4)]
    Ad = [valu('v_add_f32', vSUM[rt], vSUM[rt], off(Sb(k, 0), n)) for n in range(8)] if rt in vSUM else []
    return E, C, Ad

def pv(k, vb, order=range(8)):
    rt = k % 5
    m = [mfma(Oacc(rt, ld), Vf(vb, ld), Pb(k), Oacc(rt, ld)) for ld in order]
    if rt in RS: m.append(mfma(RS[rt], ONES, Pb(k), RS[rt]))
    return m

def block(j):
    out = [cmt(f'block {j}')]
    mem = {}
    for x, i in zip(RX, kv_frag_reads(j + 1, 'K')): mem[x] = i
    for x, i in zip(TX, kv_frag_reads(j + 1, 'V')): mem[x] = i
    for n, x in enumerate(GX):
        mem[x] = dma(vD[n % 4], SA if n < 4 else SB, sOFF, PC * (n % 4), OPT['kvpol'])
    assert len(mem) == 32
    if j == 1 and OPT['lpf']: mem[38] = vld('v228', 1, vL16, SWO, sPO, 0, OPT['opol'])
    sc = {1: [salu('s_add_u32', sOFF, sOFF, sSTEP)], 2: [setm0(sLDS, 2 * j * SL)], 20: [setm0(sLDS, (2 * j + 1) * SL)],
          24: [wait(lg=8)]}
    if j == 2: sc[0] = []
    if j == 1:
        sc[38] = [salu('s_mov_b32', off(SA, 2), sNR)]
    if j == 2:
        sc[10] = [salu('s_mov_b32', off(SB, 2), sNR)]
        if OPT['lpf']: sc[12] = [salu('s_add_u32', sPO, sPO, 4096)]
    if j == 3: sc[39] = [salu('s_sub_u32', sCNT, sCNT, 1)]
    cq, aq = [], []
    xi = ei = 0
    for s in range(5):
        kq, ke, kp = 5 * j + s, 5 * j + s - 1, 5 * j + s - 2
        if OPT['qkord']: mf = [mfma(Sb(kq, t), Kf(j % 2, t, cc), Qf(s, cc), Sb(kq, t) if cc else Mn(s)) for cc in range(4) for t in range(2)]
        else: mf = [mfma(Sb(kq, t), Kf(j % 2, t, cc), Qf(s, cc), Sb(kq, t) if cc else Mn(s)) for t in range(2) for cc in range(4)]
        mf += pv(kp, (j - 1) % 2 if s < 2 else j % 2)
        E, C, Ad = softmax_items(ke)
        for g, m in enumerate(mf):
            if s == 0 and g == 0 and j == 0:
                pass
            out.append(m)
            if g % 2 == 0 and g < 16:
                n = g // 2
                if s == 0 and g == 0:
                    out += [wait(vm=16, lg=0), bar()]
                    if j == 0: out.append(label('L_loop_mid'))
                    if OPT['bst']:
                        out += [raw('v_mov_b32 v242, s100\n    v_cndmask_b32 v243, v243, v242, s[98:99]', 'valu', rd=['s100'], wr=['v243']),
                                raw('s_memtime s[100:101]' if OPT['bst'] == 1 else 's_memrealtime s[100:101]'), raw('s_lshl_b64 s[98:99], s[98:99], 1')]
                out += sc.get(ei, [])
                out.append(E[n]); ei += 1
                if Ad: aq.append(Ad[n])
                if n % 2 == 1: cq.append(C[n // 2])
            else:
                nv = 2
                if xi in mem: out.append(mem[xi]); nv = 1
                xi += 1
                for _ in range(nv):
                    if cq: out.append(cq.pop(0))
                    elif aq: out.append(aq.pop(0))
    assert xi == 42 and ei == 40 and not cq and not aq, (xi, ei, len(cq), len(aq))
    xl = OPT['xl']
    if 'G' in xl: out = [x for x in out if x.kind != 'dma']
    if 'B' in xl: out = [x for x in out if x.kind != 'bar']
    if 'R' in xl: out = [x for x in out if x.kind != 'dsr']
    if 'E' in xl: out = [x for x in out if x.kind != 'trans']
    if 'V' in xl: out = [x for x in out if x.kind != 'valu']
    if 'W' in xl: out = [x for x in out if x.kind != 'wait']
    if 'w' in xl: out = [wait(lg=0) if (x.kind == 'wait' and x.arg[0] == 16) else x for x in out]
    if 'H' in xl:
        n = 0; o2 = []
        for x in out:
            if x.kind == 'dma':
                n += 1
                if n % 2 == 0: continue
            o2.append(x)
        out = [wait(vm=8, lg=0) if (x.kind == 'wait' and x.arg[0] == 16) else x for x in o2]
    return out

def switch_wo():
    c = []
    A = c.append
    A(salu('s_cmp_lg_u32', sLAST, 0)); A(br('s_cbranch_scc1', 'L_epi'))
    A(salu('s_mov_b32', sLAST, 1))
    A(salu('s_mov_b32', sCNT, 0))
    A(salu('s_mov_b32', SA, SWO)); A(salu('s_mov_b32', off(SA, 1), off(SWO, 1))); A(salu('s_mov_b32', off(SA, 2), 262144))
    A(salu('s_add_u32', SB, SWO, 32768)); A(salu('s_addc_u32', off(SB, 1), off(SWO, 1), 0)); A(salu('s_mov_b32', off(SB, 2), 262144 - 32768))
    A(salu('s_mov_b32', sSTEP, 65536))
    A(salu('s_mov_b32', sOFF, -65536 & 0xffffffff))
    A(salu('s_mov_b32', sNR, 0))
    for k in range(4): A(valu('v_accvgpr_read_b32', vD[k], ar(aDwo + k)))
    A(salu('s_or_b32', sT1, sW, sPASS))
    A(br('s_cbranch_scc1', 'L_loop'))
    A(atom('buffer_atomic_add', 'v231', vL16, SD, sGRP))
    if OPT['pf']:
        A(salu('s_lshl_b32', sT1, sB, 15))
        A(salu('s_lshl_b32', sT2, sW, 13))
        A(salu('s_add_u32', sT1, sT1, sT2))
        A(valu('v_lshlrev_b32', t0, 3, vL16))
        for i in range(OPT['pf']): A(vld(off(t1, i), 1, t0, SWO, sT1, 64 * i, OPT['opol']))
    A(br('s_branch', 'L_loop'))
    return c

def epilogue():
    c = [label('L_epi')]
    A = c.append
    if OPT['bst']:
        A(wait(lg=0)); A(raw('v_mov_b32 v242, s100\n    v_cndmask_b32 v243, v243, v242, s[98:99]', 'valu', rd=['s100'], wr=['v243']))
        A(raw('s_memtime s[100:101]' if OPT['bst'] == 1 else 's_memrealtime s[100:101]')); A(raw('s_lshl_b64 s[98:99], s[98:99], 1')); A(wait(lg=0)); A(nop(3))
        A(raw('v_mov_b32 v242, s100\n    v_cndmask_b32 v243, v243, v242, s[98:99]', 'valu', rd=['s100'], wr=['v243'])); A(nop(1))
        A(valu('v_accvgpr_write_b32', 'a248', 'v243'))
    c += stamp('ae')
    A(wait(vm=0))
    A(valu('v_add_u32', t0, UP, vSH))
    A(valu('v_add_u32', t2, 8 * SL, vSH))
    def xw(rt, jd):
        if rt < 4: return dsw('ds_write_b128', t0, Oacc(rt, 4 + jd), rt * SL + jd * 1024, tag='Ow')
        return dsw('ds_write_b128', t2, Oacc(rt, 4 + jd), jd * 1024, tag='Ow')
    E, C, Ad = softmax_items(19)
    order = [4, 5, 6, 7, 0, 1, 2, 3]
    mf = pv(18, 1, order)
    duty = [rfl(sT1, 'v231'), nop(0), salu('s_and_b32', sT2, sT1, 15), salu('s_cmp_eq_u32', sT2, 15), salu('s_cselect_b32', sT1, sT1, 0),
            salu('s_lshr_b32', sT1, sT1, 16), salu('s_or_b32', sTODO, sTODO, sT1)]
    for g, m in enumerate(mf):
        A(m)
        if duty: A(duty.pop(0))
        if g < 8: A(E[g])
        if g >= 2 and g % 2 == 0: A(C[g // 2 - 1])
    ws = [xw(rt, jd) for rt in range(4) for jd in range(4)]
    A(ws.pop(0)); A(ws.pop(0))
    for g, m in enumerate(pv(19, 1, order)):
        A(m); A(ws.pop(0)); A(Ad[g])
    for x in ws: A(x)
    LS = 184
    for rt in RS: A(valu('v_accvgpr_read_b32', vr(LS + rt), RS[rt]))
    for jd in range(4): A(xw(4, jd))
    for op in ('v_permlane16_swap_b32', 'v_permlane32_swap_b32'):
        for rt, s in vSUM.items(): A(valu('v_mov_b32', vr(LS + rt), s))
        A(nop(0))
        for rt, s in vSUM.items(): A(perm(op, s, vr(LS + rt)))
        for rt, s in vSUM.items(): A(valu('v_add_f32', s if op.startswith('v_permlane16') else vr(LS + rt), s, vr(LS + rt)))
    A(salu('s_lshl_b32', sT1, sW, 11))
    A(salu('s_add_u32', sT1, sT1, LX))
    A(salu('s_xor_b32', sT2, sT1, 2048))
    A(valu('v_add_u32', t0, sT1, vL16))
    A(valu('v_add_u32', t2, sT2, vL16))
    A(dsw('ds_write_b128', t0, vr(LS), 0)); A(dsw('ds_write_b32', t0, vr(LS + 4), 1024))
    A(valu('v_add_u32', t0, UP, vSHP))
    A(valu('v_add_u32', t1, 8 * SL, vSHP))
    A(wait(lg=0)); A(bar())
    c += stamp()
    LP = 192
    A(dsr('ds_read_b128', vr(LP), t2, 0, tag='l')); A(dsr('ds_read_b32', vr(LP + 4), t2, 1024, tag='l'))
    def TH(rt, jd): return vr(104 + (rt * 4 + jd) * 4)
    for rt in range(5):
        for jd in range(4):
            if rt < 4: A(dsr('ds_read_b128', TH(rt, jd), t0, rt * SL + jd * 1024, tag=f'Or{rt}'))
            else: A(dsr('ds_read_b128', TH(rt, jd), t1, jd * 1024, tag=f'Or{rt}'))
        if rt == 2:
            A(need(lg='l'))
            for r in range(5): A(valu('v_add_f32', vr(LS + r), vr(LS + r), vr(LP + r)))
            for r in range(5): A(valu('v_rcp_f32', vr(200 + 2 * r), vr(LS + r)))
            A(salu('s_mov_b32', sT1, f32(2.0 ** 24)))
            A(raw('s_mov_b64 s[46:47], 0', wr=['s46', 's47']))
            for r in range(5):
                A(vcmp('v_cmp_nge_f32', 'vcc', sT1, vr(LS + r)))
                A(nop(0))
                A(raw('s_or_b64 s[46:47], s[46:47], vcc', rd=['vcc', 's46', 's47'], wr=['s46', 's47']))
            A(salu('s_or_b32', sT2, sT2, sT3))
            A(salu('s_lshl_b32', sT1, sW, 2))
            A(salu('s_add_u32', sT1, sT1, LX + 8192))
            A(valu('v_mov_b32', vr(LP), sT1))
            A(valu('v_mov_b32', vr(LP + 1), sT2))
            A(dsw('ds_write_b32', vr(LP), vr(LP + 1), 0))
    for rt in range(5):
        A(need(lg=f'Or{rt}'))
        for jd in range(4):
            for h in range(2):
                A(valu('v_pk_add_f32', off(Oacc(rt, jd), 2 * h), off(Oacc(rt, jd), 2 * h), off(TH(rt, jd), 2 * h), w=2))
        for jd in range(4):
            for h in range(2):
                A(valu('v_pk_mul_f32', off(Oacc(rt, jd), 2 * h), off(Oacc(rt, jd), 2 * h), vr(200 + 2 * rt), w=2, mods='op_sel_hi:[1,0]'))
        for jd in range(4):
            for h in range(2):
                A(valu('v_cvt_pk_bf16_f32', vr(STG + rt * 8 + jd * 2 + h), off(Oacc(rt, jd), 2 * h), off(Oacc(rt, jd), 2 * h + 1)))
        for u in range(2):
            j = rt * 2 + u
            A(dsw('ds_write_b128', t0, vr(STG + j * 4), (j // 4) * SL + (j % 4) * 1024))
    A(valu('v_add_u32', t0, UP, vL16))
    A(valu('v_mov_b32', t1, LX + 8192))
    A(wait(lg=0)); A(bar())
    c += stamp('ae')
    return c

def Of(u, rt):
    f = u * 5 + rt
    return ar(4 * f) if f < 20 else ar(160 + 4 * (f - 20))

def ophase():
    c = []
    A = c.append
    def o_read(u, rt):
        wp, ul = u // 2, u % 2
        j = rt * 2 + ul
        return dsr('ds_read_b128', Of(u, rt), t0, (1 - wp % 2) * 8448 + (wp // 2) * 4224 + (j // 4) * SL + (j % 4) * 1024, tag=f'G{u}')
    def wo_dma(ch):
        q = [setm0(sLDS, (ch % 4) * SL), salu('s_mov_b32', sSO, (ch % 8) * 32768 + (ch // 8) * 128)]
        q += [dma(vD[k], SWO, sSO, PC * k, OPT['opol'], tag=f'W{ch}') for k in range(4)]
        return q
    def acc(half, nt, rt): return vr((24 if half == 0 else 104) + (rt * 4 + nt) * 4)
    A(dsr('ds_read_b128', vr(252), t1, 0, tag='vote'))
    c += w_reads(0, 'T0')
    for rt in range(5): A(o_read(0, rt))
    A(need(lg='vote'))
    A(valu('v_or3_b32', vr(252), vr(252), vr(253), vr(254)))
    A(valu('v_or_b32', vr(252), vr(252), vr(255)))
    A(salu('s_lshl_b32', sT2, sPART, 2))
    A(salu('s_add_u32', sT2, sT2, sW))
    A(salu('s_mul_i32', sT2, sT2, 20480))
    A(rfl(sT1, vr(252)))
    A(valu('v_add_u32', t1, sT2, vL16))
    A(salu('s_andn2_b32', sT1, sT1, sPASS))
    if OPT['xl'] or OPT['xq']: A(salu('s_cmp_eq_u32', 0, 1))
    A(br('s_cbranch_scc1', 'L_fallback'))
    for rt in range(5): A(o_read(1, rt))
    sBLK = [0, 's48', 's49', 's50', 's51']
    for i in range(1, 5): A(salu('s_mov_b32', sBLK[i], i * 4096))
    mf, memq, valq, pre = [], [], [], {}
    orr = [(u, rt) for u in range(2, 8) for rt in range(5)]
    def fin(half, rt, ntp, g):
        d = STG + (rt * 2 + ntp) * 4
        v = []
        for q in range(2):
            a = acc(half, 2 * ntp + q, rt)
            for h in range(2): v.append(valu('v_cvt_pk_bf16_f32', vr(d + 2 * q + h), off(a, 2 * h), off(a, 2 * h + 1)))
        blk = half * 10 + rt * 2 + ntp
        st = [vst(vr(d), 4, t1, SWS, sBLK[blk // 4], (blk % 4) * 1024, OPT['stpol'], tag='st')]
        return v, st
    f0 = [fin(0, rt, ntp, 0) for rt in range(5) for ntp in range(2)]
    for ch in range(16):
        g0 = ch * 20; half, u = ch // 8, ch % 8
        pre[g0] = [need(lg=f'T{ch}')] if ch else [need(lg='G0')]
        for rt in range(5):
            for nt in range(4):
                mf.append(mfma(acc(half, nt, rt), Wf(ch % 2, nt), Of(u, rt), acc(half, nt, rt) if u else 0))
        if ch + 1 < 16:
            if ch + 1 >= 4: memq.append((g0, need(vm=f'W{ch+1}')))
            memq += [(g0, x) for x in w_reads(ch + 1, f'T{ch+1}')]
        if ch + 4 < 16: memq += [(g0, x) for x in wo_dma(ch + 4)]
        for _ in range(10):
            if orr: memq.append((g0, o_read(*orr.pop(0))))
        if ch - OPT['f0ch'] in (0, 1):
            for v, st in f0[(ch - OPT['f0ch']) * 5:(ch - OPT['f0ch'] + 1) * 5]: memq += [(g0, x) for x in st]
        if ch == 12: memq.append((g0, vld(t2, 1, vL16, SD, sGRP, 0, 'sc1', tag='cnt')))
    for v, st in f0: valq += [(8 * 20 + 4, x) for x in v]
    valq += [(12 * 20, x) for x in reduce_setup()]
    valq += [(15 * 20 + OPT['fl0'], x) for x in [wait(vm=0), vst(vF1, 1, vFL, SWS, sFL, 0, 'sc1'), rfl(sCNT, t2)]]
    f1 = [fin(1, rt, ntp, 0) for rt in range(5) for ntp in range(2)]
    for n, (v, st) in enumerate(f1[:6]):
        valq += [(15 * 20 + 4 * (n // 2) + 8, x) for x in v + st]
    body, mleft, vleft = weave(mf, memq, valq, pre, flush=False, period=20)
    assert not mleft
    pos = {id(x): i for i, x in enumerate(body)}
    for v, st in f0: assert pos[id(st[-1])] > max(pos[id(x)] for x in v)
    c += body + [x for _, x in vleft]
    for v, st in f1[6:]: c += v + st
    c += stamp('ae')
    c += reduce_tail()
    return c

SO = SB
A1, A2 = 'v24', 'v28'
vLD, vLD2, vST, vST2, vFL, vPL, vF1, vF2, vP = ['v%d' % i for i in range(32, 41)]
soA, soS = ['s52', 's53', 's54', 's55'], ['s56', 's57', 's58', 's59']
sMB, sOA, sOS, sRL = 's60', 's61', 's62', 's63'
def job_setup(sl, rl):
    c = []
    A = c.append
    A(salu('s_lshr_b32', sT1, sl, 2)); A(salu('s_and_b32', sT2, sl, 3))
    A(salu('s_mul_i32', sMB, sl, OPT['MB'])); A(salu('s_add_u32', sMB, sMB, 16 * 81920))
    A(salu('s_mul_i32', sT3, sT1, 20480)); A(salu('s_lshl_b32', sT0, sT2, 8)); A(salu('s_add_u32', sT3, sT3, sT0))
    A(salu('s_lshl_b32', sT1, sT1, 8)); A(salu('s_lshl_b32', sT2, sT2, 3)); A(salu('s_add_u32', sT1, sT1, sT2))
    A(salu('s_lshl_b32', sT2, rl, 15)); A(salu('s_add_u32', sOA, sT1, sT2))
    A(salu('s_lshl_b32', sT2, rl, 6)); A(salu('s_add_u32', sOS, sT1, sT2)); A(salu('s_add_u32', sOS, sOS, 131072))
    A(salu('s_lshl_b32', sT2, rl, 11)); A(salu('s_add_u32', soA[0], sT3, sT2))
    A(salu('s_lshr_b32', sT2, rl, 1)); A(salu('s_lshl_b32', sT2, sT2, 13)); A(salu('s_lshl_b32', sT0, rl, 10))
    A(salu('s_add_u32', sT2, sT2, sT0)); A(salu('s_add_u32', sT2, sT2, 8192)); A(salu('s_add_u32', soS[0], sT3, sT2))
    for i in range(1, 4):
        A(salu('s_add_u32', soA[i], soA[0], i * 4 * 81920)); A(salu('s_add_u32', soS[i], soS[0], i * 4 * 81920))
    return c

def reduce_setup():
    c = []
    A = c.append
    N, G = 'v41', 'v42'
    A(valu('v_bfe_u32', N, vL16, 4, 4))
    A(valu('v_lshrrev_b32', G, 8, vL16))
    A(salu('s_mul_i32', sT1, sB, 163840)); A(salu('s_lshl_b32', sT2, sBR, 10)); A(salu('s_add_u32', sT1, sT1, sT2))
    if OPT['sout']:
        A(salu('s_add_u32', SO, sT1, 70 << 20)); A(salu('s_add_u32', SO, 's78', SO)); A(salu('s_addc_u32', off(SO, 1), 's79', 0)); A(salu('s_and_b32', off(SO, 1), off(SO, 1), 0xffff))
    else:
        A(salu('s_add_u32', SO, 's68', sT1)); A(salu('s_addc_u32', off(SO, 1), 's69', 0)); A(salu('s_and_b32', off(SO, 1), off(SO, 1), 0xffff))
    A(salu('s_sub_u32', off(SO, 2), 8 * 163840, sT1))
    c += flag_addr(vFL, vPL)
    A(valu('v_lshlrev_b32', vPL, 2, N))
    A(valu('v_mov_b32', vF1, 1)); A(valu('v_mov_b32', vF2, 2))
    A(valu('v_mul_u32_u24', vLD, 81920, G))
    A(valu('v_lshl_add_u32', vLD, N, 4, vLD))
    A(valu('v_add_u32', vLD2, 10240, vLD))
    A(valu('v_lshlrev_b32', vST, 5, G))
    A(valu('v_lshl_add_u32', vST, N, 11, vST))
    A(valu('v_lshrrev_b32', G, 1, G))
    A(valu('v_lshl_add_u32', vST2, G, 28, vST))
    A(valu('v_and_b32', G, 1, N))
    A(valu('v_lshlrev_b32', G, 4, G))
    A(valu('v_mov_b32', 'v43', 0x3f80))
    A(valu('v_lshlrev_b32', G, G, 'v43'))
    A(valu('v_lshrrev_b32', N, 1, N))
    for d in range(8): A(vcmp('v_cmp_eq_u32', f's{52+2*d}', d, N))
    for d in range(8): A(valu('v_cndmask_b32', off(A1, d), 0, G, (f's[{52+2*d}:{53+2*d}]', [f's{52+2*d}', f's{53+2*d}'])))
    c += job_setup(sPART, sW)
    A(salu('s_mov_b32', sRL, 0))
    A(salu('s_mov_b32', sSTEP, 0))
    return c

def reduce_tail():
    c = []
    A = c.append
    poll = lambda: vld(vP, 1, vPL, SWS, sMB, 0, 'sc1')
    def allge(n):
        A(vcmp('v_cmp_le_u32', 'vcc', n, vP)); A(salu('s_add_u32', sSTEP, sSTEP, 4096))
        A(raw('s_cselect_b64 s[44:45], -1, vcc', rd=['vcc'], wr=['s44', 's45']))
        A(raw('s_cmp_eq_u64 s[44:45], -1', rd=['s44', 's45'], wr=['scc']))
    A(poll())
    A(salu('s_and_b32', sT1, sCNT, 15))
    A(wait(vm=0))
    A(vst(vF2, 1, vFL, SWS, sFL, 0, 'sc1'))
    c += stamp('e')
    if OPT['stamps']: A(salu('s_and_b32', sT1, sCNT, 15))
    A(br('s_cbranch_scc1', 'L_late'))
    A(br('s_branch', 'L_pa1'))
    A(label('L_pa'))
    if OPT['slp']: A(raw(f"s_sleep {OPT['slp']}"))
    A(poll()); A(wait(vm=0))
    A(label('L_pa1'))
    allge(1)
    A(br('s_cbranch_scc0', 'L_pa'))
    def DA(x, i): return vr(60 + (x * 4 + i) * 4)
    def DB(x, i): return vr(104 + (x * 4 + i) * 4)
    def acc(p): return vr(44 + 4 * p)
    for x in range(2):
        for i in range(4): A(vld(DA(x, i), 4, vLD, SWS, soA[i], x * 1024, OPT['ldpol']))
    A(label('L_pb'))
    if OPT['slp']: A(raw(f"s_sleep {OPT['slp']}"))
    A(poll()); A(wait(vm=0))
    allge(2)
    A(br('s_cbranch_scc0', 'L_pb'))
    c += stamp('e')
    body = []
    for x in range(2):
        for i in range(4): body.append(vld(DB(x, i), 4, vLD2, SWS, soA[i], x * 1024, OPT['ldpol'], tag=f'r{x}{i}'))
    for i in range(4): body.append(vld(DB(2, i), 4, vLD, SWS, soS[i], 0, OPT['ldpol'], tag=f'r2{i}'))
    def fin(p):
        return [valu('v_cvt_pk_bf16_f32', vr(92 + 2 * p + h), off(acc(p), 2 * h), off(acc(p), 2 * h + 1)) for h in range(2)]
    for x in range(2):
        for i in range(4): body.append(mfma(acc(0), A2 if x else A1, DA(x, i), acc(0) if (x or i) else 0))
    body += [nop(7)] + fin(0) + [vst(vr(92), 2, vST, SO, sOA, 0)]
    for x in range(3):
        for i in range(4):
            body.append(need(vm=f'r{x}{i}'))
            body.append(mfma(acc(1 + x // 2), A2 if x == 1 else A1, DB(x, i), acc(1 + x // 2) if (x == 1 or i) else 0))
    body += fin(1) + [vst(vr(94), 2, vST, SO, sOA, 128), salu('s_cmp_eq_u32', sTODO, 0), nop(3)] + fin(2) + [vst(vr(96), 2, vST2, SO, sOS, 0)]
    c += body
    A(br('s_cbranch_scc0', 'L_more'))
    A(label('L_fin'))
    return c

def reduce_rare():
    c = []
    A = c.append
    A(label('L_more'))
    A(raw(f's_ff1_i32_b32 {sOFF}, {sTODO}', rd=[sTODO], wr=[sOFF]))
    c += job_setup(sOFF, sRL)
    A(salu('s_add_u32', sRL, sRL, 1)); A(salu('s_and_b32', sRL, sRL, 3))
    A(br('s_cbranch_scc1', 'L_pa'))
    A(raw(f's_bitset0_b32 {sTODO}, {sOFF}', rd=[sTODO, sOFF], wr=[sTODO]))
    A(br('s_branch', 'L_pa'))
    A(label('L_late'))
    A(salu('s_mov_b32', sNR, OPT['limit']))
    A(label('L_late1'))
    A(vld(vP, 1, vL16, SD, sGRP, 0, 'sc1')); A(wait(vm=0)); A(rfl(sT1, vP)); A(nop(0))
    A(salu('s_and_b32', sT1, sT1, 15))
    A(br('s_cbranch_scc0', 'L_pa'))
    A(salu('s_sub_u32', sNR, sNR, 1))
    A(br('s_cbranch_scc0', 'L_late1'))
    A(salu('s_lshl_b32', sT1, 0x10000, sPART))
    A(valu('v_mov_b32', vP, sT1))
    A(atom('buffer_atomic_or', vP, vL16, SD, sGRP)); A(wait(vm=0)); A(rfl(sT1, vP)); A(nop(0))
    A(salu('s_and_b32', sT1, sT1, 15))
    A(br('s_cbranch_scc0', 'L_pa'))
    A(br('s_branch', 'L_fin'))
    return c

def fallback():
    c = [label('L_fallback')]
    A = c.append
    A(wait(vm=0, lg=0)); A(bar())
    A(salu('s_mov_b32', sPASS, -1))
    c += kv_mode()
    for k in range(4): A(valu('v_accvgpr_read_b32', vD[k], ar(aDkv + k)))
    for rt in range(5): A(valu('v_mov_b32', Mn(rt), 0xff800000))
    A(salu('s_and_b32', sT1, sW, 1))
    A(salu('s_mul_i32', sT1, sT1, 8448))
    A(valu('v_subrev_u32', t2, sT1, vK))
    A(salu('s_mov_b32', sSO, 0))
    A(setm0(sLDS, 0))
    A(label('L_fb_loop'))
    A(nop(0))
    for k in range(4): A(dma(vD[k], SA, sSO, PC * k))
    A(wait(vm=0)); A(bar())
    for hf in range(2):
        for t in range(2):
            for cc in range(4): A(dsr('ds_read_b128', Kf(hf, t, cc), t2, hf * 8448 + t * 512 + cc * 64))
    A(wait(lg=0)); A(bar())
    for rt in range(5):
        for hf in range(2):
            for t in range(2):
                for cc in range(4): A(mfma(Sb(hf, t), Kf(hf, t, cc), Qf(rt, cc), Sb(hf, t) if cc else 0))
        A(nop(7))
        for n in range(0, 16, 2): A(valu('v_max3_f32', Mn(rt), Mn(rt), off(Sb(0, 0), n), off(Sb(0, 0), n + 1)))
    A(salu('s_add_u32', sSO, sSO, 16384))
    A(salu('s_cmp_lt_u32', sSO, 524288))
    A(br('s_cbranch_scc1', 'L_fb_loop'))
    c += max_finish()
    for i in range(4):
        c += kv_tile_dma('K', i, 'x') + kv_tile_dma('V', i, 'x')
    for i in range(80): A(valu('v_mov_b32', vr(24 + i), 0))
    for s in vSUM.values(): A(valu('v_mov_b32', s, 0))
    for i in range(80): A(valu('v_accvgpr_write_b32', ar(i), 0))
    for i in range(8): A(valu('v_accvgpr_write_b32', ar(224 + i), 0))
    A(valu('v_mov_b32', t0, 0x3f803f80))
    for i in range(4): A(valu('v_accvgpr_write_b32', off(ONES, i), t0))
    c += state_init()
    A(wait(vm=0)); A(bar())
    c += kv_frag_reads(0, 'K') + kv_frag_reads(0, 'V')
    A(wait(lg=0)); A(bar())
    A(br('s_branch', 'L_loop_in'))
    return c

def stamps_out():
    if OPT['bst']:
        c = []
        A = c.append
        A(salu('s_add_u32', 's4', 's78', 66 << 20)); A(salu('s_addc_u32', 's5', 's79', 0)); A(salu('s_and_b32', 's5', 's5', 0xffff))
        A(salu('s_mov_b32', 's6', 1 << 20)); A(salu('s_mov_b32', 's7', 0x20000))
        A(salu('s_lshl_b32', sT1, 's2', 10))
        A(valu('v_lshlrev_b32', t0, 2, 'v0'))
        A(valu('v_accvgpr_read_b32', t2, 'a248'))
        A(vst(t2, 1, t0, 's4', sT1, 0))
        return c
    if not OPT['stamps']: return []
    c = []
    A = c.append
    n = stamp_n[0]
    A(wait(vm=0))
    c += stamp('abe')
    n = stamp_n[0]
    if OPT['dbg']:
        A(salu('s_mov_b32', 's4', 's76')); A(salu('s_and_b32', 's5', 's77', 0xffff)); A(salu('s_mov_b32', 's6', 256)); A(salu('s_mov_b32', 's7', 0x20000))
        A(salu('s_lshl_b32', sT1, 's2', 2)); A(salu('s_add_u32', sT1, sT1, sW))
        A(salu('s_cmp_lg_u32', sT1, OPT['dbg'])); A(br('s_cbranch_scc1', 'L_end'))
        A(valu('v_mov_b32', t0, 0))
        for i in range(1, n):
            A(salu('s_sub_u32', sT1, f's{82+2*i}', 's82'))
            A(valu('v_mov_b32', t1, sT1))
            A(vst(t1, 1, t0, 's4', 0, 4 * i))
            A(wait(vm=0))
        return c
    if OPT['sout']:
        A(salu('s_mov_b32', 's4', 's68')); A(salu('s_and_b32', 's5', 's69', 0xffff))
        A(raw('s_getreg_b32 s100, hwreg(HW_REG_XCC_ID)')); A(raw('s_getreg_b32 s101, hwreg(HW_REG_HW_ID)'))
    else:
        A(salu('s_add_u32', 's4', 's78', 64 << 20)); A(salu('s_addc_u32', 's5', 's79', 0)); A(salu('s_and_b32', 's5', 's5', 0xffff))
    A(salu('s_mov_b32', 's6', 1 << 20)); A(salu('s_mov_b32', 's7', 0x20000))
    A(salu('s_lshl_b32', sT1, 's2', 2)); A(salu('s_add_u32', sT1, sT1, sW)); A(salu('s_lshl_b32', sT1, sT1, 6))
    if OPT['sout']:
        A(valu('v_mov_b32', t0, 0))
        A(valu('v_mov_b32', t1, 's100')); A(vst(t1, 1, t0, 's4', sT1, 56)); A(wait(vm=0))
        A(valu('v_mov_b32', t1, 's101')); A(vst(t1, 1, t0, 's4', sT1, 60)); A(wait(vm=0))
    A(valu('v_mov_b32', t0, 0))
    for i in range(16 if OPT['stamps'] == 3 else n):
        A(valu('v_mov_b32', t1, f's{82+i}' if OPT['stamps'] == 3 else f's{82+2*i}'))
        A(vst(t1, 1, t0, 's4', sT1, 4 * i))
        A(wait(vm=0))
    return c

def kernel1():
    st0 = stamp('abcde')
    pre, R = setup()
    pre = pre[:2] + st0 + pre[2:]
    part1 = resolve(pre + qphase(R) + prologue())
    blocks = [block(j) for j in range(4)]
    first = [x for x in blocks[0] if x.kind == 'mfma'][0]
    entry = [label('L_loop_in'), first, br('s_branch', 'L_loop_mid')]
    loop = [label('L_loop')] + sum(blocks, []) + [br('s_cbranch_scc0', 'L_loop')]
    sw = switch_wo()
    part3 = resolve(epilogue() + ophase()) + stamps_out() + [label('L_end'), raw('s_endpgm')]
    fb = fallback()
    mid = [i for i, x in enumerate(loop) if x.kind == 'label' and x.arg == 'L_loop_mid'][0]
    tr = part1 + entry + loop[mid:] + loop + sw + loop + sw[:2] + part3
    errs = check(tr, 'k1')
    vb = [i for i, x in enumerate(part3) if x.kind == 'br' and x.arg == 'L_fallback'][0]
    errs += check(part3[:vb + 1] + fb + entry + loop[mid:] + loop, 'fb')
    assert part1[-1].kind == 'br'
    rr = resolve(reduce_rare())
    errs += check(rr, 'rare')
    code = part1[:-1] + entry + [raw('.p2align 6', 'cmt')] + loop + sw + part3 + rr + fb
    return code, errs

def kernel2():
    c = []
    A = c.append
    A(salu('s_cmp_ge_u32', 's2', 320)); A(br('s_cbranch_scc1', 'L2_end'))
    if OPT['stamps']: A(raw('s_memrealtime s[30:31]'))
    A(raw('s_load_dwordx2 s[4:5], s[0:1], 96', wr=['s4', 's5']))
    if OPT['stamps']: A(raw('s_load_dwordx2 s[40:41], s[0:1], 96'))
    A(raw('s_load_dwordx2 s[8:9], s[0:1], 80', wr=['s8', 's9']))
    A(salu('s_mul_hi_u32', 's12', 's2', 0xcccccccd)); A(salu('s_lshr_b32', 's12', 's12', 4))
    A(salu('s_mul_i32', 's13', 's12', 20)); A(salu('s_sub_u32', 's13', 's2', 's13'))
    A(valu('v_lshrrev_b32', 'v1', 6, 'v0'))
    A(valu('v_lshlrev_b32', 'v2', 4, 'v0'))
    A(rfl('s14', 'v1'))
    A(salu('s_lshl_b32', 's15', 's13', 12))
    A(valu('v_add_u32', 'v2', 's15', 'v2'))
    A(salu('s_mul_i32', 's16', 's12', 16 * 81920))
    A(wait(lg=0))
    A(salu('s_add_u32', 's4', 's4', 's16')); A(salu('s_addc_u32', 's5', 's5', 0)); A(salu('s_and_b32', 's5', 's5', 0xffff))
    A(salu('s_mov_b32', 's6', 16 * 81920)); A(salu('s_mov_b32', 's7', 0x20000))
    for p in range(16):
        A(salu('s_mov_b32', 's17', p * 81920))
        A(vld(vr(16 + 4 * p), 4, 'v2', 's4', 's17', 0, OPT['ldpol'], tag=f'p{p}'))
    A(salu('s_and_b32', 's9', 's9', 0xffff)); A(salu('s_mov_b32', 's10', 8 * 80 * 1024 * 2)); A(salu('s_mov_b32', 's11', 0x20000))
    A(salu('s_lshl_b32', 's15', 's13', 2)); A(salu('s_add_u32', 's15', 's15', 's14'))
    A(salu('s_and_b32', 's18', 's15', 1))
    A(salu('s_lshr_b32', 's15', 's15', 1))
    A(salu('s_mul_i32', 's19', 's15', 205)); A(salu('s_lshr_b32', 's19', 's19', 10))
    A(salu('s_mul_i32', 's20', 's19', 5)); A(salu('s_sub_u32', 's20', 's15', 's20'))
    A(salu('s_and_b32', 's21', 's12', 7))
    A(salu('s_lshr_b32', 's22', 's12', 3))
    A(salu('s_mul_i32', 's21', 's21', 5)); A(salu('s_add_u32', 's21', 's21', 's20')); A(salu('s_lshl_b32', 's21', 's21', 15))
    A(salu('s_lshl_b32', 's22', 's22', 10)); A(salu('s_add_u32', 's21', 's21', 's22'))
    A(salu('s_lshl_b32', 's19', 's19', 7)); A(salu('s_add_u32', 's21', 's21', 's19'))
    A(salu('s_lshl_b32', 's18', 's18', 6)); A(salu('s_add_u32', 's21', 's21', 's18'))
    A(valu('v_and_b32', 'v3', 15, 'v0')); A(valu('v_lshlrev_b32', 'v3', 11, 'v3'))
    A(valu('v_bfe_u32', 'v4', 'v0', 4, 2)); A(valu('v_lshl_add_u32', 'v3', 'v4', 3, 'v3'))
    A(salu('s_mov_b32', 's23', 0xffff0000))
    for p in range(16):
        A(need(vm=f'p{p}'))
        for i in range(4):
            src = vr(16 + 4 * p + i)
            if p == 0:
                A(valu('v_lshlrev_b32', vr(8 + 2 * i), 16, src)); A(valu('v_and_b32', vr(9 + 2 * i), 's23', src))
            else:
                A(valu('v_lshlrev_b32', vr(80 + 2 * i), 16, src)); A(valu('v_and_b32', vr(81 + 2 * i), 's23', src))
        if p:
            for i in range(4): A(valu('v_pk_add_f32', vr(8 + 2 * i), vr(8 + 2 * i), vr(80 + 2 * i), w=2))
    for i in range(4): A(valu('v_cvt_pk_bf16_f32', vr(4 + i), vr(8 + 2 * i), vr(9 + 2 * i)))
    A(vst('v4', 2, 'v3', 's8', 's21', 0)); A(vst('v6', 2, 'v3', 's8', 's21', 32))
    if OPT['stamps']:
        A(wait(vm=0)); A(raw('s_memrealtime s[32:33]')); A(wait(lg=0))
        A(salu('s_add_u32', 's40', 's40', 65 << 20)); A(salu('s_addc_u32', 's41', 's41', 0)); A(salu('s_and_b32', 's41', 's41', 0xffff))
        A(salu('s_mov_b32', 's42', 1 << 20)); A(salu('s_mov_b32', 's43', 0x20000))
        A(salu('s_lshl_b32', 's34', 's2', 2)); A(salu('s_add_u32', 's34', 's34', 's14')); A(salu('s_lshl_b32', 's34', 's34', 3))
        A(valu('v_mov_b32', 'v1', 0)); A(valu('v_mov_b32', 'v10', 's30')); A(valu('v_mov_b32', 'v11', 's32'))
        A(vst('v10', 2, 'v1', 's40', 's34', 0))
    A(label('L2_end')); A(raw('s_endpgm'))
    c = resolve(c)
    return c, check(c, 'k2')

def desc(name, vg, acc):
    return f""".p2align 6
.amdhsa_kernel {name}
  .amdhsa_next_free_vgpr {vg}
  .amdhsa_next_free_sgpr 102
  .amdhsa_accum_offset {acc}
  .amdhsa_group_segment_fixed_size 0
  .amdhsa_kernarg_size 104
  .amdhsa_user_sgpr_count 2
  .amdhsa_user_sgpr_kernarg_segment_ptr 1
  .amdhsa_system_sgpr_workgroup_id_x 1
.end_amdhsa_kernel
"""

def main():
    assert (LX // 2048) % 2 == 0 or True
    k1, e1 = kernel1()
    k2, e2 = kernel2()
    for e in e1 + e2: print('HAZARD', e)
    K1, K2 = NAME + '_kernel', 'reduce_parts_kernel'
    hdr = open('cdna_kernels/' + NAME + '.s.ref').read().split('; Override launch')[0]
    s = hdr
    s += f'; @launch grid=(256,1,1) block=(256,1,1) lds=163840\n'
    s += '.amdgcn_target "amdgcn-amd-amdhsa--gfx950"\n.text\n'
    for n, k in ((K1, k1),):
        s += f'.globl {n}\n.p2align 8\n.type {n},@function\n{n}:\n' + render(k)
    s += 'L_code_end:\n'
    s += '.section .rodata,"a"\n' + desc(K1, 512, 256)
    open(sys.argv[1], 'w').write(s)
    print('instrs', len(k1), len(k2), 'errors', len(e1) + len(e2))
main()
```

```python
import sys, math, struct
from asmlib import *

NAME = 'concat_heads__gqa_block_cached__gqa_block_cached__near_ridge'
OPT = dict(diag='', delay=0, f0ch=10, fl0=6, MB=256, slp=0, sout=0, fuse=1, cbase=0, cstr=16, limit=2000, scr=0, lpf=1, cpf=1, rb=8, rp=8, xq='', wpol0='', wn0=2, xpol='', opol='', wpol='', bst=0, qkord=0, xl='', kvpf=0, kv0=11, kvlate=2, rot=1, sg='a', samekv=0, stamps=0, kvpol='nt', pf=0, stpol='sc1', ldpol='sc1', dbg=0)
for a in sys.argv[2:]:
    k, v = a.split('=')
    OPT[k] = int(v) if v.lstrip('-').isdigit() else v.replace('+', ' ')

SL = 16896
PC = 1056
UP = 4 * SL
LX = 9 * SL
GS = 16 * 81920 + 16 * OPT['MB']
def f32(x): return struct.unpack('<I', struct.pack('<f', x))[0]

SX, SA, SB, SWQ, SWO, SWS = 's4', 's8', 's12', 's16', 's20', 's24'
SD = SX
sKb, sVb = 's28', 's30'
sW, sB, sHKV, sHP, sBR, sCNT, sOFF, sSTEP, sLDS, sPASS, sNR, sLAST = ['s%d' % i for i in range(32, 44)]
sT0, sT1, sT2, sT3 = 's44', 's45', 's46', 's47'
sSO = 's80'
sWOFF = 's81'
sPO = 's3'
sGRP, sPART, sTODO, sFL = 's70', 's71', 's72', 's73'
sXQ = ['s48', 's49', 's50', 's51']
vL16 = 'v1'
vD = ['v2', 'v3', 'v4', 'v5']
vK, vK2, vVa, vVa2, vVb, vVb2 = 'v6', 'v7', 'v8', 'v9', 'v10', 'v11'
vT = ['v12', 'v13', 'v14', 'v15']
vSUM = {4: 'v16', 1: 'v17', 2: 'v18'}
vSH, vSHP = 'v19', 'v20'
t0, t1, t2 = 'v21', 'v22', 'v23'
def vr(n): return f'v{n}'
def ar(n): return f'a{n}'
def Oacc(rt, ld): return vr(24 + (rt * 4 + ld) * 4) if ld < 4 else ar((rt * 4 + ld - 4) * 4)
def Vf(b, ld): return vr(104 + 32 * b + 4 * ld)
def Sb(k, t): return vr(168 + 8 * (k % 4) + 4 * t)
def Pb(k): return vr(200 + 4 * (k % 2))
def Mn(rt): return vr(208 + 4 * rt)
def Qf(rt, c): return ar(80 + (rt * 4 + c) * 4)
def Kf(b, t, c): return ar(160 + 32 * b + (t * 4 + c) * 4)
RS = {3: 'a224', 0: 'a228'}
ONES = 'a232'
aDwo, aDkv = 240, 244
def off(r, n): return f'{r[0]}{int(r[1:]) + n}'
vDwo = ['v228', 'v229', 'v230', 'v231']
vW = ['v232', 'v233', 'v234', 'v235']
vXd = 'v236'; vXdr = ['v236', 'v216', 'v217', 'v218', 'v219']; vXr = ['v237', 'v238']; vXr4 = ['v239', 'v240']; vPF, vPFd = 'v241', 'v242'
def Qacc(dt, rt): return vr(104 + (rt * 4 + dt) * 4)
def Wf(b, nt): return vr(184 + 16 * b + 4 * nt)
def Xf(c, rt):
    f = c * 5 + rt
    if f < 16: return ar(160 + 4 * f)
    if f < 56: return ar(4 * (f - 16))
    if f < 64: return ar(224 + 4 * (f - 56))
    return ar(160 + 4 * (f - 64))
STG = 216

stamp_n = [0]
def stamp(grp='a'):
    if not OPT['stamps'] or OPT['sg'] not in grp: return []
    i = stamp_n[0]; stamp_n[0] += 1
    if OPT['stamps'] == 3:
        assert i < 8
        return [raw('s_memtime s[98:99]'), raw('s_memrealtime s[100:101]'), wait(lg=0), salu('s_mov_b32', f's{82+i}', 's98'), salu('s_mov_b32', f's{90+i}', 's100')]
    op = 's_memrealtime' if OPT['stamps'] == 2 else 's_memtime'
    return [raw(f'{op} s[{82+2*i}:{83+2*i}]', wr=[f's{82+2*i}', f's{83+2*i}']), wait(lg=0)]

def setm0(base, const): return salu('s_add_u32', 'm0', base, const)

def kv_tile_dma(which, tile, tag):
    sig = 2 * (tile % 4) + (which == 'V')
    srd = SA if which == 'K' else SB
    q = [setm0(sLDS, sig * SL), salu('s_mov_b32', sSO, tile * 16384)]
    q += [dma(vD[k], srd, sSO, PC * k, OPT['kvpol'], tag=tag) for k in range(4)]
    return q

def setup():
    c = []
    A = c.append
    A(salu('s_cmp_ge_u32', 's2', 256)); A(br('s_cbranch_scc1', 'L_end'))
    A(raw('s_load_dwordx16 s[48:63], s[0:1], 0', wr=regs('s48', 16)))
    A(raw('s_load_dwordx4 s[64:67], s[0:1], 64', wr=regs('s64', 4)))
    A(raw('s_load_dwordx4 s[76:79], s[0:1], 88', wr=regs('s76', 4)))
    A(raw('s_load_dwordx2 s[68:69], s[0:1], 80', wr=regs('s68', 2)))
    L, G, Q, WV, KH, HH, RP, R4, C4 = ['v%d' % i for i in range(244, 253)]
    if OPT['delay']:
        A(salu('s_and_b32', sT1, 's2', 0x1b)); A(salu('s_cmp_lg_u32', sT1, 0x0a)); A(br('s_cbranch_scc1', 'L_nodelay'))
        A(salu('s_mov_b32', sT1, OPT['delay']))
        A(label('L_delay')); A(raw('s_sleep 127')); A(salu('s_sub_u32', sT1, sT1, 1)); A(br('s_cbranch_scc0', 'L_delay'))
        A(label('L_nodelay'))
    if OPT['scr']:
        A(salu('s_lshr_b32', sT1, 's2', 5)); A(salu('s_and_b32', 's2', 's2', 31)); A(salu('s_lshl_b32', 's2', 's2', 3)); A(salu('s_or_b32', 's2', 's2', sT1))
    A(salu('s_lshr_b32', sT1, 's2', 3))
    if OPT['cpf']:
        A(raw('s_getpc_b64 s[74:75]', wr=['s74', 's75']))
        A(label('L_pc'))
        A(salu('s_lshl_b32', sT2, sT1, 10))
        A(valu('v_lshrrev_b32', t0, 5, 'v0'))
        A(raw('s_min_u32 s46, s46, L_code_end-L_pc-1024', rd=['s46'], wr=['s46']))
        A(valu('v_lshlrev_b32', t0, 7, t0))
        A(salu('s_add_u32', 's74', 's74', sT2))
        A(salu('s_addc_u32', 's75', 's75', 0))
        A(I(f'global_load_dword {vPFd}, {t0}, s[74:75]', 'vld', rd=[t0, 's74', 's75'], wr=[vPFd], tag='cpf'))
    A(valu('v_lshrrev_b32', WV, 6, 'v0'))
    A(valu('v_bfe_u32', RP, 'v0', 3, 3))
    A(rfl(sW, WV))
    A(valu('v_and_b32', C4, 7, 'v0'))
    A(valu('v_and_b32', t1, 6, RP))
    A(valu('v_xor_b32', R4, C4, t1))
    A(valu('v_and_b32', t1, 4, RP))
    A(valu('v_add_u32', t1, t1, RP))
    A(valu('v_lshlrev_b32', t1, 13, t1))
    A(valu('v_lshl_add_u32', t1, WV, 7, t1))
    A(valu('v_lshl_add_u32', vW[0], R4, 4, t1))
    for k in range(1, 4):
        A(valu('v_add_u32', vW[k], (16 * (k % 2) + 4 * (k // 2)) * 8192 - PC * k, vW[0]))
    A(salu('s_and_b32', sT0, 's2', 3))
    A(salu('s_lshl_b32', sT0, sT0, 2))
    A(salu('s_and_b32', sT2, sT1, 3))
    A(salu('s_add_u32', sT0, sT0, sT2))
    A(salu('s_lshr_b32', sB, sT1, 2))
    A(salu('s_mul_i32', sWOFF, sB, OPT['rb']))
    A(salu('s_mul_i32', sT2, sT2, OPT['rp']))
    A(salu('s_add_u32', sWOFF, sWOFF, sT2))
    A(salu('s_and_b32', sWOFF, sWOFF, 15))
    A(salu('s_and_b32', sT2, sW, 2))
    A(salu('s_add_u32', 's3', sWOFF, sT2))
    A(salu('s_lshl_b32', 's3', 's3', 6))
    A(salu('s_lshl_b32', sWOFF, sWOFF, 18))
    A(salu('s_mul_i32', sT2, sT2, 2112))
    A(salu('s_and_b32', sT1, sW, 1))
    A(salu('s_mul_i32', sT1, sT1, 8448))
    A(salu('s_add_u32', sLDS, sT1, sT2))
    A(salu('s_lshl_b32', sT1, sT0, 9))
    A(salu('s_sub_u32', off(SWQ, 2), 512 * 8192, sT1))
    A(salu('s_mov_b32', off(SWQ, 3), 0x20000))
    A(setm0(sLDS, UP))
    A(valu('v_bfe_u32', t2, 'v0', 3, 4))
    A(valu('v_lshrrev_b32', t1, 1, t2))
    A(valu('v_xor_b32', t1, t1, C4))
    A(valu('v_lshlrev_b32', t1, 4, t1))
    A(valu('v_lshl_add_u32', vXd, t2, 10, t1))
    A(salu('s_mul_i32', sT2, sB, 81920))
    A(salu('s_bitcmp0_b32', 's2', 2))
    A(wait(lg=0))
    c += stamp('b')
    A(raw('s_cselect_b64 s[16:17], s[54:55], s[64:65]'))
    A(raw('s_cselect_b64 s[4:5], s[48:49], s[58:59]'))
    A(raw('s_cselect_b64 s[70:71], s[50:51], s[60:61]'))
    A(raw('s_cselect_b64 s[72:73], s[52:53], s[62:63]'))
    A(raw('s_cselect_b64 s[20:21], s[56:57], s[66:67]'))
    A(salu('s_add_u32', SWQ, SWQ, sT1))
    A(salu('s_addc_u32', off(SWQ, 1), off(SWQ, 1), 0))
    A(salu('s_and_b32', off(SWQ, 1), off(SWQ, 1), 0xffff))
    c += w_dma(0)[2:]
    c += stamp('b')
    A(salu('s_add_u32', SX, SX, sT2))
    A(salu('s_addc_u32', off(SX, 1), off(SX, 1), 0))
    A(salu('s_and_b32', off(SX, 1), off(SX, 1), 0xffff))
    A(salu('s_mov_b32', off(SX, 2), 81920))
    A(salu('s_mov_b32', off(SX, 3), 0x20000))
    A(salu('s_lshl_b32', sT3, sW, 10))
    A(salu('s_and_b32', sXQ[0], 's3', 1023))
    xd = x_dma(0, False)
    for rt in range(5):
        A(xd[2 * rt])
        A(valu('v_add_u32', vXdr[rt + 1], (rt + 1) * 16384, vXd) if rt < 4 else nop(0))
        A(xd[2 * rt + 1])
        if rt == 0: c += stamp('b')
    c += stamp('b')
    return c, (L, G, Q, WV, KH, HH, RP, R4, C4)

def setup2(R):
    L, G, Q, WV, KH, HH, RP, R4, C4 = R
    c = []
    A = c.append
    def srd(s, ptr, offreg, nrec):
        A(salu('s_add_u32', s, ptr, offreg))
        A(salu('s_addc_u32', off(s, 1), off(ptr, 1), 0))
        A(salu('s_and_b32', off(s, 1), off(s, 1), 0xffff))
        A(salu('s_mov_b32', off(s, 2), nrec))
        A(salu('s_mov_b32', off(s, 3), 0x20000))
    for q in range(1, 4):
        A(salu('s_add_u32', sXQ[q], 's3', q * 256))
        A(salu('s_and_b32', sXQ[q], sXQ[q], 1023))
    A(salu('s_bfe_u32', sBR, 's2', 0x10002))
    A(salu('s_and_b32', sHP, sT0, 1))
    A(salu('s_lshr_b32', sHKV, sT0, 1))
    A(valu('v_and_b32', L, 63, 'v0'))
    A(valu('v_lshlrev_b32', vL16, 4, L))
    A(valu('v_and_b32', KH, 1, WV))
    A(valu('v_lshrrev_b32', HH, 1, WV))
    A(valu('v_lshlrev_b32', t1, 10, RP))
    A(valu('v_lshl_add_u32', t1, WV, 8, t1))
    A(valu('v_lshl_add_u32', vDwo[0], R4, 4, t1))
    for k in range(1, 4):
        A(valu('v_add_u32', vDwo[k], (8192 - PC) * k, vDwo[0]))
    A(valu('v_lshlrev_b32', vPF, 7, 'v0'))
    A(salu('s_lshl_b32', sT1, sB, 3))
    A(salu('s_add_u32', sT1, sT1, sHKV))
    A(salu('s_lshl_b32', sT1, sT1, 19))
    for dst, p in ((sKb, 's70'), (sVb, 's72')):
        A(salu('s_add_u32', dst, p, sT1))
        A(salu('s_addc_u32', off(dst, 1), off(p, 1), 0))
        A(salu('s_sub_u32', dst, dst, 96))
        A(salu('s_subb_u32', off(dst, 1), off(dst, 1), 0))
        A(salu('s_and_b32', off(dst, 1), off(dst, 1), 0xffff))
    ca = c; c = []; A = c.append
    c += kv_mode()
    A(salu('s_mov_b32', off(SA, 3), 0x20000))
    A(salu('s_mov_b32', off(SB, 3), 0x20000))
    A(salu('s_lshl_b32', sT1, sT0, 18))
    srd(SWO, SWO, sT1, 262144)
    A(salu('s_lshl_b32', sT1, sBR, 3))
    A(salu('s_add_u32', sGRP, sT1, sB))
    A(salu('s_mul_i32', sT1, sGRP, GS))
    srd(SWS, 's78', sT1, GS)
    A(salu('s_mov_b32', sPART, sT0))
    A(salu('s_mov_b32', sPASS, 0))
    A(valu('v_lshrrev_b32', G, 4, L))
    A(valu('v_and_b32', Q, 15, L))
    A(valu('v_bfe_u32', R4, L, 2, 2))
    A(valu('v_and_b32', C4, 3, L))
    A(valu('v_lshrrev_b32', t0, 1, Q))
    A(valu('v_xor_b32', t0, t0, G))
    A(valu('v_lshlrev_b32', t0, 4, t0))
    A(valu('v_lshl_add_u32', vXr[0], Q, 7, t0))
    A(valu('v_xor_b32', vXr[1], 64, vXr[0]))
    A(valu('v_add_u32', vXr4[0], 8 * SL, vXr[0]))
    A(valu('v_add_u32', vXr4[1], 8 * SL, vXr[1]))
    A(valu('v_mul_u32_u24', t0, 4224, HH))
    A(valu('v_mul_u32_u24', t1, 8448, KH))
    A(valu('v_add_u32', t2, t0, vL16))
    A(valu('v_add_u32', vSH, t2, t1))
    A(valu('v_sub_u32', vSHP, t2, t1))
    A(valu('v_add_u32', vSHP, 8448, vSHP))
    A(valu('v_add_u32', t2, t0, t1))
    A(valu('v_and_b32', t0, 1, G))
    A(valu('v_lshl_add_u32', t0, t0, 2, R4))
    A(valu('v_lshl_add_u32', t2, t0, 7, t2))
    A(valu('v_lshl_add_u32', t2, C4, 3, t2))
    A(valu('v_lshrrev_b32', vT[3], 1, G))
    A(valu('v_mul_u32_u24', vT[3], PC, vT[3]))
    A(valu('v_add_u32', t2, t2, vT[3]))
    A(valu('v_add_u32', t2, UP, t2))
    A(valu('v_and_b32', t0, 6, t0))
    for nt in range(4):
        A(valu('v_xor_b32', vT[nt], 2 * nt, t0))
        A(valu('v_lshl_add_u32', vT[nt], vT[nt], 4, t2))
    A(valu('v_and_b32', t0, 7, Q))
    A(valu('v_mul_u32_u24', t0, PC, t0))
    A(valu('v_lshrrev_b32', t2, 3, Q))
    A(valu('v_lshl_add_u32', t0, t2, 8, t0))
    A(valu('v_lshl_add_u32', t0, G, 4, t0))
    A(valu('v_add_u32', vK, t0, t1))
    A(valu('v_add_u32', vK2, UP, vK))
    A(valu('v_bfe_u32', t0, L, 2, 3))
    A(valu('v_mul_u32_u24', t0, PC, t0))
    A(valu('v_lshrrev_b32', t2, 1, G))
    A(valu('v_lshl_add_u32', t0, t2, 8, t0))
    A(valu('v_lshl_add_u32', t0, C4, 3, t0))
    A(valu('v_add_u32', t0, t0, t1))
    A(valu('v_lshl_add_u32', vVa, KH, 7, t0))
    A(valu('v_xor_b32', t2, 1, KH))
    A(valu('v_lshl_add_u32', vVb, t2, 7, t0))
    A(valu('v_add_u32', vVa2, UP, vVa))
    A(valu('v_add_u32', vVb2, UP, vVb))
    A(valu('v_lshl_add_u32', t0, KH, 13, vL16))
    A(valu('v_lshl_add_u32', t0, HH, 12, t0))
    for k in range(4):
        A(valu('v_add_u32', vD[k], 96 - 32 * k, t0))
    A(valu('v_lshrrev_b32', t0, 1, G))
    A(valu('v_lshl_add_u32', t0, t0, 4, Q))
    A(valu('v_lshlrev_b32', t0, 4, t0))
    A(valu('v_and_b32', t2, 1, G))
    A(valu('v_lshl_add_u32', t0, t2, 3, t0))
    A(valu('v_sub_u32', t2, vSH, vL16))
    A(valu('v_add_u32', t0, t0, t2))
    A(valu('v_add_u32', t0, 6 * SL, t0))
    A(valu('v_mul_u32_u24', t1, 4224, HH))
    A(valu('v_add_u32', t1, t1, vL16))
    A(valu('v_add_u32', t1, 6 * SL, t1))
    A(valu('v_mul_u32_u24', t2, 8448, KH))
    A(valu('v_sub_u32', t2, vK, t2))
    return ca, c

def kv_mode():
    c = []
    A = c.append
    A(salu('s_mov_b32', SA, sKb)); A(salu('s_mov_b32', off(SA, 1), off(sKb, 1)))
    A(salu('s_mov_b32', SB, sVb)); A(salu('s_mov_b32', off(SB, 1), off(sVb, 1)))
    A(salu('s_mov_b32', sNR, 0 if 'Z' in OPT['xl'] else 524288 + 96))
    A(salu('s_mov_b32', off(SA, 2), sNR)); A(salu('s_mov_b32', off(SB, 2), sNR))
    A(salu('s_mov_b32', sSTEP, 0 if OPT['samekv'] else 16384))
    A(salu('s_mov_b32', sOFF, 3 * 16384))
    A(salu('s_mov_b32', sCNT, 6))
    A(salu('s_mov_b32', sLAST, 0))
    A(salu('s_lshl_b32', sPO, sB, 5)); A(salu('s_add_u32', sPO, sPO, sW)); A(salu('s_lshl_b32', sPO, sPO, 10))
    return c

def w_dma(c):
    q = [setm0(sLDS, UP + (c % 4) * SL)]
    if c: q += [salu('s_add_u32', sWOFF, sWOFF, 262144), salu('s_and_b32', sWOFF, sWOFF, 0x3fffff)]
    else: q += [nop(0)]
    q += [dma(vW[k], SWQ, sWOFF, PC * k, OPT['wpol0'] if c < OPT['wn0'] else OPT['wpol'], tag=f'W{c}') for k in range(4)]
    return q

def x_dma(qtr, pad=True):
    q = []
    for rt in range(5):
        base = (rt * 16384 if rt < 4 else 8 * SL) + qtr * 4096
        q += [setm0(sT3, base)] + ([nop(0)] if pad else []) + [dma(vXdr[rt], SX, sXQ[qtr], 0, OPT['xpol'], tag=f'XD{qtr}')]
    return q

def w_reads(c, tag):
    q = []
    for nt in range(4):
        for rd in range(2):
            x = dsr('ds_read_b64_tr_b16', off(Wf(c % 2, nt), 2 * rd), vT[nt], (c % 4) * SL + rd * 2 * PC, tag=tag)
            x.cost = 6
            q.append(x)
    return q

def x_read(c, rt):
    kp, par = c // 2, c % 2
    if rt < 4: return dsr('ds_read_b128', Xf(c, rt), vXr[par], rt * 16384 + kp * 2048, tag=f'X{c}')
    return dsr('ds_read_b128', Xf(c, rt), vXr4[par], kp * 2048, tag=f'X{c}')

def resolve_partial(prev, body):
    xq = OPT['xq']
    if not xq: return body
    out = []
    for x in body:
        if 'G' in xq and x.kind == 'dma' and x.tag[0] == 'W': x = I(x.text.replace('s[16:19]', 's[56:59]'), 'dma', tag=x.tag) if 'Z' in xq else I('s_nop 0', 'dma', tag=x.tag)
        if 'K' in xq and x.kind == 'dma' and x.tag[0] in 'KV': x = I('s_nop 0', 'dma', tag=x.tag)
        if 'T' in xq and x.kind == 'dsr' and x.tag[0] == 'T': x = I('s_nop 0', 'dsr', tag=x.tag)
        if 'X' in xq and x.kind == 'dsr' and x.tag[0] == 'X': x = I('s_nop 0', 'dsr', tag=x.tag)
        if 'V' in xq and x.kind == 'valu' and ('v_mov_b32' in x.text or ', 0' in x.text): continue
        out.append(x)
    return out

def qphase(R):
    c = []
    A = c.append
    w1 = w_dma(1)
    c += w1[:-1]
    s2a, s2b = setup2(R)
    c += s2a + s2b
    c += stamp('b')
    c += w1[-1:] + x_dma(1)
    c += stamp('ab')
    if OPT['diag']:
        A(raw('s_load_dwordx16 s[52:67], s[76:77], 128', wr=regs('s52', 16))); A(wait(lg=0))
        A(salu('s_cmp_lg_u32', 's60', 0)); A(br('s_cbranch_scc1', 'L_diag'))
    A(need(vm='XD0'))
    c += stamp('b')
    A(bar())
    c += stamp()
    c += w_reads(0, 'T0')
    for rt in range(5): A(x_read(0, rt))
    for rt in range(5): A(x_read(1, rt))
    mf, memq, valq, pre = [], [], [], {}
    xr = [(cc, rt) for cc in range(2, 16) for rt in range(5)]
    xdone = None
    kvq = [('K', 0), ('V', 0), ('K', 1), ('V', 1)]
    early = {0: w_dma(2) + w_dma(3), 1: x_dma(2, False) + w_dma(4), 2: x_dma(3, False) + w_dma(5), 3: w_dma(6) + w_dma(7)}
    xper = {0: 5, 1: 5, 2: 5, 3: 5, 4: 10, 5: 10, 6: 10, 7: 10, 8: 10}
    xlim = {0: 4, 1: 4, 2: 8, 3: 8}
    for ch in range(16):
        g0 = ch * 20
        pre[g0] = [need(lg=f'T{ch}')] if ch else [need(lg='X0')]
        if ch == 2: pre[g0] = [need(vm='XD1', lg='T2'), bar()]
        if ch == 4: pre[g0] = [need(vm='XD3', lg='T4'), bar()] + stamp('b')
        for rt in range(5):
            for dt in range(4):
                mf.append(mfma(Qacc(dt, rt), Wf(ch % 2, dt), Xf(ch, rt), Qacc(dt, rt) if ch else 0))
        if ch + 1 < 16:
            memq.append((g0, need(vm=f'W{ch+1}')))
            memq += [(g0, x) for x in w_reads(ch + 1, f'T{ch+1}')]
        if ch in early: memq += [(g0, x) for x in early[ch]]
        elif ch + 4 < 16: memq += [(g0, x) for x in w_dma(ch + 4)]
        elif ch == 12 + OPT['kvlate']: memq += [(g0, x) for x in kv_tile_dma('K', 2, 'K2')]
        elif ch == 13 + OPT['kvlate']: memq += [(g0, x) for x in kv_tile_dma('V', 2, 'V2')]
        n = 0
        while xr and n < xper.get(ch, 11):
            cc, rt = xr[0]
            if cc >= xlim.get(ch, 16): break
            if cc * 5 + rt >= 64 and (cc * 5 + rt - 64) // 5 >= ch: break
            xr.pop(0); memq.append((g0, x_read(cc, rt))); n += 1
            if not xr: xdone = ch
        if xdone is not None and ch == xdone + 1:
            pre[g0] = [wait(lg=0), bar()]
        if ch in (0, 1, 2, 3, 4, 6, 9, 12): pre[g0] += stamp('c')
        if ch in (0, 2, 4, 8, 12): pre[g0] += stamp('d')
        if xdone is not None and ch > xdone and kvq and ch >= OPT['kv0']:
            wh, tl = kvq.pop(0)
            memq += [(g0, x) for x in kv_tile_dma(wh, tl, f'{wh}{tl}')]
    print('xdone', xdone)
    assert not kvq
    for i in range(80): valq.append((0, valu('v_mov_b32', vr(24 + i), 0)))
    for s in vSUM.values(): valq.append((0, valu('v_mov_b32', s, 0)))
    for i in range(80): valq.append((8 * 20 + 4, valu('v_accvgpr_write_b32', ar(i), 0)))
    for i in range(8): valq.append((13 * 20 + 4, valu('v_accvgpr_write_b32', ar(224 + i), 0)))
    valq.append((13 * 20 + 4, valu('v_mov_b32', vPF, 0x3f803f80)))
    for i in range(4): valq.append((13 * 20 + 4, valu('v_accvgpr_write_b32', off(ONES, i), vPF)))
    for k in range(4):
        valq.append((13 * 20 + 4, valu('v_accvgpr_write_b32', ar(aDwo + k), vDwo[k])))
        valq.append((13 * 20 + 4, valu('v_accvgpr_write_b32', ar(aDkv + k), vD[k])))
    for x in [salu('s_mul_i32', sGRP, sGRP, OPT['cstr']), salu('s_add_u32', sGRP, sGRP, OPT['cbase']),
              salu('s_mov_b32', SD, 's76'), salu('s_and_b32', off(SD, 1), 's77', 0xffff),
              salu('s_add_u32', off(SD, 2), sGRP, 4), salu('s_mov_b32', sTODO, 0),
              salu('s_mul_i32', sFL, sW, 4 * OPT['MB']), salu('s_lshl_b32', sT1, sPART, 2), salu('s_add_u32', sFL, sFL, sT1),
              salu('s_add_u32', sFL, sFL, 16 * 81920)]:
        valq.append((13 * 20 + 4, x))
    body = resolve_partial(c, weave(mf, memq, valq, pre, period=20))
    c += body
    c += stamp('acdef')
    A(salu('s_mov_b32', sT1, f32(math.log2(math.e) / math.sqrt(128.0))))
    A(salu('s_mov_b32', sT0, sT1))
    A(nop(5))
    for rt in range(5):
        for dt in range(4):
            a = Qacc(dt, rt)
            for h in range(2):
                A(valu('v_pk_mul_f32', off(a, 2 * h), off(a, 2 * h), ('s[44:45]', ['s44', 's45']), w=2))
        for dt in range(4):
            a = Qacc(dt, rt); d = STG + (rt * 4 + dt) * 2
            for h in range(2):
                A(valu('v_cvt_pk_bf16_f32', vr(d + h), off(a, 2 * h), off(a, 2 * h + 1)))
        for dt in range(4):
            j = rt * 2 + dt // 2
            A(dsw('ds_write_b64', t0, vr(STG + (rt * 4 + dt) * 2), (j // 4) * SL + (j % 4) * 1024 + (dt % 2) * 512, tag='Qw'))
    for nt in range(4): A(valu('v_subrev_u32', vT[nt], UP, vT[nt]))
    A(need(vm='V0', lg='Qw')); A(bar())
    return c

def kv_frag_reads(i, which):
    j = i % 4; b = i % 2
    q = []
    if which == 'K':
        a = vK if j < 2 else vK2
        for t in range(2):
            for cc in range(4):
                q.append(dsr('ds_read_b128', Kf(b, t, cc), a, (2 * (j % 2)) * SL + t * 512 + cc * 64, tag='Kr'))
    else:
        for ld in range(8):
            a = (vVa if j < 2 else vVa2) if ld < 4 else (vVb if j < 2 else vVb2)
            for rd in range(2):
                q.append(dsr('ds_read_b64_tr_b16', off(Vf(b, ld), 2 * rd), a, (2 * (j % 2) + 1) * SL + rd * 512 + (ld % 4) * 32, tag='Vr'))
    return q

def state_init():
    c = []
    for i in range(32): c.append(valu('v_mov_b32', off(Vf(1, 0), i), 0))
    for i in range(8): c.append(valu('v_mov_b32', off(Sb(-1, 0), i), f32(-1e30)))
    for i in range(4): c.append(valu('v_mov_b32', off(Pb(-2), i), 0))
    c.append(valu('v_mov_b32', 'v231', 1))
    return c

def atom(op, d, voff, srd, soff):
    return I(f'{op} {d}, {voff}, {rng(srd,4)}, {soff} offen sc0 sc1', 'vld', rd=[d, voff] + regs(srd, 4) + ([soff] if isreg(soff) else []), wr=[d])

def flag_addr(d, tmp):
    return [valu('v_lshrrev_b32', tmp, 6, vL16), valu('v_mul_u32_u24', d, OPT['MB'] // 16, vL16), valu('v_lshl_add_u32', d, tmp, 24, d)]

def max_finish():
    c = []
    A = c.append
    for op in ('v_permlane16_swap_b32', 'v_permlane32_swap_b32'):
        for rt in range(5): A(valu('v_mov_b32', off(Mn(rt), 1), Mn(rt)))
        for rt in range(5): A(perm(op, Mn(rt), off(Mn(rt), 1)))
        for rt in range(5): A(valu('v_max_f32', Mn(rt), Mn(rt), off(Mn(rt), 1)))
    for rt in range(5):
        for i in (3, 2, 1, 0): A(valu('v_mul_f32', off(Mn(rt), i), -1.0, Mn(rt)))
    return c

def prologue():
    c = []
    A = c.append
    for cc in range(4): A(dsr('ds_read_b128', Kf(1, 0, cc), t2, cc * 64, tag='Km'))
    for rt in range(5):
        for cc in range(4):
            j = rt * 2 + cc % 2
            A(dsr('ds_read_b128', Qf(rt, cc), t1, (cc // 2) * 8448 + (j // 4) * SL + (j % 4) * 1024, tag=f'Qr{rt}'))
    memq = [(0, x) for x in kv_frag_reads(0, 'K') + kv_frag_reads(0, 'V')]
    for x in memq: x[1].cost = 6
    mf, pre = [], {}
    for rt in range(5):
        pre[rt * 4] = [need(lg=f'Qr{rt}')]
        for cc in range(4): mf.append(mfma(Mn(rt), Kf(1, 0, cc), Qf(rt, cc), Mn(rt) if cc else 0))
    c += weave(mf, memq, [(0, x) for x in state_init() + flag_addr('v230', 'v229') + [valu('v_mov_b32', 'v229', 0)]], pre)
    A(need(vm='V1', lg='Vr')); A(bar())
    c += kv_tile_dma('K', 3, 'K3') + kv_tile_dma('V', 3, 'V3')
    A(atom('buffer_atomic_swap', 'v229', 'v230', SWS, sFL))
    for rt in range(5): A(valu('v_max3_f32', Mn(rt), Mn(rt), off(Mn(rt), 1), off(Mn(rt), 2)))
    for rt in range(5): A(valu('v_max_f32', Mn(rt), Mn(rt), off(Mn(rt), 3)))
    c += max_finish()
    c += stamp('adef')
    if OPT['bst']: A(raw('s_mov_b64 s[98:99], 1'))
    A(br('s_branch', 'L_loop_in'))
    return c

GX = [2, 7, 12, 18, 23, 29, 35, 40]
RX = [0, 1, 3, 4, 5, 6, 9, 10]
TX = [13, 14, 15, 16, 17, 19, 21, 22, 24, 26, 27, 28, 30, 32, 33, 36]

def softmax_items(k):
    rt = k % 5
    E = [valu('v_exp_f32', off(Sb(k, 0), n), off(Sb(k, 0), n)) for n in range(8)]
    C = [valu('v_cvt_pk_bf16_f32', off(Pb(k), n), off(Sb(k, 0), 2 * n), off(Sb(k, 0), 2 * n + 1)) for n in range(4)]
    Ad = [valu('v_add_f32', vSUM[rt], vSUM[rt], off(Sb(k, 0), n)) for n in range(8)] if rt in vSUM else []
    return E, C, Ad

def pv(k, vb, order=range(8)):
    rt = k % 5
    m = [mfma(Oacc(rt, ld), Vf(vb, ld), Pb(k), Oacc(rt, ld)) for ld in order]
    if rt in RS: m.append(mfma(RS[rt], ONES, Pb(k), RS[rt]))
    return m

def block(j):
    out = [cmt(f'block {j}')]
    mem = {}
    for x, i in zip(RX, kv_frag_reads(j + 1, 'K')): mem[x] = i
    for x, i in zip(TX, kv_frag_reads(j + 1, 'V')): mem[x] = i
    for n, x in enumerate(GX):
        mem[x] = dma(vD[n % 4], SA if n < 4 else SB, sOFF, PC * (n % 4), OPT['kvpol'])
    assert len(mem) == 32
    if j == 1 and OPT['lpf']: mem[38] = vld('v228', 1, vL16, SWO, sPO, 0, OPT['opol'])
    sc = {1: [salu('s_add_u32', sOFF, sOFF, sSTEP)], 2: [setm0(sLDS, 2 * j * SL)], 20: [setm0(sLDS, (2 * j + 1) * SL)],
          24: [wait(lg=8)]}
    if j == 2: sc[0] = []
    if j == 1:
        sc[38] = [salu('s_mov_b32', off(SA, 2), sNR)]
    if j == 2:
        sc[10] = [salu('s_mov_b32', off(SB, 2), sNR)]
        if OPT['lpf']: sc[12] = [salu('s_add_u32', sPO, sPO, 4096)]
    if j == 3: sc[39] = [salu('s_sub_u32', sCNT, sCNT, 1)]
    cq, aq = [], []
    xi = ei = 0
    for s in range(5):
        kq, ke, kp = 5 * j + s, 5 * j + s - 1, 5 * j + s - 2
        if OPT['qkord']: mf = [mfma(Sb(kq, t), Kf(j % 2, t, cc), Qf(s, cc), Sb(kq, t) if cc else Mn(s)) for cc in range(4) for t in range(2)]
        else: mf = [mfma(Sb(kq, t), Kf(j % 2, t, cc), Qf(s, cc), Sb(kq, t) if cc else Mn(s)) for t in range(2) for cc in range(4)]
        mf += pv(kp, (j - 1) % 2 if s < 2 else j % 2)
        E, C, Ad = softmax_items(ke)
        for g, m in enumerate(mf):
            if s == 0 and g == 0 and j == 0:
                pass
            out.append(m)
            if g % 2 == 0 and g < 16:
                n = g // 2
                if s == 0 and g == 0:
                    out += [wait(vm=16, lg=0), bar()]
                    if j == 0: out.append(label('L_loop_mid'))
                    if OPT['bst']:
                        out += [raw('v_mov_b32 v242, s100\n    v_cndmask_b32 v243, v243, v242, s[98:99]', 'valu', rd=['s100'], wr=['v243']),
                                raw('s_memtime s[100:101]' if OPT['bst'] == 1 else 's_memrealtime s[100:101]'), raw('s_lshl_b64 s[98:99], s[98:99], 1')]
                out += sc.get(ei, [])
                out.append(E[n]); ei += 1
                if Ad: aq.append(Ad[n])
                if n % 2 == 1: cq.append(C[n // 2])
            else:
                nv = 2
                if xi in mem: out.append(mem[xi]); nv = 1
                xi += 1
                for _ in range(nv):
                    if cq: out.append(cq.pop(0))
                    elif aq: out.append(aq.pop(0))
    assert xi == 42 and ei == 40 and not cq and not aq, (xi, ei, len(cq), len(aq))
    xl = OPT['xl']
    if 'G' in xl: out = [x for x in out if x.kind != 'dma']
    if 'B' in xl: out = [x for x in out if x.kind != 'bar']
    if 'R' in xl: out = [x for x in out if x.kind != 'dsr']
    if 'E' in xl: out = [x for x in out if x.kind != 'trans']
    if 'V' in xl: out = [x for x in out if x.kind != 'valu']
    if 'W' in xl: out = [x for x in out if x.kind != 'wait']
    if 'w' in xl: out = [wait(lg=0) if (x.kind == 'wait' and x.arg[0] == 16) else x for x in out]
    if 'H' in xl:
        n = 0; o2 = []
        for x in out:
            if x.kind == 'dma':
                n += 1
                if n % 2 == 0: continue
            o2.append(x)
        out = [wait(vm=8, lg=0) if (x.kind == 'wait' and x.arg[0] == 16) else x for x in o2]
    return out

def switch_wo():
    c = []
    A = c.append
    A(salu('s_cmp_lg_u32', sLAST, 0)); A(br('s_cbranch_scc1', 'L_epi'))
    A(salu('s_mov_b32', sLAST, 1))
    A(salu('s_mov_b32', sCNT, 0))
    A(salu('s_mov_b32', SA, SWO)); A(salu('s_mov_b32', off(SA, 1), off(SWO, 1))); A(salu('s_mov_b32', off(SA, 2), 262144))
    A(salu('s_add_u32', SB, SWO, 32768)); A(salu('s_addc_u32', off(SB, 1), off(SWO, 1), 0)); A(salu('s_mov_b32', off(SB, 2), 262144 - 32768))
    A(salu('s_mov_b32', sSTEP, 65536))
    A(salu('s_mov_b32', sOFF, -65536 & 0xffffffff))
    A(salu('s_mov_b32', sNR, 0))
    for k in range(4): A(valu('v_accvgpr_read_b32', vD[k], ar(aDwo + k)))
    A(salu('s_or_b32', sT1, sW, sPASS))
    A(br('s_cbranch_scc1', 'L_loop'))
    A(atom('buffer_atomic_add', 'v231', vL16, SD, sGRP))
    if OPT['pf']:
        A(salu('s_lshl_b32', sT1, sB, 15))
        A(salu('s_lshl_b32', sT2, sW, 13))
        A(salu('s_add_u32', sT1, sT1, sT2))
        A(valu('v_lshlrev_b32', t0, 3, vL16))
        for i in range(OPT['pf']): A(vld(off(t1, i), 1, t0, SWO, sT1, 64 * i, OPT['opol']))
    A(br('s_branch', 'L_loop'))
    return c

def epilogue():
    c = [label('L_epi')]
    A = c.append
    if OPT['bst']:
        A(wait(lg=0)); A(raw('v_mov_b32 v242, s100\n    v_cndmask_b32 v243, v243, v242, s[98:99]', 'valu', rd=['s100'], wr=['v243']))
        A(raw('s_memtime s[100:101]' if OPT['bst'] == 1 else 's_memrealtime s[100:101]')); A(raw('s_lshl_b64 s[98:99], s[98:99], 1')); A(wait(lg=0)); A(nop(3))
        A(raw('v_mov_b32 v242, s100\n    v_cndmask_b32 v243, v243, v242, s[98:99]', 'valu', rd=['s100'], wr=['v243'])); A(nop(1))
        A(valu('v_accvgpr_write_b32', 'a248', 'v243'))
    c += stamp('aef')
    A(wait(vm=0))
    A(valu('v_add_u32', t0, UP, vSH))
    A(valu('v_add_u32', t2, 8 * SL, vSH))
    def xw(rt, jd):
        if rt < 4: return dsw('ds_write_b128', t0, Oacc(rt, 4 + jd), rt * SL + jd * 1024, tag='Ow')
        return dsw('ds_write_b128', t2, Oacc(rt, 4 + jd), jd * 1024, tag='Ow')
    E, C, Ad = softmax_items(19)
    order = [4, 5, 6, 7, 0, 1, 2, 3]
    mf = pv(18, 1, order)
    duty = [rfl(sT1, 'v231'), nop(0), salu('s_and_b32', sT2, sT1, 15), salu('s_cmp_eq_u32', sT2, 15), salu('s_cselect_b32', sT1, sT1, 0),
            salu('s_lshr_b32', sT1, sT1, 16), salu('s_or_b32', sTODO, sTODO, sT1)]
    for g, m in enumerate(mf):
        A(m)
        if duty: A(duty.pop(0))
        if g < 8: A(E[g])
        if g >= 2 and g % 2 == 0: A(C[g // 2 - 1])
    ws = [xw(rt, jd) for rt in range(4) for jd in range(4)]
    A(ws.pop(0)); A(ws.pop(0))
    for g, m in enumerate(pv(19, 1, order)):
        A(m); A(ws.pop(0)); A(Ad[g])
    for x in ws: A(x)
    LS = 184
    for rt in RS: A(valu('v_accvgpr_read_b32', vr(LS + rt), RS[rt]))
    for jd in range(4): A(xw(4, jd))
    for op in ('v_permlane16_swap_b32', 'v_permlane32_swap_b32'):
        for rt, s in vSUM.items(): A(valu('v_mov_b32', vr(LS + rt), s))
        A(nop(0))
        for rt, s in vSUM.items(): A(perm(op, s, vr(LS + rt)))
        for rt, s in vSUM.items(): A(valu('v_add_f32', s if op.startswith('v_permlane16') else vr(LS + rt), s, vr(LS + rt)))
    A(salu('s_lshl_b32', sT1, sW, 11))
    A(salu('s_add_u32', sT1, sT1, LX))
    A(salu('s_xor_b32', sT2, sT1, 2048))
    A(valu('v_add_u32', t0, sT1, vL16))
    A(valu('v_add_u32', t2, sT2, vL16))
    A(dsw('ds_write_b128', t0, vr(LS), 0)); A(dsw('ds_write_b32', t0, vr(LS + 4), 1024))
    A(valu('v_add_u32', t0, UP, vSHP))
    A(valu('v_add_u32', t1, 8 * SL, vSHP))
    A(wait(lg=0)); A(bar())
    c += stamp()
    LP = 192
    A(dsr('ds_read_b128', vr(LP), t2, 0, tag='l')); A(dsr('ds_read_b32', vr(LP + 4), t2, 1024, tag='l'))
    def TH(rt, jd): return vr(104 + (rt * 4 + jd) * 4)
    for rt in range(5):
        for jd in range(4):
            if rt < 4: A(dsr('ds_read_b128', TH(rt, jd), t0, rt * SL + jd * 1024, tag=f'Or{rt}'))
            else: A(dsr('ds_read_b128', TH(rt, jd), t1, jd * 1024, tag=f'Or{rt}'))
        if rt == 2:
            A(need(lg='l'))
            for r in range(5): A(valu('v_add_f32', vr(LS + r), vr(LS + r), vr(LP + r)))
            for r in range(5): A(valu('v_rcp_f32', vr(200 + 2 * r), vr(LS + r)))
            A(salu('s_mov_b32', sT1, f32(2.0 ** 24)))
            A(raw('s_mov_b64 s[46:47], 0', wr=['s46', 's47']))
            for r in range(5):
                A(vcmp('v_cmp_nge_f32', 'vcc', sT1, vr(LS + r)))
                A(nop(0))
                A(raw('s_or_b64 s[46:47], s[46:47], vcc', rd=['vcc', 's46', 's47'], wr=['s46', 's47']))
            A(salu('s_or_b32', sT2, sT2, sT3))
            A(salu('s_lshl_b32', sT1, sW, 2))
            A(salu('s_add_u32', sT1, sT1, LX + 8192))
            A(valu('v_mov_b32', vr(LP), sT1))
            A(valu('v_mov_b32', vr(LP + 1), sT2))
            A(dsw('ds_write_b32', vr(LP), vr(LP + 1), 0))
    for rt in range(5):
        A(need(lg=f'Or{rt}'))
        for jd in range(4):
            for h in range(2):
                A(valu('v_pk_add_f32', off(Oacc(rt, jd), 2 * h), off(Oacc(rt, jd), 2 * h), off(TH(rt, jd), 2 * h), w=2))
        for jd in range(4):
            for h in range(2):
                A(valu('v_pk_mul_f32', off(Oacc(rt, jd), 2 * h), off(Oacc(rt, jd), 2 * h), vr(200 + 2 * rt), w=2, mods='op_sel_hi:[1,0]'))
        for jd in range(4):
            for h in range(2):
                A(valu('v_cvt_pk_bf16_f32', vr(STG + rt * 8 + jd * 2 + h), off(Oacc(rt, jd), 2 * h), off(Oacc(rt, jd), 2 * h + 1)))
        for u in range(2):
            j = rt * 2 + u
            A(dsw('ds_write_b128', t0, vr(STG + j * 4), (j // 4) * SL + (j % 4) * 1024))
    A(valu('v_add_u32', t0, UP, vL16))
    A(valu('v_mov_b32', t1, LX + 8192))
    A(wait(lg=0)); A(bar())
    c += stamp('ae')
    return c

def Of(u, rt):
    f = u * 5 + rt
    return ar(4 * f) if f < 20 else ar(160 + 4 * (f - 20))

def ophase():
    c = []
    A = c.append
    def o_read(u, rt):
        wp, ul = u // 2, u % 2
        j = rt * 2 + ul
        return dsr('ds_read_b128', Of(u, rt), t0, (1 - wp % 2) * 8448 + (wp // 2) * 4224 + (j // 4) * SL + (j % 4) * 1024, tag=f'G{u}')
    def wo_dma(ch):
        q = [setm0(sLDS, (ch % 4) * SL), salu('s_mov_b32', sSO, (ch % 8) * 32768 + (ch // 8) * 128)]
        q += [dma(vD[k], SWO, sSO, PC * k, OPT['opol'], tag=f'W{ch}') for k in range(4)]
        return q
    def acc(half, nt, rt): return vr((24 if half == 0 else 104) + (rt * 4 + nt) * 4)
    A(dsr('ds_read_b128', vr(252), t1, 0, tag='vote'))
    c += w_reads(0, 'T0')
    for rt in range(5): A(o_read(0, rt))
    A(need(lg='vote'))
    A(valu('v_or3_b32', vr(252), vr(252), vr(253), vr(254)))
    A(valu('v_or_b32', vr(252), vr(252), vr(255)))
    A(salu('s_lshl_b32', sT2, sPART, 2))
    A(salu('s_add_u32', sT2, sT2, sW))
    A(salu('s_mul_i32', sT2, sT2, 20480))
    A(rfl(sT1, vr(252)))
    A(valu('v_add_u32', t1, sT2, vL16))
    A(salu('s_andn2_b32', sT1, sT1, sPASS))
    if OPT['xl'] or OPT['xq']: A(salu('s_cmp_eq_u32', 0, 1))
    A(br('s_cbranch_scc1', 'L_fallback'))
    for rt in range(5): A(o_read(1, rt))
    sBLK = [0, 's48', 's49', 's50', 's51']
    for i in range(1, 5): A(salu('s_mov_b32', sBLK[i], i * 4096))
    mf, memq, valq, pre = [], [], [], {}
    orr = [(u, rt) for u in range(2, 8) for rt in range(5)]
    def fin(half, rt, ntp, g):
        d = STG + (rt * 2 + ntp) * 4
        v = []
        for q in range(2):
            a = acc(half, 2 * ntp + q, rt)
            for h in range(2): v.append(valu('v_cvt_pk_bf16_f32', vr(d + 2 * q + h), off(a, 2 * h), off(a, 2 * h + 1)))
        blk = half * 10 + rt * 2 + ntp
        st = [vst(vr(d), 4, t1, SWS, sBLK[blk // 4], (blk % 4) * 1024, OPT['stpol'], tag='st')]
        return v, st
    f0 = [fin(0, rt, ntp, 0) for rt in range(5) for ntp in range(2)]
    for ch in range(16):
        g0 = ch * 20; half, u = ch // 8, ch % 8
        pre[g0] = [need(lg=f'T{ch}')] if ch else [need(lg='G0')]
        for rt in range(5):
            for nt in range(4):
                mf.append(mfma(acc(half, nt, rt), Wf(ch % 2, nt), Of(u, rt), acc(half, nt, rt) if u else 0))
        if ch + 1 < 16:
            if ch + 1 >= 4: memq.append((g0, need(vm=f'W{ch+1}')))
            memq += [(g0, x) for x in w_reads(ch + 1, f'T{ch+1}')]
        if ch + 4 < 16: memq += [(g0, x) for x in wo_dma(ch + 4)]
        for _ in range(10):
            if orr: memq.append((g0, o_read(*orr.pop(0))))
        if ch - OPT['f0ch'] in (0, 1):
            for v, st in f0[(ch - OPT['f0ch']) * 5:(ch - OPT['f0ch'] + 1) * 5]: memq += [(g0, x) for x in st]
        if ch == 12: memq.append((g0, vld(t2, 1, vL16, SD, sGRP, 0, 'sc1', tag='cnt')))
    for v, st in f0: valq += [(8 * 20 + 4, x) for x in v]
    valq += [(12 * 20, x) for x in reduce_setup()]
    valq += [(15 * 20 + OPT['fl0'], x) for x in [wait(vm=0), vst(vF1, 1, vFL, SWS, sFL, 0, 'sc1'), rfl(sCNT, t2)]]
    f1 = [fin(1, rt, ntp, 0) for rt in range(5) for ntp in range(2)]
    for n, (v, st) in enumerate(f1[:6]):
        valq += [(15 * 20 + 4 * (n // 2) + 8, x) for x in v + st]
    body, mleft, vleft = weave(mf, memq, valq, pre, flush=False, period=20)
    assert not mleft
    pos = {id(x): i for i, x in enumerate(body)}
    for v, st in f0: assert pos[id(st[-1])] > max(pos[id(x)] for x in v)
    c += body + [x for _, x in vleft]
    for v, st in f1[6:]: c += v + st
    c += stamp('aef')
    c += reduce_tail()
    return c

SO = SB
A1, A2 = 'v24', 'v28'
vLD, vLD2, vST, vST2, vFL, vPL, vF1, vF2, vP = ['v%d' % i for i in range(32, 41)]
soA, soS = ['s52', 's53', 's54', 's55'], ['s56', 's57', 's58', 's59']
sMB, sOA, sOS, sRL = 's60', 's61', 's62', 's63'
def job_setup(sl, rl):
    c = []
    A = c.append
    A(salu('s_lshr_b32', sT1, sl, 2)); A(salu('s_and_b32', sT2, sl, 3))
    A(salu('s_mul_i32', sMB, sl, OPT['MB'])); A(salu('s_add_u32', sMB, sMB, 16 * 81920))
    A(salu('s_mul_i32', sT3, sT1, 20480)); A(salu('s_lshl_b32', sT0, sT2, 8)); A(salu('s_add_u32', sT3, sT3, sT0))
    A(salu('s_lshl_b32', sT1, sT1, 8)); A(salu('s_lshl_b32', sT2, sT2, 3)); A(salu('s_add_u32', sT1, sT1, sT2))
    A(salu('s_lshl_b32', sT2, rl, 15)); A(salu('s_add_u32', sOA, sT1, sT2))
    A(salu('s_lshl_b32', sT2, rl, 6)); A(salu('s_add_u32', sOS, sT1, sT2)); A(salu('s_add_u32', sOS, sOS, 131072))
    A(salu('s_lshl_b32', sT2, rl, 11)); A(salu('s_add_u32', soA[0], sT3, sT2))
    A(salu('s_lshr_b32', sT2, rl, 1)); A(salu('s_lshl_b32', sT2, sT2, 13)); A(salu('s_lshl_b32', sT0, rl, 10))
    A(salu('s_add_u32', sT2, sT2, sT0)); A(salu('s_add_u32', sT2, sT2, 8192)); A(salu('s_add_u32', soS[0], sT3, sT2))
    for i in range(1, 4):
        A(salu('s_add_u32', soA[i], soA[0], i * 4 * 81920)); A(salu('s_add_u32', soS[i], soS[0], i * 4 * 81920))
    return c

def reduce_setup():
    c = []
    A = c.append
    N, G = 'v41', 'v42'
    A(valu('v_bfe_u32', N, vL16, 4, 4))
    A(valu('v_lshrrev_b32', G, 8, vL16))
    A(salu('s_mul_i32', sT1, sB, 163840)); A(salu('s_lshl_b32', sT2, sBR, 10)); A(salu('s_add_u32', sT1, sT1, sT2))
    if OPT['sout']:
        A(salu('s_add_u32', SO, sT1, 70 << 20)); A(salu('s_add_u32', SO, 's78', SO)); A(salu('s_addc_u32', off(SO, 1), 's79', 0)); A(salu('s_and_b32', off(SO, 1), off(SO, 1), 0xffff))
    else:
        A(salu('s_add_u32', SO, 's68', sT1)); A(salu('s_addc_u32', off(SO, 1), 's69', 0)); A(salu('s_and_b32', off(SO, 1), off(SO, 1), 0xffff))
    A(salu('s_sub_u32', off(SO, 2), 8 * 163840, sT1))
    c += flag_addr(vFL, vPL)
    A(valu('v_lshlrev_b32', vPL, 2, N))
    A(valu('v_mov_b32', vF1, 1)); A(valu('v_mov_b32', vF2, 2))
    A(valu('v_mul_u32_u24', vLD, 81920, G))
    A(valu('v_lshl_add_u32', vLD, N, 4, vLD))
    A(valu('v_add_u32', vLD2, 10240, vLD))
    A(valu('v_lshlrev_b32', vST, 5, G))
    A(valu('v_lshl_add_u32', vST, N, 11, vST))
    A(valu('v_lshrrev_b32', G, 1, G))
    A(valu('v_lshl_add_u32', vST2, G, 28, vST))
    A(valu('v_and_b32', G, 1, N))
    A(valu('v_lshlrev_b32', G, 4, G))
    A(valu('v_mov_b32', 'v43', 0x3f80))
    A(valu('v_lshlrev_b32', G, G, 'v43'))
    A(valu('v_lshrrev_b32', N, 1, N))
    for d in range(8): A(vcmp('v_cmp_eq_u32', f's{52+2*d}', d, N))
    for d in range(8): A(valu('v_cndmask_b32', off(A1, d), 0, G, (f's[{52+2*d}:{53+2*d}]', [f's{52+2*d}', f's{53+2*d}'])))
    c += job_setup(sPART, sW)
    A(salu('s_mov_b32', sRL, 0))
    A(salu('s_mov_b32', sSTEP, 0))
    return c

def reduce_tail():
    c = []
    A = c.append
    poll = lambda: vld(vP, 1, vPL, SWS, sMB, 0, 'sc1')
    def allge(n):
        A(vcmp('v_cmp_le_u32', 'vcc', n, vP)); A(salu('s_add_u32', sSTEP, sSTEP, 4096))
        A(raw('s_cselect_b64 s[44:45], -1, vcc', rd=['vcc'], wr=['s44', 's45']))
        A(raw('s_cmp_eq_u64 s[44:45], -1', rd=['s44', 's45'], wr=['scc']))
    A(poll())
    A(salu('s_and_b32', sT1, sCNT, 15))
    A(wait(vm=0))
    A(vst(vF2, 1, vFL, SWS, sFL, 0, 'sc1'))
    c += stamp('ef')
    if OPT['stamps']: A(salu('s_and_b32', sT1, sCNT, 15))
    A(br('s_cbranch_scc1', 'L_late'))
    A(br('s_branch', 'L_pa1'))
    A(label('L_pa'))
    if OPT['slp']: A(raw(f"s_sleep {OPT['slp']}"))
    A(poll()); A(wait(vm=0))
    A(label('L_pa1'))
    allge(1)
    A(br('s_cbranch_scc0', 'L_pa'))
    def DA(x, i): return vr(60 + (x * 4 + i) * 4)
    def DB(x, i): return vr(104 + (x * 4 + i) * 4)
    def acc(p): return vr(44 + 4 * p)
    for x in range(2):
        for i in range(4): A(vld(DA(x, i), 4, vLD, SWS, soA[i], x * 1024, OPT['ldpol']))
    A(label('L_pb'))
    if OPT['slp']: A(raw(f"s_sleep {OPT['slp']}"))
    A(poll()); A(wait(vm=0))
    allge(2)
    A(br('s_cbranch_scc0', 'L_pb'))
    c += stamp('ef')
    body = []
    for x in range(2):
        for i in range(4): body.append(vld(DB(x, i), 4, vLD2, SWS, soA[i], x * 1024, OPT['ldpol'], tag=f'r{x}{i}'))
    for i in range(4): body.append(vld(DB(2, i), 4, vLD, SWS, soS[i], 0, OPT['ldpol'], tag=f'r2{i}'))
    def fin(p):
        return [valu('v_cvt_pk_bf16_f32', vr(92 + 2 * p + h), off(acc(p), 2 * h), off(acc(p), 2 * h + 1)) for h in range(2)]
    for x in range(2):
        for i in range(4): body.append(mfma(acc(0), A2 if x else A1, DA(x, i), acc(0) if (x or i) else 0))
    body += [nop(7)] + fin(0) + [vst(vr(92), 2, vST, SO, sOA, 0)]
    for x in range(3):
        for i in range(4):
            body.append(need(vm=f'r{x}{i}'))
            body.append(mfma(acc(1 + x // 2), A2 if x == 1 else A1, DB(x, i), acc(1 + x // 2) if (x == 1 or i) else 0))
    body += fin(1) + [vst(vr(94), 2, vST, SO, sOA, 128), salu('s_cmp_eq_u32', sTODO, 0), nop(3)] + fin(2) + [vst(vr(96), 2, vST2, SO, sOS, 0)]
    c += body
    A(br('s_cbranch_scc0', 'L_more'))
    A(label('L_fin'))
    return c

def reduce_rare():
    c = []
    A = c.append
    A(label('L_more'))
    A(raw(f's_ff1_i32_b32 {sOFF}, {sTODO}', rd=[sTODO], wr=[sOFF]))
    c += job_setup(sOFF, sRL)
    A(salu('s_add_u32', sRL, sRL, 1)); A(salu('s_and_b32', sRL, sRL, 3))
    A(br('s_cbranch_scc1', 'L_pa'))
    A(raw(f's_bitset0_b32 {sTODO}, {sOFF}', rd=[sTODO, sOFF], wr=[sTODO]))
    A(br('s_branch', 'L_pa'))
    A(label('L_late'))
    A(salu('s_mov_b32', sNR, OPT['limit']))
    A(label('L_late1'))
    A(vld(vP, 1, vL16, SD, sGRP, 0, 'sc1')); A(wait(vm=0)); A(rfl(sT1, vP)); A(nop(0))
    A(salu('s_and_b32', sT1, sT1, 15))
    A(br('s_cbranch_scc0', 'L_pa'))
    A(salu('s_sub_u32', sNR, sNR, 1))
    A(br('s_cbranch_scc0', 'L_late1'))
    A(salu('s_lshl_b32', sT1, 0x10000, sPART))
    A(valu('v_mov_b32', vP, sT1))
    A(atom('buffer_atomic_or', vP, vL16, SD, sGRP)); A(wait(vm=0)); A(rfl(sT1, vP)); A(nop(0))
    A(salu('s_and_b32', sT1, sT1, 15))
    A(br('s_cbranch_scc0', 'L_pa'))
    A(br('s_branch', 'L_fin'))
    return c

def fallback():
    c = [label('L_fallback')]
    A = c.append
    A(wait(vm=0, lg=0)); A(bar())
    A(salu('s_mov_b32', sPASS, -1))
    c += kv_mode()
    for k in range(4): A(valu('v_accvgpr_read_b32', vD[k], ar(aDkv + k)))
    for rt in range(5): A(valu('v_mov_b32', Mn(rt), 0xff800000))
    A(salu('s_and_b32', sT1, sW, 1))
    A(salu('s_mul_i32', sT1, sT1, 8448))
    A(valu('v_subrev_u32', t2, sT1, vK))
    A(salu('s_mov_b32', sSO, 0))
    A(setm0(sLDS, 0))
    A(label('L_fb_loop'))
    A(nop(0))
    for k in range(4): A(dma(vD[k], SA, sSO, PC * k))
    A(wait(vm=0)); A(bar())
    for hf in range(2):
        for t in range(2):
            for cc in range(4): A(dsr('ds_read_b128', Kf(hf, t, cc), t2, hf * 8448 + t * 512 + cc * 64))
    A(wait(lg=0)); A(bar())
    for rt in range(5):
        for hf in range(2):
            for t in range(2):
                for cc in range(4): A(mfma(Sb(hf, t), Kf(hf, t, cc), Qf(rt, cc), Sb(hf, t) if cc else 0))
        A(nop(7))
        for n in range(0, 16, 2): A(valu('v_max3_f32', Mn(rt), Mn(rt), off(Sb(0, 0), n), off(Sb(0, 0), n + 1)))
    A(salu('s_add_u32', sSO, sSO, 16384))
    A(salu('s_cmp_lt_u32', sSO, 524288))
    A(br('s_cbranch_scc1', 'L_fb_loop'))
    c += max_finish()
    for i in range(4):
        c += kv_tile_dma('K', i, 'x') + kv_tile_dma('V', i, 'x')
    for i in range(80): A(valu('v_mov_b32', vr(24 + i), 0))
    for s in vSUM.values(): A(valu('v_mov_b32', s, 0))
    for i in range(80): A(valu('v_accvgpr_write_b32', ar(i), 0))
    for i in range(8): A(valu('v_accvgpr_write_b32', ar(224 + i), 0))
    A(valu('v_mov_b32', t0, 0x3f803f80))
    for i in range(4): A(valu('v_accvgpr_write_b32', off(ONES, i), t0))
    c += state_init()
    A(wait(vm=0)); A(bar())
    c += kv_frag_reads(0, 'K') + kv_frag_reads(0, 'V')
    A(wait(lg=0)); A(bar())
    A(br('s_branch', 'L_loop_in'))
    return c

def stamps_out():
    if OPT['bst']:
        c = []
        A = c.append
        A(salu('s_add_u32', 's4', 's78', 66 << 20)); A(salu('s_addc_u32', 's5', 's79', 0)); A(salu('s_and_b32', 's5', 's5', 0xffff))
        A(salu('s_mov_b32', 's6', 1 << 20)); A(salu('s_mov_b32', 's7', 0x20000))
        A(salu('s_lshl_b32', sT1, 's2', 10))
        A(valu('v_lshlrev_b32', t0, 2, 'v0'))
        A(valu('v_accvgpr_read_b32', t2, 'a248'))
        A(vst(t2, 1, t0, 's4', sT1, 0))
        return c
    if not OPT['stamps']: return []
    c = []
    A = c.append
    n = stamp_n[0]
    A(wait(vm=0))
    c += stamp('abef')
    n = stamp_n[0]
    if OPT['diag']:
        assert n == 8
        A(salu('s_cmp_lg_u32', sW, 0)); A(br('s_cbranch_scc1', 'L_end'))
        A(salu('s_mov_b32', 's4', 's76')); A(salu('s_and_b32', 's5', 's77', 0xffff)); A(salu('s_mov_b32', 's6', 160)); A(salu('s_mov_b32', 's7', 0x20000))
        A(valu('v_lshrrev_b32', t0, 2, vL16))
        for i in range(8):
            A(salu('s_sub_u32', sT1, f's{82+2*i}', 's82')); A(raw(f'v_writelane_b32 {t1}, {sT1}, {i}', 'valu', rd=[sT1], wr=[t1]))
        for i, (st, inv) in enumerate([(7, 0), (0, 1), (0, 0), (3, 0), (3, 1), (4, 0), (4, 1), (7, 1)]):
            A(salu('s_not_b32' if inv else 's_mov_b32', sT1, f's{82+2*st}')); A(raw(f'v_writelane_b32 {t2}, {sT1}, {i}', 'valu', rd=[sT1], wr=[t2]))
        A(salu('s_mov_b32', sT1, 128))
        A(I(f'buffer_atomic_add {t1}, {t0}, s[4:7], {sT1} offen sc1', 'vst', rd=[t1, t0], arg=[t1]))
        A(salu('s_mov_b32', 's6', 192)); A(salu('s_mov_b32', sT1, 160))
        A(I(f'buffer_atomic_umax {t2}, {t0}, s[4:7], {sT1} offen sc1', 'vst', rd=[t2, t0], arg=[t2]))
        return c
    if OPT['dbg']:
        A(salu('s_mov_b32', 's4', 's76')); A(salu('s_and_b32', 's5', 's77', 0xffff)); A(salu('s_mov_b32', 's6', 256)); A(salu('s_mov_b32', 's7', 0x20000))
        A(salu('s_lshl_b32', sT1, 's2', 2)); A(salu('s_add_u32', sT1, sT1, sW))
        A(salu('s_cmp_lg_u32', sT1, OPT['dbg'])); A(br('s_cbranch_scc1', 'L_end'))
        A(valu('v_mov_b32', t0, 0))
        for i in range(1, n):
            A(salu('s_sub_u32', sT1, f's{82+2*i}', 's82'))
            A(valu('v_mov_b32', t1, sT1))
            A(vst(t1, 1, t0, 's4', 0, 4 * i))
            A(wait(vm=0))
        return c
    if OPT['sout']:
        A(salu('s_mov_b32', 's4', 's68')); A(salu('s_and_b32', 's5', 's69', 0xffff))
        A(raw('s_getreg_b32 s100, hwreg(HW_REG_XCC_ID)')); A(raw('s_getreg_b32 s101, hwreg(HW_REG_HW_ID)'))
    else:
        A(salu('s_add_u32', 's4', 's78', 64 << 20)); A(salu('s_addc_u32', 's5', 's79', 0)); A(salu('s_and_b32', 's5', 's5', 0xffff))
    A(salu('s_mov_b32', 's6', 1 << 20)); A(salu('s_mov_b32', 's7', 0x20000))
    A(salu('s_lshl_b32', sT1, 's2', 2)); A(salu('s_add_u32', sT1, sT1, sW)); A(salu('s_lshl_b32', sT1, sT1, 6))
    if OPT['sout']:
        A(valu('v_mov_b32', t0, 0))
        A(valu('v_mov_b32', t1, 's100')); A(vst(t1, 1, t0, 's4', sT1, 56)); A(wait(vm=0))
        A(valu('v_mov_b32', t1, 's101')); A(vst(t1, 1, t0, 's4', sT1, 60)); A(wait(vm=0))
    A(valu('v_mov_b32', t0, 0))
    for i in range(16 if OPT['stamps'] == 3 else n):
        A(valu('v_mov_b32', t1, f's{82+i}' if OPT['stamps'] == 3 else f's{82+2*i}'))
        A(vst(t1, 1, t0, 's4', sT1, 4 * i))
        A(wait(vm=0))
    return c

def diag_code():
    c = [label('L_diag')]
    A = c.append
    A(wait(vm=0))
    dst = ['s44', 's45', 's46', 's47']
    for d, e in zip(dst, OPT['diag'].split(',')):
        if e[0] == 'm': A(salu('s_lshr_b32', d, f's{52+int(e[1])}', 8))
        elif e[0] == 'x': A(salu('s_add_u32', d, f's{60+int(e[1])}', 's61'))
        elif e[0] == 'n': A(salu('s_sub_u32', d, 's61', f's{60+int(e[1])}'))
        A(salu('s_min_u32', d, d, 20000))
    A(valu('v_mov_b32', 'v10', 0)); A(valu('v_lshlrev_b32', 'v11', 4, vL16))
    for i, (d, ins) in enumerate(zip(dst, [vld('v12', 1, 'v10', SX, 0), vld('v12', 1, 'v10', SX, 0, 0, 'sc1'), mfma('v24', 'v28', 'v28', 'v24'), dsr('ds_read_b32', 'v13', 'v11')])):
        A(label(f'L_dg{i}')); A(ins); A(wait(vm=8, lg=4)); A(salu('s_sub_u32', d, d, 1)); A(br('s_cbranch_scc0', f'L_dg{i}'))
    A(raw('s_endpgm'))
    return c

def kernel1():
    st0 = stamp('abcdef')
    pre, R = setup()
    pre = pre[:2] + st0 + pre[2:]
    part1 = resolve(pre + qphase(R) + prologue())
    blocks = [block(j) for j in range(4)]
    first = [x for x in blocks[0] if x.kind == 'mfma'][0]
    entry = [label('L_loop_in'), first, br('s_branch', 'L_loop_mid')]
    loop = [label('L_loop')] + sum(blocks, []) + [br('s_cbranch_scc0', 'L_loop')]
    sw = switch_wo()
    part3 = resolve(epilogue() + ophase()) + stamps_out() + [label('L_end'), raw('s_endpgm')]
    fb = fallback()
    mid = [i for i, x in enumerate(loop) if x.kind == 'label' and x.arg == 'L_loop_mid'][0]
    tr = part1 + entry + loop[mid:] + loop + sw + loop + sw[:2] + part3
    errs = check(tr, 'k1')
    vb = [i for i, x in enumerate(part3) if x.kind == 'br' and x.arg == 'L_fallback'][0]
    errs += check(part3[:vb + 1] + fb + entry + loop[mid:] + loop, 'fb')
    assert part1[-1].kind == 'br'
    rr = resolve(reduce_rare())
    errs += check(rr, 'rare')
    code = part1[:-1] + entry + [raw('.p2align 6', 'cmt')] + loop + sw + part3 + rr + fb + (diag_code() if OPT['diag'] else [])
    return code, errs

def kernel2():
    c = []
    A = c.append
    A(salu('s_cmp_ge_u32', 's2', 320)); A(br('s_cbranch_scc1', 'L2_end'))
    if OPT['stamps']: A(raw('s_memrealtime s[30:31]'))
    A(raw('s_load_dwordx2 s[4:5], s[0:1], 96', wr=['s4', 's5']))
    if OPT['stamps']: A(raw('s_load_dwordx2 s[40:41], s[0:1], 96'))
    A(raw('s_load_dwordx2 s[8:9], s[0:1], 80', wr=['s8', 's9']))
    A(salu('s_mul_hi_u32', 's12', 's2', 0xcccccccd)); A(salu('s_lshr_b32', 's12', 's12', 4))
    A(salu('s_mul_i32', 's13', 's12', 20)); A(salu('s_sub_u32', 's13', 's2', 's13'))
    A(valu('v_lshrrev_b32', 'v1', 6, 'v0'))
    A(valu('v_lshlrev_b32', 'v2', 4, 'v0'))
    A(rfl('s14', 'v1'))
    A(salu('s_lshl_b32', 's15', 's13', 12))
    A(valu('v_add_u32', 'v2', 's15', 'v2'))
    A(salu('s_mul_i32', 's16', 's12', 16 * 81920))
    A(wait(lg=0))
    A(salu('s_add_u32', 's4', 's4', 's16')); A(salu('s_addc_u32', 's5', 's5', 0)); A(salu('s_and_b32', 's5', 's5', 0xffff))
    A(salu('s_mov_b32', 's6', 16 * 81920)); A(salu('s_mov_b32', 's7', 0x20000))
    for p in range(16):
        A(salu('s_mov_b32', 's17', p * 81920))
        A(vld(vr(16 + 4 * p), 4, 'v2', 's4', 's17', 0, OPT['ldpol'], tag=f'p{p}'))
    A(salu('s_and_b32', 's9', 's9', 0xffff)); A(salu('s_mov_b32', 's10', 8 * 80 * 1024 * 2)); A(salu('s_mov_b32', 's11', 0x20000))
    A(salu('s_lshl_b32', 's15', 's13', 2)); A(salu('s_add_u32', 's15', 's15', 's14'))
    A(salu('s_and_b32', 's18', 's15', 1))
    A(salu('s_lshr_b32', 's15', 's15', 1))
    A(salu('s_mul_i32', 's19', 's15', 205)); A(salu('s_lshr_b32', 's19', 's19', 10))
    A(salu('s_mul_i32', 's20', 's19', 5)); A(salu('s_sub_u32', 's20', 's15', 's20'))
    A(salu('s_and_b32', 's21', 's12', 7))
    A(salu('s_lshr_b32', 's22', 's12', 3))
    A(salu('s_mul_i32', 's21', 's21', 5)); A(salu('s_add_u32', 's21', 's21', 's20')); A(salu('s_lshl_b32', 's21', 's21', 15))
    A(salu('s_lshl_b32', 's22', 's22', 10)); A(salu('s_add_u32', 's21', 's21', 's22'))
    A(salu('s_lshl_b32', 's19', 's19', 7)); A(salu('s_add_u32', 's21', 's21', 's19'))
    A(salu('s_lshl_b32', 's18', 's18', 6)); A(salu('s_add_u32', 's21', 's21', 's18'))
    A(valu('v_and_b32', 'v3', 15, 'v0')); A(valu('v_lshlrev_b32', 'v3', 11, 'v3'))
    A(valu('v_bfe_u32', 'v4', 'v0', 4, 2)); A(valu('v_lshl_add_u32', 'v3', 'v4', 3, 'v3'))
    A(salu('s_mov_b32', 's23', 0xffff0000))
    for p in range(16):
        A(need(vm=f'p{p}'))
        for i in range(4):
            src = vr(16 + 4 * p + i)
            if p == 0:
                A(valu('v_lshlrev_b32', vr(8 + 2 * i), 16, src)); A(valu('v_and_b32', vr(9 + 2 * i), 's23', src))
            else:
                A(valu('v_lshlrev_b32', vr(80 + 2 * i), 16, src)); A(valu('v_and_b32', vr(81 + 2 * i), 's23', src))
        if p:
            for i in range(4): A(valu('v_pk_add_f32', vr(8 + 2 * i), vr(8 + 2 * i), vr(80 + 2 * i), w=2))
    for i in range(4): A(valu('v_cvt_pk_bf16_f32', vr(4 + i), vr(8 + 2 * i), vr(9 + 2 * i)))
    A(vst('v4', 2, 'v3', 's8', 's21', 0)); A(vst('v6', 2, 'v3', 's8', 's21', 32))
    if OPT['stamps']:
        A(wait(vm=0)); A(raw('s_memrealtime s[32:33]')); A(wait(lg=0))
        A(salu('s_add_u32', 's40', 's40', 65 << 20)); A(salu('s_addc_u32', 's41', 's41', 0)); A(salu('s_and_b32', 's41', 's41', 0xffff))
        A(salu('s_mov_b32', 's42', 1 << 20)); A(salu('s_mov_b32', 's43', 0x20000))
        A(salu('s_lshl_b32', 's34', 's2', 2)); A(salu('s_add_u32', 's34', 's34', 's14')); A(salu('s_lshl_b32', 's34', 's34', 3))
        A(valu('v_mov_b32', 'v1', 0)); A(valu('v_mov_b32', 'v10', 's30')); A(valu('v_mov_b32', 'v11', 's32'))
        A(vst('v10', 2, 'v1', 's40', 's34', 0))
    A(label('L2_end')); A(raw('s_endpgm'))
    c = resolve(c)
    return c, check(c, 'k2')

def desc(name, vg, acc):
    return f""".p2align 6
.amdhsa_kernel {name}
  .amdhsa_next_free_vgpr {vg}
  .amdhsa_next_free_sgpr 102
  .amdhsa_accum_offset {acc}
  .amdhsa_group_segment_fixed_size 0
  .amdhsa_kernarg_size 104
  .amdhsa_user_sgpr_count 2
  .amdhsa_user_sgpr_kernarg_segment_ptr 1
  .amdhsa_system_sgpr_workgroup_id_x 1
.end_amdhsa_kernel
"""

def main():
    assert (LX // 2048) % 2 == 0 or True
    k1, e1 = kernel1()
    k2, e2 = kernel2()
    for e in e1 + e2: print('HAZARD', e)
    K1, K2 = NAME + '_kernel', 'reduce_parts_kernel'
    hdr = open('cdna_kernels/' + NAME + '.s.ref').read().split('; Override launch')[0]
    s = hdr
    s += f'; @launch grid=(256,1,1) block=(256,1,1) lds=163840\n'
    s += '.amdgcn_target "amdgcn-amd-amdhsa--gfx950"\n.text\n'
    for n, k in ((K1, k1),):
        s += f'.globl {n}\n.p2align 8\n.type {n},@function\n{n}:\n' + render(k)
    s += 'L_code_end:\n'
    s += '.section .rodata,"a"\n' + desc(K1, 512, 256)
    open(sys.argv[1], 'w').write(s)
    print('instrs', len(k1), len(k2), 'errors', len(e1) + len(e2))
main()
```

```python
import sys, math, struct
from asmlib import *

NAME = 'concat_heads__gqa_block_cached__gqa_block_cached__near_ridge'
OPT = dict(opf=1, pppol='sc1', pfl=1, ppl=3, opol2='sc1', ostpol='', diag='', delay=0, f0ch=10, fl0=6, MB=256, slp=0, sout=0, fuse=1, cbase=0, cstr=16, limit=2000, scr=0, lpf=1, cpf=1, rb=8, rp=8, xq='', wpol0='', wn0=2, xpol='', opol='', wpol='', bst=0, qkord=0, xl='', kvpf=0, kv0=11, kvlate=2, rot=1, sg='a', samekv=0, stamps=0, kvpol='nt', pf=0, stpol='sc1', ldpol='sc1', dbg=0)
for a in sys.argv[2:]:
    k, v = a.split('=')
    OPT[k] = int(v) if v.lstrip('-').isdigit() else v.replace('+', ' ')

SL = 16896
PC = 1056
UP = 4 * SL
LX = 9 * SL
GS = 16 * 81920 + 16 * OPT['MB']
def f32(x): return struct.unpack('<I', struct.pack('<f', x))[0]

SX, SA, SB, SWQ, SWO, SWS = 's4', 's8', 's12', 's16', 's20', 's24'
SD = SX
sKb, sVb = 's28', 's30'
sW, sB, sHKV, sHP, sBR, sCNT, sOFF, sSTEP, sLDS, sPASS, sNR, sLAST = ['s%d' % i for i in range(32, 44)]
sT0, sT1, sT2, sT3 = 's44', 's45', 's46', 's47'
sSO = 's80'
sWOFF = 's81'
sPO = 's3'
sGRP, sPART, sTODO, sFL = 's70', 's71', 's72', 's73'
sPF, sXC, sPO2 = 's66', 's67', 's65'
sXQ = ['s48', 's49', 's50', 's51']
vL16 = 'v1'
vD = ['v2', 'v3', 'v4', 'v5']
vK, vK2, vVa, vVa2, vVb, vVb2 = 'v6', 'v7', 'v8', 'v9', 'v10', 'v11'
vT = ['v12', 'v13', 'v14', 'v15']
vSUM = {4: 'v16', 1: 'v17', 2: 'v18'}
vSH, vSHP = 'v19', 'v20'
t0, t1, t2 = 'v21', 'v22', 'v23'
def vr(n): return f'v{n}'
def ar(n): return f'a{n}'
def Oacc(rt, ld): return vr(24 + (rt * 4 + ld) * 4) if ld < 4 else ar((rt * 4 + ld - 4) * 4)
def Vf(b, ld): return vr(104 + 32 * b + 4 * ld)
def Sb(k, t): return vr(168 + 8 * (k % 4) + 4 * t)
def Pb(k): return vr(200 + 4 * (k % 2))
def Mn(rt): return vr(208 + 4 * rt)
def Qf(rt, c): return ar(80 + (rt * 4 + c) * 4)
def Kf(b, t, c): return ar(160 + 32 * b + (t * 4 + c) * 4)
RS = {3: 'a224', 0: 'a228'}
ONES = 'a232'
aDwo, aDkv = 240, 244
def off(r, n): return f'{r[0]}{int(r[1:]) + n}'
vDwo = ['v228', 'v229', 'v230', 'v231']
vW = ['v232', 'v233', 'v234', 'v235']
vXd = 'v236'; vXdr = ['v236', 'v216', 'v217', 'v218', 'v219']; vXr = ['v237', 'v238']; vXr4 = ['v239', 'v240']; vPF, vPFd = 'v241', 'v242'
def Qacc(dt, rt): return vr(104 + (rt * 4 + dt) * 4)
def Wf(b, nt): return vr(184 + 16 * b + 4 * nt)
def Xf(c, rt):
    f = c * 5 + rt
    if f < 16: return ar(160 + 4 * f)
    if f < 56: return ar(4 * (f - 16))
    if f < 64: return ar(224 + 4 * (f - 56))
    return ar(160 + 4 * (f - 64))
STG = 216

stamp_n = [0]
def stamp(grp='a'):
    if not OPT['stamps'] or OPT['sg'] not in grp: return []
    i = stamp_n[0]; stamp_n[0] += 1
    if OPT['stamps'] == 3:
        assert i < 8
        return [raw('s_memtime s[98:99]'), raw('s_memrealtime s[100:101]'), wait(lg=0), salu('s_mov_b32', f's{82+i}', 's98'), salu('s_mov_b32', f's{90+i}', 's100')]
    op = 's_memrealtime' if OPT['stamps'] == 2 else 's_memtime'
    return [raw(f'{op} s[{82+2*i}:{83+2*i}]', wr=[f's{82+2*i}', f's{83+2*i}']), wait(lg=0)]

def setm0(base, const): return salu('s_add_u32', 'm0', base, const)

def kv_tile_dma(which, tile, tag):
    sig = 2 * (tile % 4) + (which == 'V')
    srd = SA if which == 'K' else SB
    q = [setm0(sLDS, sig * SL), salu('s_mov_b32', sSO, tile * 16384)]
    q += [dma(vD[k], srd, sSO, PC * k, OPT['kvpol'], tag=tag) for k in range(4)]
    return q

def setup():
    c = []
    A = c.append
    A(salu('s_cmp_ge_u32', 's2', 256)); A(br('s_cbranch_scc1', 'L_end'))
    A(raw('s_load_dwordx16 s[48:63], s[0:1], 0', wr=regs('s48', 16)))
    A(raw('s_load_dwordx4 s[64:67], s[0:1], 64', wr=regs('s64', 4)))
    A(raw('s_load_dwordx4 s[76:79], s[0:1], 88', wr=regs('s76', 4)))
    A(raw('s_load_dwordx2 s[68:69], s[0:1], 80', wr=regs('s68', 2)))
    L, G, Q, WV, KH, HH, RP, R4, C4 = ['v%d' % i for i in range(244, 253)]
    if OPT['delay']:
        A(salu('s_and_b32', sT1, 's2', 0x1b)); A(salu('s_cmp_lg_u32', sT1, 0x0a)); A(br('s_cbranch_scc1', 'L_nodelay'))
        A(salu('s_mov_b32', sT1, OPT['delay']))
        A(label('L_delay')); A(raw('s_sleep 127')); A(salu('s_sub_u32', sT1, sT1, 1)); A(br('s_cbranch_scc0', 'L_delay'))
        A(label('L_nodelay'))
    if OPT['scr']:
        A(salu('s_lshr_b32', sT1, 's2', 5)); A(salu('s_and_b32', 's2', 's2', 31)); A(salu('s_lshl_b32', 's2', 's2', 3)); A(salu('s_or_b32', 's2', 's2', sT1))
    A(salu('s_lshr_b32', sT1, 's2', 3))
    if OPT['cpf']:
        A(raw('s_getpc_b64 s[74:75]', wr=['s74', 's75']))
        A(label('L_pc'))
        A(salu('s_lshl_b32', sT2, sT1, 10))
        A(valu('v_lshrrev_b32', t0, 5, 'v0'))
        A(raw('s_min_u32 s46, s46, L_code_end-L_pc-1024', rd=['s46'], wr=['s46']))
        A(valu('v_lshlrev_b32', t0, 7, t0))
        A(salu('s_add_u32', 's74', 's74', sT2))
        A(salu('s_addc_u32', 's75', 's75', 0))
        A(I(f'global_load_dword {vPFd}, {t0}, s[74:75]', 'vld', rd=[t0, 's74', 's75'], wr=[vPFd], tag='cpf'))
    A(valu('v_lshrrev_b32', WV, 6, 'v0'))
    A(valu('v_bfe_u32', RP, 'v0', 3, 3))
    A(rfl(sW, WV))
    A(valu('v_and_b32', C4, 7, 'v0'))
    A(valu('v_and_b32', t1, 6, RP))
    A(valu('v_xor_b32', R4, C4, t1))
    A(valu('v_and_b32', t1, 4, RP))
    A(valu('v_add_u32', t1, t1, RP))
    A(valu('v_lshlrev_b32', t1, 13, t1))
    A(valu('v_lshl_add_u32', t1, WV, 7, t1))
    A(valu('v_lshl_add_u32', vW[0], R4, 4, t1))
    for k in range(1, 4):
        A(valu('v_add_u32', vW[k], (16 * (k % 2) + 4 * (k // 2)) * 8192 - PC * k, vW[0]))
    A(salu('s_and_b32', sT0, 's2', 3))
    A(salu('s_lshl_b32', sT0, sT0, 2))
    A(salu('s_and_b32', sT2, sT1, 3))
    A(salu('s_add_u32', sT0, sT0, sT2))
    A(salu('s_lshr_b32', sB, sT1, 2))
    A(salu('s_mul_i32', sWOFF, sB, OPT['rb']))
    A(salu('s_mul_i32', sT2, sT2, OPT['rp']))
    A(salu('s_add_u32', sWOFF, sWOFF, sT2))
    A(salu('s_and_b32', sWOFF, sWOFF, 15))
    A(salu('s_and_b32', sT2, sW, 2))
    A(salu('s_add_u32', 's3', sWOFF, sT2))
    A(salu('s_lshl_b32', 's3', 's3', 6))
    A(salu('s_lshl_b32', sWOFF, sWOFF, 18))
    A(salu('s_mul_i32', sT2, sT2, 2112))
    A(salu('s_and_b32', sT1, sW, 1))
    A(salu('s_mul_i32', sT1, sT1, 8448))
    A(salu('s_add_u32', sLDS, sT1, sT2))
    A(salu('s_lshl_b32', sT1, sT0, 9))
    A(salu('s_sub_u32', off(SWQ, 2), 512 * 8192, sT1))
    A(salu('s_mov_b32', off(SWQ, 3), 0x20000))
    A(setm0(sLDS, UP))
    A(valu('v_bfe_u32', t2, 'v0', 3, 4))
    A(valu('v_lshrrev_b32', t1, 1, t2))
    A(valu('v_xor_b32', t1, t1, C4))
    A(valu('v_lshlrev_b32', t1, 4, t1))
    A(valu('v_lshl_add_u32', vXd, t2, 10, t1))
    A(salu('s_mul_i32', sT2, sB, 81920))
    A(salu('s_bitcmp0_b32', 's2', 2))
    A(wait(lg=0))
    c += stamp('b')
    A(raw('s_cselect_b64 s[16:17], s[54:55], s[64:65]'))
    A(raw('s_cselect_b64 s[4:5], s[48:49], s[58:59]'))
    A(raw('s_cselect_b64 s[70:71], s[50:51], s[60:61]'))
    A(raw('s_cselect_b64 s[72:73], s[52:53], s[62:63]'))
    A(raw('s_cselect_b64 s[20:21], s[56:57], s[66:67]'))
    A(salu('s_add_u32', SWQ, SWQ, sT1))
    A(salu('s_addc_u32', off(SWQ, 1), off(SWQ, 1), 0))
    A(salu('s_and_b32', off(SWQ, 1), off(SWQ, 1), 0xffff))
    c += w_dma(0)[2:]
    c += stamp('b')
    A(salu('s_add_u32', SX, SX, sT2))
    A(salu('s_addc_u32', off(SX, 1), off(SX, 1), 0))
    A(salu('s_and_b32', off(SX, 1), off(SX, 1), 0xffff))
    A(salu('s_mov_b32', off(SX, 2), 81920))
    A(salu('s_mov_b32', off(SX, 3), 0x20000))
    A(salu('s_lshl_b32', sT3, sW, 10))
    A(salu('s_and_b32', sXQ[0], 's3', 1023))
    xd = x_dma(0, False)
    for rt in range(5):
        A(xd[2 * rt])
        A(valu('v_add_u32', vXdr[rt + 1], (rt + 1) * 16384, vXd) if rt < 4 else nop(0))
        A(xd[2 * rt + 1])
        if rt == 0: c += stamp('b')
    c += stamp('b')
    return c, (L, G, Q, WV, KH, HH, RP, R4, C4)

def setup2(R):
    L, G, Q, WV, KH, HH, RP, R4, C4 = R
    c = []
    A = c.append
    def srd(s, ptr, offreg, nrec):
        A(salu('s_add_u32', s, ptr, offreg))
        A(salu('s_addc_u32', off(s, 1), off(ptr, 1), 0))
        A(salu('s_and_b32', off(s, 1), off(s, 1), 0xffff))
        A(salu('s_mov_b32', off(s, 2), nrec))
        A(salu('s_mov_b32', off(s, 3), 0x20000))
    for q in range(1, 4):
        A(salu('s_add_u32', sXQ[q], 's3', q * 256))
        A(salu('s_and_b32', sXQ[q], sXQ[q], 1023))
    A(salu('s_bfe_u32', sBR, 's2', 0x10002))
    A(salu('s_and_b32', sHP, sT0, 1))
    A(salu('s_lshr_b32', sHKV, sT0, 1))
    A(valu('v_and_b32', L, 63, 'v0'))
    A(valu('v_lshlrev_b32', vL16, 4, L))
    A(valu('v_and_b32', KH, 1, WV))
    A(valu('v_lshrrev_b32', HH, 1, WV))
    A(valu('v_lshlrev_b32', t1, 10, RP))
    A(valu('v_lshl_add_u32', t1, WV, 7, t1))
    A(valu('v_lshl_add_u32', vDwo[0], R4, 4, t1))
    for k in range(1, 4):
        A(valu('v_add_u32', vDwo[k], (8192 - PC) * k, vDwo[0]))
    A(valu('v_lshlrev_b32', vPF, 7, 'v0'))
    A(salu('s_lshl_b32', sT1, sB, 3))
    A(salu('s_add_u32', sT1, sT1, sHKV))
    A(salu('s_lshl_b32', sT1, sT1, 19))
    for dst, p in ((sKb, 's70'), (sVb, 's72')):
        A(salu('s_add_u32', dst, p, sT1))
        A(salu('s_addc_u32', off(dst, 1), off(p, 1), 0))
        A(salu('s_sub_u32', dst, dst, 96))
        A(salu('s_subb_u32', off(dst, 1), off(dst, 1), 0))
        A(salu('s_and_b32', off(dst, 1), off(dst, 1), 0xffff))
    ca = c; c = []; A = c.append
    c += kv_mode()
    A(salu('s_mov_b32', off(SA, 3), 0x20000))
    A(salu('s_mov_b32', off(SB, 3), 0x20000))
    A(salu('s_lshl_b32', sT1, sHKV, 19))
    A(salu('s_lshl_b32', sT2, sHP, 9))
    A(salu('s_add_u32', sT1, sT1, sT2))
    A(salu('s_sub_u32', sT2, 524288, sT2))
    srd(SWO, SWO, sT1, sT2)
    A(salu('s_lshl_b32', sT1, sBR, 3))
    A(salu('s_add_u32', sGRP, sT1, sB))
    A(salu('s_mul_i32', sT1, sGRP, GS))
    srd(SWS, 's78', sT1, GS)
    A(salu('s_mov_b32', sPART, sT0))
    A(salu('s_mov_b32', sPASS, 0))
    A(valu('v_lshrrev_b32', G, 4, L))
    A(valu('v_and_b32', Q, 15, L))
    A(valu('v_bfe_u32', R4, L, 2, 2))
    A(valu('v_and_b32', C4, 3, L))
    A(valu('v_lshrrev_b32', t0, 1, Q))
    A(valu('v_xor_b32', t0, t0, G))
    A(valu('v_lshlrev_b32', t0, 4, t0))
    A(valu('v_lshl_add_u32', vXr[0], Q, 7, t0))
    A(valu('v_xor_b32', vXr[1], 64, vXr[0]))
    A(valu('v_add_u32', vXr4[0], 8 * SL, vXr[0]))
    A(valu('v_add_u32', vXr4[1], 8 * SL, vXr[1]))
    A(valu('v_mul_u32_u24', t0, 4224, HH))
    A(valu('v_mul_u32_u24', t1, 8448, KH))
    A(valu('v_add_u32', t2, t0, vL16))
    A(valu('v_add_u32', vSH, t2, t1))
    A(valu('v_sub_u32', vSHP, t2, t1))
    A(valu('v_add_u32', vSHP, 8448, vSHP))
    A(valu('v_add_u32', t2, t0, t1))
    A(valu('v_and_b32', t0, 1, G))
    A(valu('v_lshl_add_u32', t0, t0, 2, R4))
    A(valu('v_lshl_add_u32', t2, t0, 7, t2))
    A(valu('v_lshl_add_u32', t2, C4, 3, t2))
    A(valu('v_lshrrev_b32', vT[3], 1, G))
    A(valu('v_mul_u32_u24', vT[3], PC, vT[3]))
    A(valu('v_add_u32', t2, t2, vT[3]))
    A(valu('v_add_u32', t2, UP, t2))
    A(valu('v_and_b32', t0, 6, t0))
    for nt in range(4):
        A(valu('v_xor_b32', vT[nt], 2 * nt, t0))
        A(valu('v_lshl_add_u32', vT[nt], vT[nt], 4, t2))
    A(valu('v_and_b32', t0, 7, Q))
    A(valu('v_mul_u32_u24', t0, PC, t0))
    A(valu('v_lshrrev_b32', t2, 3, Q))
    A(valu('v_lshl_add_u32', t0, t2, 8, t0))
    A(valu('v_lshl_add_u32', t0, G, 4, t0))
    A(valu('v_add_u32', vK, t0, t1))
    A(valu('v_add_u32', vK2, UP, vK))
    A(valu('v_bfe_u32', t0, L, 2, 3))
    A(valu('v_mul_u32_u24', t0, PC, t0))
    A(valu('v_lshrrev_b32', t2, 1, G))
    A(valu('v_lshl_add_u32', t0, t2, 8, t0))
    A(valu('v_lshl_add_u32', t0, C4, 3, t0))
    A(valu('v_add_u32', t0, t0, t1))
    A(valu('v_lshl_add_u32', vVa, KH, 7, t0))
    A(valu('v_xor_b32', t2, 1, KH))
    A(valu('v_lshl_add_u32', vVb, t2, 7, t0))
    A(valu('v_add_u32', vVa2, UP, vVa))
    A(valu('v_add_u32', vVb2, UP, vVb))
    A(valu('v_lshl_add_u32', t0, KH, 13, vL16))
    A(valu('v_lshl_add_u32', t0, HH, 12, t0))
    for k in range(4):
        A(valu('v_add_u32', vD[k], 96 - 32 * k, t0))
    A(valu('v_lshrrev_b32', t0, 1, G))
    A(valu('v_lshl_add_u32', t0, t0, 4, Q))
    A(valu('v_lshlrev_b32', t0, 4, t0))
    A(valu('v_and_b32', t2, 1, G))
    A(valu('v_lshl_add_u32', t0, t2, 3, t0))
    A(valu('v_sub_u32', t2, vSH, vL16))
    A(valu('v_add_u32', t0, t0, t2))
    A(valu('v_add_u32', t0, 6 * SL, t0))
    A(valu('v_mul_u32_u24', t1, 4224, HH))
    A(valu('v_add_u32', t1, t1, vL16))
    A(valu('v_add_u32', t1, 6 * SL, t1))
    A(valu('v_mul_u32_u24', t2, 8448, KH))
    A(valu('v_sub_u32', t2, vK, t2))
    return ca, c

def kv_mode():
    c = []
    A = c.append
    A(salu('s_mov_b32', SA, sKb)); A(salu('s_mov_b32', off(SA, 1), off(sKb, 1)))
    A(salu('s_mov_b32', SB, sVb)); A(salu('s_mov_b32', off(SB, 1), off(sVb, 1)))
    A(salu('s_mov_b32', sNR, 0 if 'Z' in OPT['xl'] else 524288 + 96))
    A(salu('s_mov_b32', off(SA, 2), sNR)); A(salu('s_mov_b32', off(SB, 2), sNR))
    A(salu('s_mov_b32', sSTEP, 0 if OPT['samekv'] else 16384))
    A(salu('s_mov_b32', sOFF, 3 * 16384))
    A(salu('s_mov_b32', sCNT, 0))
    A(salu('s_mov_b32', sLAST, 0))
    A(salu('s_lshl_b32', sPO, sHP, 3)); A(salu('s_add_u32', sPO, sPO, sB))
    A(salu('s_lshl_b32', sPO, sPO, 5)); A(salu('s_add_u32', sPO, sPO, sW)); A(salu('s_lshl_b32', sPO, sPO, 10))
    return c

def w_dma(c):
    q = [setm0(sLDS, UP + (c % 4) * SL)]
    if c: q += [salu('s_add_u32', sWOFF, sWOFF, 262144), salu('s_and_b32', sWOFF, sWOFF, 0x3fffff)]
    else: q += [nop(0)]
    q += [dma(vW[k], SWQ, sWOFF, PC * k, OPT['wpol0'] if c < OPT['wn0'] else OPT['wpol'], tag=f'W{c}') for k in range(4)]
    return q

def x_dma(qtr, pad=True):
    q = []
    for rt in range(5):
        base = (rt * 16384 if rt < 4 else 8 * SL) + qtr * 4096
        q += [setm0(sT3, base)] + ([nop(0)] if pad else []) + [dma(vXdr[rt], SX, sXQ[qtr], 0, OPT['xpol'], tag=f'XD{qtr}')]
    return q

def w_reads(c, tag):
    q = []
    for nt in range(4):
        for rd in range(2):
            x = dsr('ds_read_b64_tr_b16', off(Wf(c % 2, nt), 2 * rd), vT[nt], (c % 4) * SL + rd * 2 * PC, tag=tag)
            x.cost = 6
            q.append(x)
    return q

def x_read(c, rt):
    kp, par = c // 2, c % 2
    if rt < 4: return dsr('ds_read_b128', Xf(c, rt), vXr[par], rt * 16384 + kp * 2048, tag=f'X{c}')
    return dsr('ds_read_b128', Xf(c, rt), vXr4[par], kp * 2048, tag=f'X{c}')

def resolve_partial(prev, body):
    xq = OPT['xq']
    if not xq: return body
    out = []
    for x in body:
        if 'G' in xq and x.kind == 'dma' and x.tag[0] == 'W': x = I(x.text.replace('s[16:19]', 's[56:59]'), 'dma', tag=x.tag) if 'Z' in xq else I('s_nop 0', 'dma', tag=x.tag)
        if 'K' in xq and x.kind == 'dma' and x.tag[0] in 'KV': x = I('s_nop 0', 'dma', tag=x.tag)
        if 'T' in xq and x.kind == 'dsr' and x.tag[0] == 'T': x = I('s_nop 0', 'dsr', tag=x.tag)
        if 'X' in xq and x.kind == 'dsr' and x.tag[0] == 'X': x = I('s_nop 0', 'dsr', tag=x.tag)
        if 'V' in xq and x.kind == 'valu' and ('v_mov_b32' in x.text or ', 0' in x.text): continue
        out.append(x)
    return out

def qphase(R):
    c = []
    A = c.append
    w1 = w_dma(1)
    c += w1[:-1]
    s2a, s2b = setup2(R)
    c += s2a + s2b
    c += stamp('b')
    c += w1[-1:] + x_dma(1)
    c += stamp('ab')
    if OPT['diag']:
        A(raw('s_load_dwordx16 s[52:67], s[76:77], 128', wr=regs('s52', 16))); A(wait(lg=0))
        A(salu('s_cmp_lg_u32', 's60', 0)); A(br('s_cbranch_scc1', 'L_diag'))
    A(need(vm='XD0'))
    c += stamp('b')
    A(bar())
    c += stamp()
    c += w_reads(0, 'T0')
    for rt in range(5): A(x_read(0, rt))
    for rt in range(5): A(x_read(1, rt))
    mf, memq, valq, pre = [], [], [], {}
    xr = [(cc, rt) for cc in range(2, 16) for rt in range(5)]
    xdone = None
    kvq = [('K', 0), ('V', 0), ('K', 1), ('V', 1)]
    early = {0: w_dma(2) + w_dma(3), 1: x_dma(2, False) + w_dma(4), 2: x_dma(3, False) + w_dma(5), 3: w_dma(6) + w_dma(7)}
    xper = {0: 5, 1: 5, 2: 5, 3: 5, 4: 10, 5: 10, 6: 10, 7: 10, 8: 10}
    xlim = {0: 4, 1: 4, 2: 8, 3: 8}
    for ch in range(16):
        g0 = ch * 20
        pre[g0] = [need(lg=f'T{ch}')] if ch else [need(lg='X0')]
        if ch == 2: pre[g0] = [need(vm='XD1', lg='T2'), bar()]
        if ch == 4: pre[g0] = [need(vm='XD3', lg='T4'), bar()] + stamp('b')
        for rt in range(5):
            for dt in range(4):
                mf.append(mfma(Qacc(dt, rt), Wf(ch % 2, dt), Xf(ch, rt), Qacc(dt, rt) if ch else 0))
        if ch + 1 < 16:
            memq.append((g0, need(vm=f'W{ch+1}')))
            memq += [(g0, x) for x in w_reads(ch + 1, f'T{ch+1}')]
        if ch in early: memq += [(g0, x) for x in early[ch]]
        elif ch + 4 < 16: memq += [(g0, x) for x in w_dma(ch + 4)]
        elif ch == 12 + OPT['kvlate']: memq += [(g0, x) for x in kv_tile_dma('K', 2, 'K2')]
        elif ch == 13 + OPT['kvlate']: memq += [(g0, x) for x in kv_tile_dma('V', 2, 'V2')]
        n = 0
        while xr and n < xper.get(ch, 11):
            cc, rt = xr[0]
            if cc >= xlim.get(ch, 16): break
            if cc * 5 + rt >= 64 and (cc * 5 + rt - 64) // 5 >= ch: break
            xr.pop(0); memq.append((g0, x_read(cc, rt))); n += 1
            if not xr: xdone = ch
        if xdone is not None and ch == xdone + 1:
            pre[g0] = [wait(lg=0), bar()]
        if ch in (0, 1, 2, 3, 4, 6, 9, 12): pre[g0] += stamp('c')
        if ch in (0, 2, 4, 8, 12): pre[g0] += stamp('d')
        if xdone is not None and ch > xdone and kvq and ch >= OPT['kv0']:
            wh, tl = kvq.pop(0)
            memq += [(g0, x) for x in kv_tile_dma(wh, tl, f'{wh}{tl}')]
    print('xdone', xdone)
    assert not kvq
    for i in range(80): valq.append((0, valu('v_mov_b32', vr(24 + i), 0)))
    for s in vSUM.values(): valq.append((0, valu('v_mov_b32', s, 0)))
    for i in range(80): valq.append((8 * 20 + 4, valu('v_accvgpr_write_b32', ar(i), 0)))
    for i in range(8): valq.append((13 * 20 + 4, valu('v_accvgpr_write_b32', ar(224 + i), 0)))
    valq.append((13 * 20 + 4, valu('v_mov_b32', vPF, 0x3f803f80)))
    for i in range(4): valq.append((13 * 20 + 4, valu('v_accvgpr_write_b32', off(ONES, i), vPF)))
    for k in range(4):
        valq.append((13 * 20 + 4, valu('v_accvgpr_write_b32', ar(aDwo + k), vDwo[k])))
        valq.append((13 * 20 + 4, valu('v_accvgpr_write_b32', ar(aDkv + k), vD[k])))
    for x in [salu('s_mul_i32', sGRP, sGRP, OPT['cstr']), salu('s_add_u32', sGRP, sGRP, OPT['cbase']),
              salu('s_mov_b32', SD, 's76'), salu('s_and_b32', off(SD, 1), 's77', 0xffff),
              salu('s_add_u32', off(SD, 2), sGRP, 16), salu('s_mov_b32', sTODO, 0)] + ident():
        valq.append((13 * 20 + 4, x))
    body = resolve_partial(c, weave(mf, memq, valq, pre, period=20))
    c += body
    c += stamp('acdef')
    A(salu('s_mov_b32', sT1, f32(math.log2(math.e) / math.sqrt(128.0))))
    A(salu('s_mov_b32', sT0, sT1))
    A(nop(5))
    for rt in range(5):
        for dt in range(4):
            a = Qacc(dt, rt)
            for h in range(2):
                A(valu('v_pk_mul_f32', off(a, 2 * h), off(a, 2 * h), ('s[44:45]', ['s44', 's45']), w=2))
        for dt in range(4):
            a = Qacc(dt, rt); d = STG + (rt * 4 + dt) * 2
            for h in range(2):
                A(valu('v_cvt_pk_bf16_f32', vr(d + h), off(a, 2 * h), off(a, 2 * h + 1)))
        for dt in range(4):
            j = rt * 2 + dt // 2
            A(dsw('ds_write_b64', t0, vr(STG + (rt * 4 + dt) * 2), (j // 4) * SL + (j % 4) * 1024 + (dt % 2) * 512, tag='Qw'))
    for nt in range(4): A(valu('v_subrev_u32', vT[nt], UP, vT[nt]))
    A(need(vm='V0', lg='Qw')); A(bar())
    return c

def kv_frag_reads(i, which):
    j = i % 4; b = i % 2
    q = []
    if which == 'K':
        a = vK if j < 2 else vK2
        for t in range(2):
            for cc in range(4):
                q.append(dsr('ds_read_b128', Kf(b, t, cc), a, (2 * (j % 2)) * SL + t * 512 + cc * 64, tag='Kr'))
    else:
        for ld in range(8):
            a = (vVa if j < 2 else vVa2) if ld < 4 else (vVb if j < 2 else vVb2)
            for rd in range(2):
                q.append(dsr('ds_read_b64_tr_b16', off(Vf(b, ld), 2 * rd), a, (2 * (j % 2) + 1) * SL + rd * 512 + (ld % 4) * 32, tag='Vr'))
    return q

def state_init():
    c = []
    for i in range(32): c.append(valu('v_mov_b32', off(Vf(1, 0), i), 0))
    for i in range(8): c.append(valu('v_mov_b32', off(Sb(-1, 0), i), f32(-1e30)))
    for i in range(4): c.append(valu('v_mov_b32', off(Pb(-2), i), 0))
    c.append(valu('v_lshlrev_b32', 'v233', 20, vL16))
    if OPT['opf']:
        c += [valu('v_lshrrev_b32', 'v234', 2, vL16), valu('v_add_u32', 'v234', 'v234', vL16), salu('s_lshl_b32', sPO2, sPART, 3), salu('s_add_u32', sPO2, sPO2, sW),
              salu('s_mul_i32', sPO2, sPO2, 10240), salu('s_add_u32', sPO2, sPO2, 40960 - 1280)]
    return c

def ident():
    return [salu('s_lshl_b32', sFL, sHP, 2), salu('s_add_u32', sFL, sFL, sW), salu('s_mul_i32', sFL, sFL, 2 * OPT['MB']),
            salu('s_and_b32', sT1, sHKV, 3), salu('s_lshl_b32', sT1, sT1, 3), salu('s_add_u32', sFL, sFL, sT1),
            salu('s_lshr_b32', sT1, sHKV, 2), salu('s_lshl_b32', sT1, sT1, 2), salu('s_add_u32', sFL, sFL, sT1),
            salu('s_add_u32', sFL, sFL, 16 * 81920),
            salu('s_mul_i32', sPF, sPART, OPT['MB']), salu('s_lshl_b32', sT1, sW, 2), salu('s_add_u32', sPF, sPF, sT1),
            salu('s_add_u32', sPF, sPF, 16 * 81920 + 128)]

def atom(op, d, voff, srd, soff):
    return I(f'{op} {d}, {voff}, {rng(srd,4)}, {soff} offen sc0 sc1', 'vld', rd=[d, voff] + regs(srd, 4) + ([soff] if isreg(soff) else []), wr=[d])

def flag_addr(d, tmp):
    return [valu('v_lshrrev_b32', tmp, 5, vL16), valu('v_mul_u32_u24', d, OPT['MB'] // 16, vL16), valu('v_lshl_add_u32', d, tmp, 24, d)]

def max_finish():
    c = []
    A = c.append
    for op in ('v_permlane16_swap_b32', 'v_permlane32_swap_b32'):
        for rt in range(5): A(valu('v_mov_b32', off(Mn(rt), 1), Mn(rt)))
        for rt in range(5): A(perm(op, Mn(rt), off(Mn(rt), 1)))
        for rt in range(5): A(valu('v_max_f32', Mn(rt), Mn(rt), off(Mn(rt), 1)))
    for rt in range(5):
        for i in (3, 2, 1, 0): A(valu('v_mul_f32', off(Mn(rt), i), -1.0, Mn(rt)))
    return c

def prologue():
    c = []
    A = c.append
    for cc in range(4): A(dsr('ds_read_b128', Kf(1, 0, cc), t2, cc * 64, tag='Km'))
    for rt in range(5):
        for cc in range(4):
            j = rt * 2 + cc % 2
            A(dsr('ds_read_b128', Qf(rt, cc), t1, (cc // 2) * 8448 + (j // 4) * SL + (j % 4) * 1024, tag=f'Qr{rt}'))
    memq = [(0, x) for x in kv_frag_reads(0, 'K') + kv_frag_reads(0, 'V')]
    for x in memq: x[1].cost = 6
    mf, pre = [], {}
    for rt in range(5):
        pre[rt * 4] = [need(lg=f'Qr{rt}')]
        for cc in range(4): mf.append(mfma(Mn(rt), Kf(1, 0, cc), Qf(rt, cc), Mn(rt) if cc else 0))
    c += weave(mf, memq, [(0, x) for x in state_init() + flag_addr('v230', 'v229') + [valu('v_mov_b32', 'v229', 0), valu('v_mov_b32', 'v232', 0)]], pre)
    A(need(vm='V1', lg='Vr')); A(bar())
    c += kv_tile_dma('K', 3, 'K3') + kv_tile_dma('V', 3, 'V3')
    A(atom('buffer_atomic_swap', 'v229', 'v230', SWS, sFL))
    A(atom('buffer_atomic_swap', 'v232', 'v233', SWS, sPF))
    for rt in range(5): A(valu('v_max3_f32', Mn(rt), Mn(rt), off(Mn(rt), 1), off(Mn(rt), 2)))
    for rt in range(5): A(valu('v_max_f32', Mn(rt), Mn(rt), off(Mn(rt), 3)))
    c += max_finish()
    c += stamp('adef')
    if OPT['bst']: A(raw('s_mov_b64 s[98:99], 1'))
    A(br('s_branch', 'L_loop_in'))
    return c

GX = [2, 7, 12, 18, 23, 29, 35, 40]
RX = [0, 1, 3, 4, 5, 6, 9, 10]
TX = [13, 14, 15, 16, 17, 19, 21, 22, 24, 26, 27, 28, 30, 32, 33, 36]

def softmax_items(k):
    rt = k % 5
    E = [valu('v_exp_f32', off(Sb(k, 0), n), off(Sb(k, 0), n)) for n in range(8)]
    C = [valu('v_cvt_pk_bf16_f32', off(Pb(k), n), off(Sb(k, 0), 2 * n), off(Sb(k, 0), 2 * n + 1)) for n in range(4)]
    Ad = [valu('v_add_f32', vSUM[rt], vSUM[rt], off(Sb(k, 0), n)) for n in range(8)] if rt in vSUM else []
    return E, C, Ad

def pv(k, vb, order=range(8)):
    rt = k % 5
    m = [mfma(Oacc(rt, ld), Vf(vb, ld), Pb(k), Oacc(rt, ld)) for ld in order]
    if rt in RS: m.append(mfma(RS[rt], ONES, Pb(k), RS[rt]))
    return m

def block(j):
    out = [cmt(f'block {j}')]
    mem = {}
    for x, i in zip(RX, kv_frag_reads(j + 1, 'K')): mem[x] = i
    for x, i in zip(TX, kv_frag_reads(j + 1, 'V')): mem[x] = i
    for n, x in enumerate(GX):
        mem[x] = dma(vD[n % 4], SA if n < 4 else SB, sOFF, PC * (n % 4), OPT['kvpol'])
    assert len(mem) == 32
    if j == 1 and OPT['lpf']: mem[38] = vld('v228', 1, vL16, SWO, sPO, 0, OPT['opol'])
    if j == 3 and OPT['opf']: mem[38] = vld('v235', 1, 'v234', SWS, sPO2, 0)
    sc = {1: [salu('s_add_u32', sOFF, sOFF, sSTEP)], 2: [setm0(sLDS, 2 * j * SL)], 20: [setm0(sLDS, (2 * j + 1) * SL)],
          24: [wait(lg=8)]}
    if j == 2: sc[0] = []
    if j == 1:
        sc[38] = [salu('s_mov_b32', off(SA, 2), sNR)]
    if j == 2:
        sc[10] = [salu('s_mov_b32', off(SB, 2), sNR)]
        if OPT['lpf']: sc[12] = [salu('s_add_u32', sPO, sPO, 4096)]
    if j == 0 and OPT['opf']: sc[12] = [salu('s_add_u32', sPO2, sPO2, 1280)]
    if j == 3: sc[39] = [salu('s_sub_u32', sCNT, sCNT, 1)]
    cq, aq = [], []
    xi = ei = 0
    for s in range(5):
        kq, ke, kp = 5 * j + s, 5 * j + s - 1, 5 * j + s - 2
        if OPT['qkord']: mf = [mfma(Sb(kq, t), Kf(j % 2, t, cc), Qf(s, cc), Sb(kq, t) if cc else Mn(s)) for cc in range(4) for t in range(2)]
        else: mf = [mfma(Sb(kq, t), Kf(j % 2, t, cc), Qf(s, cc), Sb(kq, t) if cc else Mn(s)) for t in range(2) for cc in range(4)]
        mf += pv(kp, (j - 1) % 2 if s < 2 else j % 2)
        E, C, Ad = softmax_items(ke)
        for g, m in enumerate(mf):
            if s == 0 and g == 0 and j == 0:
                pass
            out.append(m)
            if g % 2 == 0 and g < 16:
                n = g // 2
                if s == 0 and g == 0:
                    out += [wait(vm=16, lg=0), bar()]
                    if j == 0: out.append(label('L_loop_mid'))
                    if OPT['bst']:
                        out += [raw('v_mov_b32 v242, s100\n    v_cndmask_b32 v243, v243, v242, s[98:99]', 'valu', rd=['s100'], wr=['v243']),
                                raw('s_memtime s[100:101]' if OPT['bst'] == 1 else 's_memrealtime s[100:101]'), raw('s_lshl_b64 s[98:99], s[98:99], 1')]
                out += sc.get(ei, [])
                out.append(E[n]); ei += 1
                if Ad: aq.append(Ad[n])
                if n % 2 == 1: cq.append(C[n // 2])
            else:
                nv = 2
                if xi in mem: out.append(mem[xi]); nv = 1
                xi += 1
                for _ in range(nv):
                    if cq: out.append(cq.pop(0))
                    elif aq: out.append(aq.pop(0))
    assert xi == 42 and ei == 40 and not cq and not aq, (xi, ei, len(cq), len(aq))
    xl = OPT['xl']
    if 'G' in xl: out = [x for x in out if x.kind != 'dma']
    if 'B' in xl: out = [x for x in out if x.kind != 'bar']
    if 'R' in xl: out = [x for x in out if x.kind != 'dsr']
    if 'E' in xl: out = [x for x in out if x.kind != 'trans']
    if 'V' in xl: out = [x for x in out if x.kind != 'valu']
    if 'W' in xl: out = [x for x in out if x.kind != 'wait']
    if 'w' in xl: out = [wait(lg=0) if (x.kind == 'wait' and x.arg[0] == 16) else x for x in out]
    if 'H' in xl:
        n = 0; o2 = []
        for x in out:
            if x.kind == 'dma':
                n += 1
                if n % 2 == 0: continue
            o2.append(x)
        out = [wait(vm=8, lg=0) if (x.kind == 'wait' and x.arg[0] == 16) else x for x in o2]
    return out

def switch_wo():
    c = []
    A = c.append
    A(salu('s_cmp_gt_u32', sLAST, 1)); A(br('s_cbranch_scc1', 'L_epi'))
    A(salu('s_cmp_eq_u32', sLAST, 0)); A(br('s_cbranch_scc1', 'L_ann'))
    A(salu('s_mov_b32', sLAST, 2))
    A(salu('s_mov_b32', sCNT, 0))
    A(salu('s_mov_b32', SA, SWO)); A(salu('s_mov_b32', off(SA, 1), off(SWO, 1))); A(salu('s_mov_b32', off(SA, 2), off(SWO, 2)))
    A(salu('s_add_u32', SB, SWO, 32768)); A(salu('s_addc_u32', off(SB, 1), off(SWO, 1), 0)); A(salu('s_sub_u32', off(SB, 2), off(SWO, 2), 32768))
    A(salu('s_mov_b32', sSTEP, 65536))
    A(salu('s_lshl_b32', sOFF, sHP, 18))
    A(salu('s_sub_u32', sOFF, sOFF, 65536))
    A(salu('s_mov_b32', sNR, 0))
    for k in range(4): A(valu('v_accvgpr_read_b32', vD[k], ar(aDwo + k)))
    A(vld('v236', 4, vL16, SD, sGRP, 0, 'sc1'))
    if OPT['opf']: A(vld('v232', 1, 'v233', SWS, sPF, 0, 'sc1'))
    A(br('s_branch', 'L_loop'))
    return c

def announce():
    c = [label('L_ann')]
    A = c.append
    A(salu('s_mov_b32', sLAST, 1))
    A(salu('s_mov_b32', sCNT, 5))
    A(raw(f's_getreg_b32 {sXC}, hwreg(HW_REG_XCC_ID, 0, 3)', wr=[sXC]))
    A(salu('s_or_b32', sXC, sXC, 8))
    A(salu('s_or_b32', sT1, sW, sPASS))
    A(br('s_cbranch_scc1', 'L_loop'))
    A(salu('s_lshl_b32', sT1, sPART, 2))
    A(salu('s_lshl_b32', sT1, sXC, sT1))
    A(salu('s_lshr_b32', sT2, sPART, 3)); A(salu('s_lshl_b32', sT2, sT2, 2)); A(salu('s_add_u32', sT2, sT2, sGRP))
    A(valu('v_mov_b32', 'v229', sT1)); A(valu('v_mov_b32', 'v231', 1))
    A(I(f'buffer_atomic_or v229, {vL16}, {rng(SD,4)}, {sT2} offen offset:4 sc1', 'vst', rd=['v229', vL16, sT2] + regs(SD, 4), arg=['v229']))
    A(I(f'buffer_atomic_add v231, {vL16}, {rng(SD,4)}, {sGRP} offen sc1', 'vst', rd=['v231', vL16, sGRP] + regs(SD, 4), arg=['v231']))
    A(br('s_branch', 'L_loop'))
    return c

vOW = 'v0'
sBLK = ['s48', 's49', 's50']
sSAME = 's51'
def state_check(first):
    c = []
    A = c.append
    A(rfl(sT1, 'v236')); A(rfl(sT3, 'v237')); A(rfl(sT0, 'v238'))
    A(salu('s_and_b32', sT1, sT1, 15))
    A(salu('s_cselect_b32', sT1, 2, 0))
    A(salu('s_or_b32', sT2, sT2, sT1))
    A(salu('s_bitcmp0_b32', sPART, 3))
    A(salu('s_cselect_b32', sT3, sT3, sT0))
    A(salu('s_xor_b32', sT1, sPART, 1)); A(salu('s_lshl_b32', sT1, sT1, 2))
    A(salu('s_lshr_b32', sT3, sT3, sT1)); A(salu('s_and_b32', sT3, sT3, 15))
    A(salu('s_xor_b32', sSAME, sT3, sXC))
    return c

def epilogue():
    c = [label('L_epi')]
    A = c.append
    if OPT['bst']:
        A(wait(lg=0)); A(raw('v_mov_b32 v242, s100\n    v_cndmask_b32 v243, v243, v242, s[98:99]', 'valu', rd=['s100'], wr=['v243']))
        A(raw('s_memtime s[100:101]' if OPT['bst'] == 1 else 's_memrealtime s[100:101]')); A(raw('s_lshl_b64 s[98:99], s[98:99], 1')); A(wait(lg=0)); A(nop(3))
        A(raw('v_mov_b32 v242, s100\n    v_cndmask_b32 v243, v243, v242, s[98:99]', 'valu', rd=['s100'], wr=['v243'])); A(nop(1))
        A(valu('v_accvgpr_write_b32', 'a248', 'v243'))
    c += stamp('aef')
    A(wait(vm=0))
    A(valu('v_add_u32', t0, UP, vSH))
    A(valu('v_add_u32', t2, 8 * SL, vSH))
    def xw(rt, jd):
        if rt < 4: return dsw('ds_write_b128', t0, Oacc(rt, 4 + jd), rt * SL + jd * 1024, tag='Ow')
        return dsw('ds_write_b128', t2, Oacc(rt, 4 + jd), jd * 1024, tag='Ow')
    E, C, Ad = softmax_items(19)
    order = [4, 5, 6, 7, 0, 1, 2, 3]
    mf = pv(18, 1, order)
    duty = [ salu('s_lshl_b32', sT1, sPART, 3), salu('s_add_u32', sT1, sT1, sW),
            salu('s_mul_i32', sT1, sT1, 10240), valu('v_add_u32', vOW, sT1, vL16)] + [salu('s_mov_b32', sBLK[i], 40960 + i * 4096) for i in range(3)]
    for g, m in enumerate(mf):
        A(m)
        if duty: A(duty.pop(0))
        if g < 8: A(E[g])
        if g >= 2 and g % 2 == 0: A(C[g // 2 - 1])
    ws = [xw(rt, jd) for rt in range(4) for jd in range(4)]
    A(ws.pop(0)); A(ws.pop(0))
    for g, m in enumerate(pv(19, 1, order)):
        A(m); A(ws.pop(0)); A(Ad[g])
    for x in ws: A(x)
    LS = 184
    for rt in RS: A(valu('v_accvgpr_read_b32', vr(LS + rt), RS[rt]))
    for jd in range(4): A(xw(4, jd))
    for op in ('v_permlane16_swap_b32', 'v_permlane32_swap_b32'):
        for rt, s in vSUM.items(): A(valu('v_mov_b32', vr(LS + rt), s))
        A(nop(0))
        for rt, s in vSUM.items(): A(perm(op, s, vr(LS + rt)))
        for rt, s in vSUM.items(): A(valu('v_add_f32', s if op.startswith('v_permlane16') else vr(LS + rt), s, vr(LS + rt)))
    A(salu('s_lshl_b32', sT1, sW, 11))
    A(salu('s_add_u32', sT1, sT1, LX))
    A(salu('s_xor_b32', sT2, sT1, 2048))
    A(valu('v_add_u32', t0, sT1, vL16))
    A(valu('v_add_u32', t2, sT2, vL16))
    A(dsw('ds_write_b128', t0, vr(LS), 0)); A(dsw('ds_write_b32', t0, vr(LS + 4), 1024))
    A(valu('v_add_u32', t0, UP, vSHP))
    A(valu('v_add_u32', t1, 8 * SL, vSHP))
    A(wait(lg=0)); A(bar())
    c += stamp()
    LP = 192
    A(dsr('ds_read_b128', vr(LP), t2, 0, tag='l')); A(dsr('ds_read_b32', vr(LP + 4), t2, 1024, tag='l'))
    def TH(rt, jd): return vr(104 + (rt * 4 + jd) * 4)
    for rt in range(5):
        for jd in range(4):
            if rt < 4: A(dsr('ds_read_b128', TH(rt, jd), t0, rt * SL + jd * 1024, tag=f'Or{rt}'))
            else: A(dsr('ds_read_b128', TH(rt, jd), t1, jd * 1024, tag=f'Or{rt}'))
        if rt == 2:
            A(need(lg='l'))
            for r in range(5): A(valu('v_add_f32', vr(LS + r), vr(LS + r), vr(LP + r)))
            for r in range(5): A(valu('v_rcp_f32', vr(200 + 2 * r), vr(LS + r)))
            A(salu('s_mov_b32', sT1, f32(2.0 ** 24)))
            A(raw('s_mov_b64 s[46:47], 0', wr=['s46', 's47']))
            for r in range(5):
                A(vcmp('v_cmp_nge_f32', 'vcc', sT1, vr(LS + r)))
                A(nop(0))
                A(raw('s_or_b64 s[46:47], s[46:47], vcc', rd=['vcc', 's46', 's47'], wr=['s46', 's47']))
            A(salu('s_or_b32', sT2, sT2, sT3))
            A(salu('s_cselect_b32', sT2, 1, 0))
            c += state_check(True)
            A(salu('s_lshl_b32', sT1, sW, 2))
            A(salu('s_add_u32', sT1, sT1, LX + 8192))
            A(valu('v_mov_b32', vr(LP), sT1))
            A(valu('v_mov_b32', vr(LP + 1), sT2))
            A(dsw('ds_write_b32', vr(LP), vr(LP + 1), 0))
    for rt in range(5):
        A(need(lg=f'Or{rt}'))
        for jd in range(4):
            for h in range(2):
                A(valu('v_pk_add_f32', off(Oacc(rt, jd), 2 * h), off(Oacc(rt, jd), 2 * h), off(TH(rt, jd), 2 * h), w=2))
        for jd in range(4):
            for h in range(2):
                A(valu('v_pk_mul_f32', off(Oacc(rt, jd), 2 * h), off(Oacc(rt, jd), 2 * h), vr(200 + 2 * rt), w=2, mods='op_sel_hi:[1,0]'))
        for jd in range(4):
            for h in range(2):
                A(valu('v_cvt_pk_bf16_f32', vr(STG + rt * 8 + jd * 2 + h), off(Oacc(rt, jd), 2 * h), off(Oacc(rt, jd), 2 * h + 1)))
        for u in range(2):
            j = rt * 2 + u
            A(dsw('ds_write_b128', t0, vr(STG + j * 4), (j // 4) * SL + (j % 4) * 1024))
            i = u * 5 + rt
            A(vst(vr(STG + j * 4), 4, vOW, SWS, sBLK[i // 4], (i % 4) * 1024, OPT['ostpol'], tag='Ost'))
    A(valu('v_add_u32', t0, UP, vL16))
    A(valu('v_mov_b32', t1, LX + 8192))
    A(wait(lg=0)); A(bar())
    c += stamp('ae')
    return c

def Of(u, rt):
    f = u * 5 + rt
    return ar(4 * f) if f < 20 else ar(160 + 4 * (f - 20))

def ophase():
    c = []
    A = c.append
    vO2, vPA, vPP, vOD = 'v7', 'v8', 'v9', 'v10'
    sOWN, sPAR, sPP = 's52', 's53', 's54'
    def o_read(u, rt):
        wp, ul = u // 2, u % 2
        j = rt * 2 + ul
        return dsr('ds_read_b128', Of(u, rt), t0, (1 - wp % 2) * 8448 + (wp // 2) * 4224 + (j // 4) * SL + (j % 4) * 1024, tag=f'G{u}')
    def p_read(ch, rt):
        wp, ul = (ch - 8) % 4, (ch - 8) // 4
        j = 10 + ul * 5 + rt
        return dsr('ds_read_b128', Of(ch - 8, rt), vO2, (wp % 2) * 8448 + (wp // 2) * 4224 + (j // 4 - 2) * SL + (j % 4) * 1024, tag=f'G{ch}')
    def wo_dma(ch):
        u = ch if ch < 8 else ((ch - 8) % 4) * 2 + (ch - 8) // 4
        q = [setm0(sLDS, (ch % 4) * SL), salu('s_add_u32', sSO, sOWN if ch < 8 else sPAR, u * 32768)]
        q += [dma(vD[k], SWO, sSO, PC * k, OPT['opol'], tag=f'W{ch}') for k in range(4)]
        return q
    def p_dma(lo, hi, tag):
        q = []
        for i in range(lo, hi):
            j = 10 + i
            if i == lo or j % 4 == 0:
                q += [setm0(sLDS, UP + (j // 4) * SL), salu('s_mov_b32', sSO, 40960 + ((j // 4) * 4 - 10) * 1024)]
            q.append(dma(vOD, SWS, sSO, (j % 4) * 1024, OPT['opol2'], tag=tag))
        return q
    def acc(nt, rt): return vr(104 + (rt * 4 + nt) * 4)
    A(dsr('ds_read_b128', vr(252), t1, 0, tag='vote'))
    c += w_reads(0, 'T0')
    for rt in range(5): A(o_read(0, rt))
    A(need(lg='vote'))
    A(valu('v_or3_b32', vr(252), vr(252), vr(253), vr(254)))
    A(valu('v_or_b32', vr(252), vr(252), vr(255)))
    A(salu('s_lshl_b32', sOWN, sHP, 18))
    A(rfl(sT1, vr(252)))
    A(salu('s_xor_b32', sPAR, sOWN, 1 << 18))
    A(salu('s_andn2_b32', sT1, sT1, sPASS))
    if OPT['xl'] or OPT['xq']: A(salu('s_cmp_eq_u32', 0, 1))
    A(br('s_cbranch_scc1', 'L_notyet'))
    A(label('L_oph'))
    for rt in range(5): A(o_read(1, rt))
    mf, memq, valq, pre = [], [], [], {}
    orr = [(u, rt) for u in range(2, 8) for rt in range(5)]
    def fin(rt, ntp):
        d = STG + (rt * 2 + ntp) * 4
        v = []
        for q in range(2):
            a = acc(2 * ntp + q, rt)
            for h in range(2): v.append(valu('v_cvt_pk_bf16_f32', vr(d + 2 * q + h), off(a, 2 * h), off(a, 2 * h + 1)))
        blk = ntp * 5 + rt
        st = [vst(vr(d), 4, vOW, SWS, [0, 's49', 's50'][blk // 4], (blk % 4) * 1024, OPT['stpol'], tag='st')]
        return v, st
    pfl, ppl = OPT['pfl'], OPT['ppl']
    for ch in range(16):
        g0 = ch * 20
        pre[g0] = [need(lg=f'T{ch}')] if ch else [need(lg='G0')]
        if ch == pfl:
            pre[g0] += [salu('s_cmp_lg_u32', sSAME, 0), need(vm='Ost'), br('s_cbranch_scc1', 'L_rel'), vst(vF1, 1, vPA, SWS, sPF, 0), label('L_rel1')]
        if ch == ppl + 1:
            pre[g0] += [need(vm='pp'), vcmp('v_cmp_ne_u32', 'vcc', 0, vPP), nop(0), br('s_cbranch_vccz', 'L_pw'), label('L_pw1')]
        if ch == 7: pre[g0] += [need(vm='P0'), bar()]
        if ch == 10: pre[g0] += [need(vm='P1'), bar()]
        if ch in (0, 4, 5, 7, 8, 11, 15): pre[g0] += stamp('g')
        for rt in range(5):
            for nt in range(4):
                mf.append(mfma(acc(nt, rt), Wf(ch % 2, nt), Of(ch % 8, rt), acc(nt, rt) if ch else 0))
        if ch == ppl: memq.append((g0, vld(vPP, 1, vPA, SWS, sPP, 0, OPT['pppol'], tag='pp')))
        if ch == ppl + 1: memq += [(g0, x) for x in p_dma(0, 5, 'P0')]
        if ch == 7: memq += [(g0, p_read(8, rt)) for rt in range(5)]
        if ch + 1 < 16:
            if ch + 1 >= 4: memq.append((g0, need(vm=f'W{ch+1}')))
            memq += [(g0, x) for x in w_reads(ch + 1, f'T{ch+1}')]
        if ch == ppl + 2: memq += [(g0, x) for x in p_dma(5, 10, 'P1')]
        if ch + 4 < 16: memq += [(g0, x) for x in wo_dma(ch + 4)]
        for _ in range(10 if ch < ppl else 5):
            if orr: memq.append((g0, o_read(*orr.pop(0))))
        if 7 <= ch < 14: memq += [(g0, p_read(ch + 2, rt)) for rt in range(5)]
    assert not orr
    valq += [(0, x) for x in [valu('v_mov_b32', vF1, 1), valu('v_lshlrev_b32', vPA, 20, vL16), valu('v_add_u32', vO2, 2 * SL, t0),
                              salu('s_xor_b32', sPP, sPF, OPT['MB']), salu('s_lshl_b32', sT1, sHP, 1), salu('s_sub_u32', sT1, 1, sT1), salu('s_mul_i32', sT1, sT1, 81920), valu('v_add_u32', vOD, sT1, vOW)]]
    valq += [(12 * 20, x) for x in reduce_setup()]
    f1 = [fin(rt, ntp) for rt in range(5) for ntp in range(2)]
    for n, (v, st) in enumerate(f1[:6]):
        valq += [(15 * 20 + 4 * (n // 2) + 8, x) for x in v + st]
    body, mleft, vleft = weave(mf, memq, valq, pre, flush=False, period=20)
    assert not mleft
    c += body + [x for _, x in vleft]
    for v, st in f1[6:]: c += v + st
    c += stamp('aefg')
    c += reduce_tail()
    rare = [label('L_rel'), raw('buffer_wbl2 sc1', 'vst'), wait(vm=0), vst(vF1, 1, vPA, SWS, sPF, 0, 'sc1'), br('s_branch', 'L_rel1'),
            label('L_pw'), salu('s_mov_b32', sSTEP, 0), label('L_pw0'), vld(vPP, 1, vPA, SWS, sPP, 0, 'sc1'), wait(vm=0), vcmp('v_cmp_ne_u32', 'vcc', 0, vPP),
            salu('s_add_u32', sSTEP, sSTEP, 4096), br('s_cbranch_scc1', 'L_pw1'), br('s_cbranch_vccz', 'L_pw0'), br('s_branch', 'L_pw1')]
    rare[1].arg = []
    RARE.extend(rare)
    return c
RARE = []

SO = SB
A1, A2 = 'v24', 'v28'
vLD, vST, vST2, vFL, vPL, vF1 = ['v%d' % i for i in range(32, 38)]
vP = 'v38'
soA = ['s56', 's57', 's58', 's59']
sMB, sOA, sOB, sOC = 's60', 's61', 's62', 's63'
def job_setup(sl):
    c = []
    A = c.append
    A(salu('s_mul_i32', sMB, sl, OPT['MB'])); A(salu('s_add_u32', sMB, sMB, 16 * 81920))
    A(salu('s_lshr_b32', sT1, sl, 3)); A(salu('s_mul_i32', sT1, sT1, 81920))
    A(salu('s_and_b32', sT2, sl, 7)); A(salu('s_mul_i32', sT2, sT2, 5120)); A(salu('s_add_u32', soA[0], sT1, sT2))
    A(salu('s_add_u32', soA[1], soA[0], 4096)); A(salu('s_add_u32', soA[2], soA[0], 8 * 81920)); A(salu('s_add_u32', soA[3], soA[0], 8 * 81920 + 4096))
    A(salu('s_lshl_b32', sOA, sl, 6)); A(salu('s_add_u32', sOB, sOA, 65536)); A(salu('s_add_u32', sOC, sOA, 131072))
    return c

def reduce_setup():
    c = []
    A = c.append
    N, G = 'v41', 'v42'
    A(valu('v_bfe_u32', N, vL16, 4, 4))
    A(valu('v_lshrrev_b32', G, 8, vL16))
    A(salu('s_mul_i32', sT1, sB, 163840)); A(salu('s_lshl_b32', sT2, sBR, 10)); A(salu('s_add_u32', sT1, sT1, sT2))
    if OPT['sout']:
        A(salu('s_add_u32', SO, sT1, 70 << 20)); A(salu('s_add_u32', SO, 's78', SO)); A(salu('s_addc_u32', off(SO, 1), 's79', 0)); A(salu('s_and_b32', off(SO, 1), off(SO, 1), 0xffff))
    else:
        A(salu('s_add_u32', SO, 's68', sT1)); A(salu('s_addc_u32', off(SO, 1), 's69', 0)); A(salu('s_and_b32', off(SO, 1), off(SO, 1), 0xffff))
    A(salu('s_sub_u32', off(SO, 2), 8 * 163840, sT1))
    A(salu('s_mov_b32', 's49', 4096)); A(salu('s_mov_b32', 's50', 8192))
    c += flag_addr(vFL, vPL)
    A(valu('v_lshlrev_b32', vPL, 3, G))
    A(valu('v_mul_u32_u24', vLD, 2 * 81920, G))
    A(valu('v_lshl_add_u32', vLD, N, 4, vLD))
    A(salu('s_lshl_b32', sT1, sW, 8))
    A(valu('v_add_u32', vLD, sT1, vLD))
    A(valu('v_and_b32', vST, 1, G))
    A(valu('v_lshlrev_b32', vST, 5, vST))
    A(valu('v_lshl_add_u32', vST, N, 11, vST))
    A(salu('s_lshl_b32', sT1, sW, 3))
    A(valu('v_add_u32', vST, sT1, vST))
    A(valu('v_lshrrev_b32', G, 1, G))
    A(valu('v_lshl_add_u32', vST2, G, 28, vST))
    A(valu('v_lshl_add_u32', vST, G, 15, vST))
    A(valu('v_and_b32', G, 1, N))
    A(valu('v_lshlrev_b32', G, 4, G))
    A(valu('v_mov_b32', 'v43', 0x3f80))
    A(valu('v_lshlrev_b32', G, G, 'v43'))
    A(valu('v_lshrrev_b32', N, 1, N))
    for d0 in (0, 4):
        for d in range(4): A(vcmp('v_cmp_eq_u32', f's{56+2*d}', d0 + d, N))
        for d in range(4): A(valu('v_cndmask_b32', off(A1, d0 + d), 0, G, (f's[{56+2*d}:{57+2*d}]', [f's{56+2*d}', f's{57+2*d}'])))
    c += job_setup(sPART)
    A(salu('s_mov_b32', sSTEP, 0))
    return c

def reduce_tail():
    c = []
    A = c.append
    poll = lambda: vld(vP, 2, vPL, SWS, sMB, 0, 'sc1')
    def D(rt, i): return vr(60 + (rt * 2 + i) * 4)
    def acc(p): return vr(44 + 4 * p)
    R = ['s[44:45]', 's[46:47]']; DN = ['s[52:53]', 's[54:55]']
    A(poll())
    A(raw('s_mov_b64 s[52:53], 0', wr=['s52', 's53'])); A(raw('s_mov_b64 s[54:55], 0', wr=['s54', 's55']))
    A(wait(vm=0))
    A(vst(vF1, 1, vFL, SWS, sFL, 0, 'sc1'))
    c += stamp('ef')
    A(br('s_branch', 'L_pa1'))
    A(label('L_pa'))
    if OPT['slp']: A(raw(f"s_sleep {OPT['slp']}"))
    A(poll()); A(wait(vm=0))
    A(label('L_pa1'))
    A(vcmp('v_cmp_ne_u32', 's44', 0, vP)); A(vcmp('v_cmp_ne_u32', 's46', 0, off(vP, 1)))
    A(salu('s_add_u32', sSTEP, sSTEP, 4096))
    A(raw('s_cselect_b64 s[44:45], -1, s[44:45]', rd=['s44', 's45'], wr=['s44', 's45']))
    A(raw('s_cselect_b64 s[46:47], -1, s[46:47]', rd=['s46', 's47'], wr=['s46', 's47']))
    for i in range(2):
        A(raw(f's_andn2_b64 exec, {R[i]}, {DN[i]}', wr=['exec']))
        A(br('s_cbranch_scc0', f'L_sk{i}'))
        for rt in range(5): A(vld(D(rt, i), 4, vLD, SWS, soA[2 * i + rt // 4], (rt % 4) * 1024, OPT['ldpol']))
        A(raw(f's_mov_b64 {DN[i]}, {R[i]}'))
        A(label(f'L_sk{i}'))
    A(raw('s_mov_b64 exec, -1', wr=['exec']))
    A(raw('s_and_b64 s[44:45], s[52:53], s[54:55]', wr=['s44', 's45']))
    A(raw('s_cmp_eq_u64 s[44:45], -1', wr=['scc']))
    A(br('s_cbranch_scc0', 'L_pa'))
    c += stamp('ef')
    A(wait(vm=0))
    def fin(p):
        return [valu('v_cvt_pk_bf16_f32', vr(100 + 2 * p + h), off(acc(p), 2 * h), off(acc(p), 2 * h + 1)) for h in range(2)]
    for rt, i in [(0, 0), (2, 0), (4, 0), (0, 1), (2, 1), (4, 1), (1, 0), (3, 0), (1, 1), (3, 1)]:
        A(mfma(acc(rt // 2), A2 if rt % 2 else A1, D(rt, i), acc(rt // 2) if (rt % 2 or i) else 0))
    c += [nop(3)] + fin(2) + [vst(vr(104), 2, vST2, SO, sOC, 0), nop(0)] + fin(0) + fin(1) + [vst(vr(100), 2, vST, SO, sOA, 0), vst(vr(102), 2, vST, SO, sOB, 0)]
    A(label('L_fin'))
    return c

def reduce_rare():
    c = list(RARE)
    A = c.append
    A(label('L_notyet'))
    A(salu('s_bitcmp1_b32', sT1, 0)); A(br('s_cbranch_scc1', 'L_fallback'))
    A(salu('s_mov_b32', sSTEP, 0))
    A(label('L_ny0'))
    A(vld('v236', 4, vL16, SD, sGRP, 0, 'sc1')); A(wait(vm=0))
    A(salu('s_mov_b32', sT2, 0))
    c += state_check(False)
    A(salu('s_add_u32', sSTEP, sSTEP, 4096)); A(br('s_cbranch_scc1', 'L_oph'))
    A(salu('s_cmp_lg_u32', sT2, 0)); A(br('s_cbranch_scc1', 'L_ny0'))
    A(br('s_branch', 'L_oph'))
    return c

def fallback():
    c = [label('L_fallback')]
    A = c.append
    A(wait(vm=0, lg=0)); A(bar())
    A(salu('s_mov_b32', sPASS, 1))
    c += kv_mode()
    for k in range(4): A(valu('v_accvgpr_read_b32', vD[k], ar(aDkv + k)))
    for rt in range(5): A(valu('v_mov_b32', Mn(rt), 0xff800000))
    A(salu('s_and_b32', sT1, sW, 1))
    A(salu('s_mul_i32', sT1, sT1, 8448))
    A(valu('v_subrev_u32', t2, sT1, vK))
    A(salu('s_mov_b32', sSO, 0))
    A(setm0(sLDS, 0))
    A(label('L_fb_loop'))
    A(nop(0))
    for k in range(4): A(dma(vD[k], SA, sSO, PC * k))
    A(wait(vm=0)); A(bar())
    for hf in range(2):
        for t in range(2):
            for cc in range(4): A(dsr('ds_read_b128', Kf(hf, t, cc), t2, hf * 8448 + t * 512 + cc * 64))
    A(wait(lg=0)); A(bar())
    for rt in range(5):
        for hf in range(2):
            for t in range(2):
                for cc in range(4): A(mfma(Sb(hf, t), Kf(hf, t, cc), Qf(rt, cc), Sb(hf, t) if cc else 0))
        A(nop(7))
        for n in range(0, 16, 2): A(valu('v_max3_f32', Mn(rt), Mn(rt), off(Sb(0, 0), n), off(Sb(0, 0), n + 1)))
    A(salu('s_add_u32', sSO, sSO, 16384))
    A(salu('s_cmp_lt_u32', sSO, 524288))
    A(br('s_cbranch_scc1', 'L_fb_loop'))
    c += max_finish()
    for i in range(4):
        c += kv_tile_dma('K', i, 'x') + kv_tile_dma('V', i, 'x')
    for i in range(80): A(valu('v_mov_b32', vr(24 + i), 0))
    for s in vSUM.values(): A(valu('v_mov_b32', s, 0))
    for i in range(80): A(valu('v_accvgpr_write_b32', ar(i), 0))
    for i in range(8): A(valu('v_accvgpr_write_b32', ar(224 + i), 0))
    A(valu('v_mov_b32', t0, 0x3f803f80))
    for i in range(4): A(valu('v_accvgpr_write_b32', off(ONES, i), t0))
    c += state_init()
    A(wait(vm=0)); A(bar())
    c += kv_frag_reads(0, 'K') + kv_frag_reads(0, 'V')
    A(wait(lg=0)); A(bar())
    A(br('s_branch', 'L_loop_in'))
    return c

def stamps_out():
    if OPT['bst']:
        c = []
        A = c.append
        A(salu('s_add_u32', 's4', 's78', 66 << 20)); A(salu('s_addc_u32', 's5', 's79', 0)); A(salu('s_and_b32', 's5', 's5', 0xffff))
        A(salu('s_mov_b32', 's6', 1 << 20)); A(salu('s_mov_b32', 's7', 0x20000))
        A(salu('s_lshl_b32', sT1, 's2', 10))
        A(salu('s_lshl_b32', sT2, sW, 8)); A(salu('s_add_u32', sT1, sT1, sT2))
        A(valu('v_lshrrev_b32', t0, 2, vL16))
        A(valu('v_accvgpr_read_b32', t2, 'a248'))
        A(vst(t2, 1, t0, 's4', sT1, 0))
        return c
    if not OPT['stamps']: return []
    c = []
    A = c.append
    n = stamp_n[0]
    A(wait(vm=0))
    c += stamp('abef')
    n = stamp_n[0]
    if OPT['diag']:
        assert n == 8
        A(salu('s_cmp_lg_u32', sW, 0)); A(br('s_cbranch_scc1', 'L_end'))
        A(salu('s_mov_b32', 's4', 's76')); A(salu('s_and_b32', 's5', 's77', 0xffff)); A(salu('s_mov_b32', 's6', 160)); A(salu('s_mov_b32', 's7', 0x20000))
        A(valu('v_lshrrev_b32', t0, 2, vL16))
        for i in range(8):
            A(salu('s_sub_u32', sT1, f's{82+2*i}', 's82')); A(raw(f'v_writelane_b32 {t1}, {sT1}, {i}', 'valu', rd=[sT1], wr=[t1]))
        for i, (st, inv) in enumerate([(7, 0), (0, 1), (0, 0), (3, 0), (3, 1), (4, 0), (4, 1), (7, 1)]):
            A(salu('s_not_b32' if inv else 's_mov_b32', sT1, f's{82+2*st}')); A(raw(f'v_writelane_b32 {t2}, {sT1}, {i}', 'valu', rd=[sT1], wr=[t2]))
        A(salu('s_mov_b32', sT1, 128))
        A(I(f'buffer_atomic_add {t1}, {t0}, s[4:7], {sT1} offen sc1', 'vst', rd=[t1, t0], arg=[t1]))
        A(salu('s_mov_b32', 's6', 192)); A(salu('s_mov_b32', sT1, 160))
        A(I(f'buffer_atomic_umax {t2}, {t0}, s[4:7], {sT1} offen sc1', 'vst', rd=[t2, t0], arg=[t2]))
        return c
    if OPT['dbg']:
        A(salu('s_mov_b32', 's4', 's76')); A(salu('s_and_b32', 's5', 's77', 0xffff)); A(salu('s_mov_b32', 's6', 256)); A(salu('s_mov_b32', 's7', 0x20000))
        A(salu('s_lshl_b32', sT1, 's2', 2)); A(salu('s_add_u32', sT1, sT1, sW))
        A(salu('s_cmp_lg_u32', sT1, OPT['dbg'])); A(br('s_cbranch_scc1', 'L_end'))
        A(valu('v_mov_b32', t0, 0))
        for i in range(1, n):
            A(salu('s_sub_u32', sT1, f's{82+2*i}', 's82'))
            A(valu('v_mov_b32', t1, sT1))
            A(vst(t1, 1, t0, 's4', 0, 4 * i))
            A(wait(vm=0))
        return c
    if OPT['sout']:
        A(salu('s_mov_b32', 's4', 's68')); A(salu('s_and_b32', 's5', 's69', 0xffff))
        A(raw('s_getreg_b32 s100, hwreg(HW_REG_XCC_ID)')); A(raw('s_getreg_b32 s101, hwreg(HW_REG_HW_ID)'))
    else:
        A(salu('s_add_u32', 's4', 's78', 64 << 20)); A(salu('s_addc_u32', 's5', 's79', 0)); A(salu('s_and_b32', 's5', 's5', 0xffff))
    A(salu('s_mov_b32', 's6', 1 << 20)); A(salu('s_mov_b32', 's7', 0x20000))
    A(salu('s_lshl_b32', sT1, 's2', 2)); A(salu('s_add_u32', sT1, sT1, sW)); A(salu('s_lshl_b32', sT1, sT1, 6))
    if OPT['sout']:
        A(valu('v_mov_b32', t0, 0))
        A(valu('v_mov_b32', t1, 's100')); A(vst(t1, 1, t0, 's4', sT1, 56)); A(wait(vm=0))
        A(valu('v_mov_b32', t1, 's101')); A(vst(t1, 1, t0, 's4', sT1, 60)); A(wait(vm=0))
    A(valu('v_mov_b32', t0, 0))
    for i in range(16 if OPT['stamps'] == 3 else n):
        A(valu('v_mov_b32', t1, f's{82+i}' if OPT['stamps'] == 3 else f's{82+2*i}'))
        A(vst(t1, 1, t0, 's4', sT1, 4 * i))
        A(wait(vm=0))
    return c

def diag_code():
    c = [label('L_diag')]
    A = c.append
    A(wait(vm=0))
    dst = ['s44', 's45', 's46', 's47']
    for d, e in zip(dst, OPT['diag'].split(',')):
        if e[0] == 'm': A(salu('s_lshr_b32', d, f's{52+int(e[1])}', 8))
        elif e[0] == 'x': A(salu('s_add_u32', d, f's{60+int(e[1])}', 's61'))
        elif e[0] == 'n': A(salu('s_sub_u32', d, 's61', f's{60+int(e[1])}'))
        A(salu('s_min_u32', d, d, 20000))
    A(valu('v_mov_b32', 'v10', 0)); A(valu('v_lshlrev_b32', 'v11', 4, vL16))
    for i, (d, ins) in enumerate(zip(dst, [vld('v12', 1, 'v10', SX, 0), vld('v12', 1, 'v10', SX, 0, 0, 'sc1'), mfma('v24', 'v28', 'v28', 'v24'), dsr('ds_read_b32', 'v13', 'v11')])):
        A(label(f'L_dg{i}')); A(ins); A(wait(vm=8, lg=4)); A(salu('s_sub_u32', d, d, 1)); A(br('s_cbranch_scc0', f'L_dg{i}'))
    A(raw('s_endpgm'))
    return c

def kernel1():
    st0 = stamp('abcdefg')
    pre, R = setup()
    pre = pre[:2] + st0 + pre[2:]
    part1 = resolve(pre + qphase(R) + prologue())
    blocks = [block(j) for j in range(4)]
    first = [x for x in blocks[0] if x.kind == 'mfma'][0]
    entry = [label('L_loop_in'), first, br('s_branch', 'L_loop_mid')]
    loop = [label('L_loop')] + sum(blocks, []) + [br('s_cbranch_scc0', 'L_loop')]
    sw = switch_wo()
    part3 = resolve(epilogue() + ophase()) + stamps_out() + [label('L_end'), raw('s_endpgm')]
    fb = fallback()
    mid = [i for i, x in enumerate(loop) if x.kind == 'label' and x.arg == 'L_loop_mid'][0]
    ann = announce()
    tr = part1 + entry + loop[mid:] + sw[:4] + ann + loop + sw + loop + sw[:2] + part3
    errs = check(tr, 'k1')
    vb = [i for i, x in enumerate(part3) if x.kind == 'br' and x.arg == 'L_notyet'][0]
    errs += check(part3[:vb + 1] + fb + entry + loop[mid:] + loop, 'fb')
    assert part1[-1].kind == 'br'
    rr = resolve(reduce_rare())
    errs += check(rr, 'rare')
    code = part1[:-1] + entry + [raw('.p2align 6', 'cmt')] + loop + sw + part3 + ann + rr + fb + (diag_code() if OPT['diag'] else [])
    return code, errs

def kernel2():
    c = []
    A = c.append
    A(salu('s_cmp_ge_u32', 's2', 320)); A(br('s_cbranch_scc1', 'L2_end'))
    if OPT['stamps']: A(raw('s_memrealtime s[30:31]'))
    A(raw('s_load_dwordx2 s[4:5], s[0:1], 96', wr=['s4', 's5']))
    if OPT['stamps']: A(raw('s_load_dwordx2 s[40:41], s[0:1], 96'))
    A(raw('s_load_dwordx2 s[8:9], s[0:1], 80', wr=['s8', 's9']))
    A(salu('s_mul_hi_u32', 's12', 's2', 0xcccccccd)); A(salu('s_lshr_b32', 's12', 's12', 4))
    A(salu('s_mul_i32', 's13', 's12', 20)); A(salu('s_sub_u32', 's13', 's2', 's13'))
    A(valu('v_lshrrev_b32', 'v1', 6, 'v0'))
    A(valu('v_lshlrev_b32', 'v2', 4, 'v0'))
    A(rfl('s14', 'v1'))
    A(salu('s_lshl_b32', 's15', 's13', 12))
    A(valu('v_add_u32', 'v2', 's15', 'v2'))
    A(salu('s_mul_i32', 's16', 's12', 16 * 81920))
    A(wait(lg=0))
    A(salu('s_add_u32', 's4', 's4', 's16')); A(salu('s_addc_u32', 's5', 's5', 0)); A(salu('s_and_b32', 's5', 's5', 0xffff))
    A(salu('s_mov_b32', 's6', 16 * 81920)); A(salu('s_mov_b32', 's7', 0x20000))
    for p in range(16):
        A(salu('s_mov_b32', 's17', p * 81920))
        A(vld(vr(16 + 4 * p), 4, 'v2', 's4', 's17', 0, OPT['ldpol'], tag=f'p{p}'))
    A(salu('s_and_b32', 's9', 's9', 0xffff)); A(salu('s_mov_b32', 's10', 8 * 80 * 1024 * 2)); A(salu('s_mov_b32', 's11', 0x20000))
    A(salu('s_lshl_b32', 's15', 's13', 2)); A(salu('s_add_u32', 's15', 's15', 's14'))
    A(salu('s_and_b32', 's18', 's15', 1))
    A(salu('s_lshr_b32', 's15', 's15', 1))
    A(salu('s_mul_i32', 's19', 's15', 205)); A(salu('s_lshr_b32', 's19', 's19', 10))
    A(salu('s_mul_i32', 's20', 's19', 5)); A(salu('s_sub_u32', 's20', 's15', 's20'))
    A(salu('s_and_b32', 's21', 's12', 7))
    A(salu('s_lshr_b32', 's22', 's12', 3))
    A(salu('s_mul_i32', 's21', 's21', 5)); A(salu('s_add_u32', 's21', 's21', 's20')); A(salu('s_lshl_b32', 's21', 's21', 15))
    A(salu('s_lshl_b32', 's22', 's22', 10)); A(salu('s_add_u32', 's21', 's21', 's22'))
    A(salu('s_lshl_b32', 's19', 's19', 7)); A(salu('s_add_u32', 's21', 's21', 's19'))
    A(salu('s_lshl_b32', 's18', 's18', 6)); A(salu('s_add_u32', 's21', 's21', 's18'))
    A(valu('v_and_b32', 'v3', 15, 'v0')); A(valu('v_lshlrev_b32', 'v3', 11, 'v3'))
    A(valu('v_bfe_u32', 'v4', 'v0', 4, 2)); A(valu('v_lshl_add_u32', 'v3', 'v4', 3, 'v3'))
    A(salu('s_mov_b32', 's23', 0xffff0000))
    for p in range(16):
        A(need(vm=f'p{p}'))
        for i in range(4):
            src = vr(16 + 4 * p + i)
            if p == 0:
                A(valu('v_lshlrev_b32', vr(8 + 2 * i), 16, src)); A(valu('v_and_b32', vr(9 + 2 * i), 's23', src))
            else:
                A(valu('v_lshlrev_b32', vr(80 + 2 * i), 16, src)); A(valu('v_and_b32', vr(81 + 2 * i), 's23', src))
        if p:
            for i in range(4): A(valu('v_pk_add_f32', vr(8 + 2 * i), vr(8 + 2 * i), vr(80 + 2 * i), w=2))
    for i in range(4): A(valu('v_cvt_pk_bf16_f32', vr(4 + i), vr(8 + 2 * i), vr(9 + 2 * i)))
    A(vst('v4', 2, 'v3', 's8', 's21', 0)); A(vst('v6', 2, 'v3', 's8', 's21', 32))
    if OPT['stamps']:
        A(wait(vm=0)); A(raw('s_memrealtime s[32:33]')); A(wait(lg=0))
        A(salu('s_add_u32', 's40', 's40', 65 << 20)); A(salu('s_addc_u32', 's41', 's41', 0)); A(salu('s_and_b32', 's41', 's41', 0xffff))
        A(salu('s_mov_b32', 's42', 1 << 20)); A(salu('s_mov_b32', 's43', 0x20000))
        A(salu('s_lshl_b32', 's34', 's2', 2)); A(salu('s_add_u32', 's34', 's34', 's14')); A(salu('s_lshl_b32', 's34', 's34', 3))
        A(valu('v_mov_b32', 'v1', 0)); A(valu('v_mov_b32', 'v10', 's30')); A(valu('v_mov_b32', 'v11', 's32'))
        A(vst('v10', 2, 'v1', 's40', 's34', 0))
    A(label('L2_end')); A(raw('s_endpgm'))
    c = resolve(c)
    return c, check(c, 'k2')

def desc(name, vg, acc):
    return f""".p2align 6
.amdhsa_kernel {name}
  .amdhsa_next_free_vgpr {vg}
  .amdhsa_next_free_sgpr 102
  .amdhsa_accum_offset {acc}
  .amdhsa_group_segment_fixed_size 0
  .amdhsa_kernarg_size 104
  .amdhsa_user_sgpr_count 2
  .amdhsa_user_sgpr_kernarg_segment_ptr 1
  .amdhsa_system_sgpr_workgroup_id_x 1
.end_amdhsa_kernel
"""

def main():
    assert (LX // 2048) % 2 == 0 or True
    k1, e1 = kernel1()
    k2, e2 = kernel2()
    for e in e1 + e2: print('HAZARD', e)
    K1, K2 = NAME + '_kernel', 'reduce_parts_kernel'
    hdr = open('cdna_kernels/' + NAME + '.s.ref').read().split('; Override launch')[0]
    s = hdr
    s += f'; @launch grid=(256,1,1) block=(256,1,1) lds=163840\n'
    s += '.amdgcn_target "amdgcn-amd-amdhsa--gfx950"\n.text\n'
    for n, k in ((K1, k1),):
        s += f'.globl {n}\n.p2align 8\n.type {n},@function\n{n}:\n' + render(k)
    s += 'L_code_end:\n'
    s += '.section .rodata,"a"\n' + desc(K1, 512, 256)
    open(sys.argv[1], 'w').write(s)
    print('instrs', len(k1), len(k2), 'errors', len(e1) + len(e2))
main()
```

```python
import sys, math, struct
from asmlib import *

NAME = 'concat_heads__gqa_block_cached__gqa_block_cached__near_ridge'
OPT = dict(xd=2, wsw=6, qs=0, sp=4, ta=2, tb=4, kvs='12,13,14,15,16,16', xb=5, il=8, tln=1, cw=0, xw=0, tlb=0, diag='', delay=0, f0ch=10, fl0=6, MB=256, slp=0, sout=0, fuse=1, cbase=0, cstr=16, limit=2000, scr=0, lpf=1, cpf=1, rb=8, rp=8, xq='', wpol0='', wn0=2, xpol='', opol='', wpol='', bst=0, qkord=0, xl='', kvpf=0, kv0=11, kvlate=2, rot=1, sg='a', samekv=0, stamps=0, kvpol='nt', pf=0, stpol='sc1', ldpol='sc1', dbg=0)
for a in sys.argv[2:]:
    k, v = a.split('=')
    OPT[k] = int(v) if v.lstrip('-').isdigit() else v.replace('+', ' ')

SL = 16896
PC = 1056
UP = 4 * SL
LX = 9 * SL
GS = 16 * 81920 + 16 * OPT['MB']
def f32(x): return struct.unpack('<I', struct.pack('<f', x))[0]

SX, SA, SB, SWQ, SWO, SWS = 's4', 's8', 's12', 's16', 's20', 's24'
SD = SX
sKb, sVb = 's28', 's30'
sW, sB, sHKV, sHP, sBR, sCNT, sOFF, sSTEP, sLDS, sPASS, sNR, sLAST = ['s%d' % i for i in range(32, 44)]
sT0, sT1, sT2, sT3 = 's44', 's45', 's46', 's47'
sSO = 's80'
sWOFF = 's81'
sPO = 's3'
sGRP, sPART, sTODO, sFL = 's70', 's71', 's72', 's73'
sXQ = ['s48', 's49', 's50', 's51']
vL16 = 'v1'
vD = ['v2', 'v3', 'v4', 'v5']
vK, vK2, vVa, vVa2, vVb, vVb2 = 'v6', 'v7', 'v8', 'v9', 'v10', 'v11'
vT = ['v12', 'v13', 'v14', 'v15']
vSUM = {4: 'v16', 1: 'v17', 2: 'v18'}
vSH, vSHP = 'v19', 'v20'
t0, t1, t2 = 'v21', 'v22', 'v23'
def vr(n): return f'v{n}'
def ar(n): return f'a{n}'
def Oacc(rt, ld): return vr(24 + (rt * 4 + ld) * 4) if ld < 4 else ar((rt * 4 + ld - 4) * 4)
def Vf(b, ld): return vr(104 + 32 * b + 4 * ld)
def Sb(k, t): return vr(168 + 8 * (k % 4) + 4 * t)
def Pb(k): return vr(200 + 4 * (k % 2))
def Mn(rt): return vr(208 + 4 * rt)
def Qf(rt, c): return ar(80 + (rt * 4 + c) * 4)
def Kf(b, t, c): return ar(160 + 32 * b + (t * 4 + c) * 4)
RS = {3: 'a224', 0: 'a228'}
ONES = 'a232'
aDwo, aDkv = 240, 244
def off(r, n): return f'{r[0]}{int(r[1:]) + n}'
vDwo = ['v228', 'v229', 'v230', 'v231']
vW = ['v232', 'v233', 'v234', 'v235']
vXd = 'v236'; vXdr = ['v236', 'v216', 'v217', 'v218', 'v219']; vXr = ['v237', 'v238']; vXr4 = ['v239', 'v240']; vPF, vPFd = 'v241', 'v242'
def Qacc(dt, rt): return vr(104 + (rt * 4 + dt) * 4)
def Wf(b, nt): return vr(184 + 16 * b + 4 * nt)
def Xf(c, rt):
    f = c * 5 + rt
    if f < 16: return ar(160 + 4 * f)
    if f < 56: return ar(4 * (f - 16))
    if f < 64: return ar(224 + 4 * (f - 56))
    return ar(160 + 4 * (f - 64))
STG = 216

stamp_n = [0]
def stamp(grp='a'):
    if not OPT['stamps'] or OPT['sg'] not in grp: return []
    i = stamp_n[0]; stamp_n[0] += 1
    if OPT['stamps'] == 3:
        assert i < 8
        return [raw('s_memtime s[98:99]'), raw('s_memrealtime s[100:101]'), wait(lg=0), salu('s_mov_b32', f's{82+i}', 's98'), salu('s_mov_b32', f's{90+i}', 's100')]
    op = 's_memrealtime' if OPT['stamps'] == 2 else 's_memtime'
    return [raw(f'{op} s[{82+2*i}:{83+2*i}]', wr=[f's{82+2*i}', f's{83+2*i}']), wait(lg=0)]

def setm0(base, const): return salu('s_add_u32', 'm0', base, const)

def kv_tile_dma(which, tile, tag):
    sig = 2 * (tile % 4) + (which == 'V')
    srd = SA if which == 'K' else SB
    q = [setm0(sLDS, sig * SL), salu('s_mov_b32', sSO, tile * 16384)]
    q += [dma(vD[k], srd, sSO, PC * k, OPT['kvpol'], tag=tag) for k in range(4)]
    return q

def setup():
    c = []
    A = c.append
    A(salu('s_cmp_ge_u32', 's2', 256)); A(br('s_cbranch_scc1', 'L_end'))
    A(raw('s_load_dwordx16 s[48:63], s[0:1], 0', wr=regs('s48', 16)))
    A(raw('s_load_dwordx4 s[64:67], s[0:1], 64', wr=regs('s64', 4)))
    A(raw('s_load_dwordx4 s[76:79], s[0:1], 88', wr=regs('s76', 4)))
    A(raw('s_load_dwordx2 s[68:69], s[0:1], 80', wr=regs('s68', 2)))
    L, G, Q, WV, KH, HH, RP, R4, C4 = ['v%d' % i for i in range(244, 253)]
    if OPT['delay']:
        A(salu('s_and_b32', sT1, 's2', 0x1b)); A(salu('s_cmp_lg_u32', sT1, 0x0a)); A(br('s_cbranch_scc1', 'L_nodelay'))
        A(salu('s_mov_b32', sT1, OPT['delay']))
        A(label('L_delay')); A(raw('s_sleep 127')); A(salu('s_sub_u32', sT1, sT1, 1)); A(br('s_cbranch_scc0', 'L_delay'))
        A(label('L_nodelay'))
    if OPT['scr']:
        A(salu('s_lshr_b32', sT1, 's2', 5)); A(salu('s_and_b32', 's2', 's2', 31)); A(salu('s_lshl_b32', 's2', 's2', 3)); A(salu('s_or_b32', 's2', 's2', sT1))
    A(salu('s_lshr_b32', sT1, 's2', 3))
    if OPT['cpf']:
        A(raw('s_getpc_b64 s[74:75]', wr=['s74', 's75']))
        A(label('L_pc'))
        A(salu('s_lshl_b32', sT2, sT1, 10))
        A(valu('v_lshrrev_b32', t0, 5, 'v0'))
        A(raw('s_min_u32 s46, s46, L_code_end-L_pc-1024', rd=['s46'], wr=['s46']))
        A(valu('v_lshlrev_b32', t0, 7, t0))
        A(salu('s_add_u32', 's74', 's74', sT2))
        A(salu('s_addc_u32', 's75', 's75', 0))
        A(I(f'global_load_dword {vPFd}, {t0}, s[74:75]', 'vld', rd=[t0, 's74', 's75'], wr=[vPFd], tag='cpf'))
    A(valu('v_lshrrev_b32', WV, 6, 'v0'))
    A(valu('v_bfe_u32', RP, 'v0', 3, 3))
    A(rfl(sW, WV))
    A(valu('v_and_b32', C4, 7, 'v0'))
    A(valu('v_and_b32', t1, OPT['wsw'], RP))
    A(valu('v_xor_b32', R4, C4, t1))
    A(valu('v_and_b32', t1, 4, RP))
    A(valu('v_add_u32', t1, t1, RP))
    A(valu('v_lshlrev_b32', t1, 13, t1))
    A(valu('v_lshl_add_u32', t1, WV, 7, t1))
    A(valu('v_lshl_add_u32', vW[0], R4, 4, t1))
    for k in range(1, 4):
        A(valu('v_add_u32', vW[k], (16 * (k % 2) + 4 * (k // 2)) * 8192 - PC * k, vW[0]))
    A(salu('s_and_b32', sT0, 's2', 3))
    A(salu('s_lshl_b32', sT0, sT0, 2))
    A(salu('s_and_b32', sT2, sT1, 3))
    A(salu('s_add_u32', sT0, sT0, sT2))
    A(salu('s_lshr_b32', sB, sT1, 2))
    A(salu('s_mul_i32', sWOFF, sB, OPT['rb']))
    A(salu('s_mul_i32', sT2, sT2, OPT['rp']))
    A(salu('s_add_u32', sWOFF, sWOFF, sT2))
    A(salu('s_and_b32', sWOFF, sWOFF, 15))
    A(salu('s_and_b32', sT2, sW, 2))
    A(salu('s_add_u32', 's3', sWOFF, sT2))
    A(salu('s_lshl_b32', 's3', 's3', 6))
    A(salu('s_lshl_b32', sWOFF, sWOFF, 18))
    A(salu('s_mul_i32', sT2, sT2, 2112))
    A(salu('s_and_b32', sT1, sW, 1))
    A(salu('s_mul_i32', sT1, sT1, 8448))
    A(salu('s_add_u32', sLDS, sT1, sT2))
    A(salu('s_lshl_b32', sT1, sT0, 9))
    A(salu('s_sub_u32', off(SWQ, 2), 512 * 8192, sT1))
    A(salu('s_mov_b32', off(SWQ, 3), 0x20000))
    A(setm0(sLDS, UP))
    A(valu('v_bfe_u32', t2, 'v0', 3, 4))
    A(valu('v_lshrrev_b32', t1, 1, t2))
    A(valu('v_xor_b32', t1, t1, C4))
    A(valu('v_lshlrev_b32', t1, 4, t1))
    A(valu('v_lshl_add_u32', vXd, t2, 10, t1))
    A(salu('s_mul_i32', sT2, sB, 81920))
    A(salu('s_bitcmp0_b32', 's2', 2))
    A(wait(lg=0))
    c += stamp('bh')
    A(raw('s_cselect_b64 s[16:17], s[54:55], s[64:65]'))
    A(raw('s_cselect_b64 s[4:5], s[54:55], s[64:65]' if OPT['xw'] else 's_cselect_b64 s[4:5], s[48:49], s[58:59]'))
    A(raw('s_cselect_b64 s[70:71], s[50:51], s[60:61]'))
    A(raw('s_cselect_b64 s[72:73], s[52:53], s[62:63]'))
    A(raw('s_cselect_b64 s[20:21], s[56:57], s[66:67]'))
    A(salu('s_add_u32', SWQ, SWQ, sT1))
    A(salu('s_addc_u32', off(SWQ, 1), off(SWQ, 1), 0))
    A(salu('s_and_b32', off(SWQ, 1), off(SWQ, 1), 0xffff))
    if OPT['tlb'] & 4:
        A(salu('s_add_u32', SX, SX, sT2))
        A(salu('s_addc_u32', off(SX, 1), off(SX, 1), 0))
        A(salu('s_and_b32', off(SX, 1), off(SX, 1), 0xffff))
        A(salu('s_add_u32', 's52', SWQ, sWOFF)); A(salu('s_addc_u32', 's53', off(SWQ, 1), 0))
        A(valu('v_mov_b32', 'v254', 's52')); A(valu('v_mov_b32', 'v255', 's53'))
        ln = OPT['tln']
        A(raw(f'v_writelane_b32 v254, s4, {ln}', 'valu', rd=['s4'], wr=['v254'])); A(raw(f'v_writelane_b32 v255, s5, {ln}', 'valu', rd=['s5'], wr=['v255']))
        A(I('global_load_dword v253, v[254:255], off', 'vld', rd=['v254', 'v255'], wr=['v253'], tag='tl'))
    c += w_dma(0)[2:]
    c += stamp('bh')
    if not OPT['tlb'] & 4:
        A(salu('s_add_u32', SX, SX, sT2))
        A(salu('s_addc_u32', off(SX, 1), off(SX, 1), 0))
        A(salu('s_and_b32', off(SX, 1), off(SX, 1), 0xffff))
    if OPT['tlb'] & 8:
        A(raw('s_load_dword s52, s[4:5], 0', rd=['s4', 's5'], wr=['s52']))
    A(salu('s_mov_b32', off(SX, 2), 81920))
    A(salu('s_mov_b32', off(SX, 3), 0x20000))
    A(salu('s_lshl_b32', sT3, sW, 10))
    A(salu('s_and_b32', sXQ[0], 's3', 1023))
    xd = x_dma(0, False)
    for rt in range(5):
        A(xd[2 * rt])
        A(valu('v_add_u32', vXdr[rt + 1], (rt + 1) * 16384, vXd) if rt < 4 else nop(0))
        A(xd[2 * rt + 1])
        if rt == 0: c += stamp('bh')
    c += stamp('bh')
    if OPT['stamps'] and OPT['sg'] == 'h':
        for n in (9, 8, 5, 4, 0): c += [wait(vm=n)] + stamp('h')
    return c, (L, G, Q, WV, KH, HH, RP, R4, C4)

def setup2(R):
    L, G, Q, WV, KH, HH, RP, R4, C4 = R
    c = []
    A = c.append
    def srd(s, ptr, offreg, nrec):
        A(salu('s_add_u32', s, ptr, offreg))
        A(salu('s_addc_u32', off(s, 1), off(ptr, 1), 0))
        A(salu('s_and_b32', off(s, 1), off(s, 1), 0xffff))
        A(salu('s_mov_b32', off(s, 2), nrec))
        A(salu('s_mov_b32', off(s, 3), 0x20000))
    for q in range(1, 4):
        A(salu('s_add_u32', sXQ[q], 's3', q * 256))
        A(salu('s_and_b32', sXQ[q], sXQ[q], 1023))
    A(salu('s_bfe_u32', sBR, 's2', 0x10002))
    A(salu('s_and_b32', sHP, sT0, 1))
    A(salu('s_lshr_b32', sHKV, sT0, 1))
    A(valu('v_and_b32', L, 63, 'v0'))
    A(valu('v_lshlrev_b32', vL16, 4, L))
    A(valu('v_and_b32', KH, 1, WV))
    A(valu('v_lshrrev_b32', HH, 1, WV))
    A(valu('v_lshlrev_b32', t1, 10, RP))
    A(valu('v_lshl_add_u32', t1, WV, 8, t1))
    A(valu('v_lshl_add_u32', vDwo[0], R4, 4, t1))
    for k in range(1, 4):
        A(valu('v_add_u32', vDwo[k], (8192 - PC) * k, vDwo[0]))
    A(valu('v_lshlrev_b32', vPF, 7, 'v0'))
    A(salu('s_lshl_b32', sT1, sB, 3))
    A(salu('s_add_u32', sT1, sT1, sHKV))
    A(salu('s_lshl_b32', sT1, sT1, 19))
    for dst, p in ((sKb, 's70'), (sVb, 's72')):
        A(salu('s_add_u32', dst, p, sT1))
        A(salu('s_addc_u32', off(dst, 1), off(p, 1), 0))
        A(salu('s_sub_u32', dst, dst, 96))
        A(salu('s_subb_u32', off(dst, 1), off(dst, 1), 0))
        A(salu('s_and_b32', off(dst, 1), off(dst, 1), 0xffff))
    if OPT['tlb'] & 1:
        A(raw('s_load_dword s52, s[28:29], 96', rd=['s28', 's29'], wr=['s52'])); A(raw('s_load_dword s53, s[30:31], 96', rd=['s30', 's31'], wr=['s53']))
    ca = c; c = []; A = c.append
    c += kv_mode()
    A(salu('s_mov_b32', off(SA, 3), 0x20000))
    A(salu('s_mov_b32', off(SB, 3), 0x20000))
    A(salu('s_lshl_b32', sT1, sT0, 18))
    srd(SWO, SWO, sT1, 262144)
    A(salu('s_lshl_b32', sT1, sBR, 3))
    A(salu('s_add_u32', sGRP, sT1, sB))
    A(salu('s_mul_i32', sT1, sGRP, GS))
    srd(SWS, 's78', sT1, GS)
    A(salu('s_mov_b32', sPART, sT0))
    A(salu('s_mov_b32', sPASS, 0))
    if OPT['tlb'] & 2:
        A(raw('s_load_dword s54, s[20:21], 0', rd=['s20', 's21'], wr=['s54'])); A(raw('s_load_dword s55, s[24:25], 0', rd=['s24', 's25'], wr=['s55']))
        A(raw('s_load_dword s56, s[68:69], 0', rd=['s68', 's69'], wr=['s56'])); A(raw('s_load_dword s57, s[76:77], 0', rd=['s76', 's77'], wr=['s57']))
    A(valu('v_lshrrev_b32', G, 4, L))
    A(valu('v_and_b32', Q, 15, L))
    A(valu('v_bfe_u32', R4, L, 2, 2))
    A(valu('v_and_b32', C4, 3, L))
    A(valu('v_lshrrev_b32', t0, 1, Q))
    A(valu('v_xor_b32', t0, t0, G))
    A(valu('v_lshlrev_b32', t0, 4, t0))
    A(valu('v_lshl_add_u32', vXr[0], Q, 7, t0))
    A(valu('v_xor_b32', vXr[1], 64, vXr[0]))
    A(valu('v_add_u32', vXr4[0], 8 * SL, vXr[0]))
    A(valu('v_add_u32', vXr4[1], 8 * SL, vXr[1]))
    A(valu('v_mul_u32_u24', t0, 4224, HH))
    A(valu('v_mul_u32_u24', t1, 8448, KH))
    A(valu('v_add_u32', t2, t0, vL16))
    A(valu('v_add_u32', vSH, t2, t1))
    A(valu('v_sub_u32', vSHP, t2, t1))
    A(valu('v_add_u32', vSHP, 8448, vSHP))
    A(valu('v_add_u32', t2, t0, t1))
    A(valu('v_and_b32', t0, 1, G))
    A(valu('v_lshl_add_u32', t0, t0, 2, R4))
    A(valu('v_lshl_add_u32', t2, t0, 7, t2))
    A(valu('v_lshl_add_u32', t2, C4, 3, t2))
    A(valu('v_lshrrev_b32', vT[3], 1, G))
    A(valu('v_mul_u32_u24', vT[3], PC, vT[3]))
    A(valu('v_add_u32', t2, t2, vT[3]))
    A(valu('v_add_u32', t2, UP, t2))
    A(valu('v_and_b32', t0, OPT['wsw'], t0))
    for nt in range(4):
        A(valu('v_xor_b32', vT[nt], 2 * nt, t0))
        A(valu('v_lshl_add_u32', vT[nt], vT[nt], 4, t2))
    A(valu('v_and_b32', t0, 7, Q))
    A(valu('v_mul_u32_u24', t0, PC, t0))
    A(valu('v_lshrrev_b32', t2, 3, Q))
    A(valu('v_lshl_add_u32', t0, t2, 8, t0))
    A(valu('v_lshl_add_u32', t0, G, 4, t0))
    A(valu('v_add_u32', vK, t0, t1))
    A(valu('v_add_u32', vK2, UP, vK))
    A(valu('v_bfe_u32', t0, L, 2, 3))
    A(valu('v_mul_u32_u24', t0, PC, t0))
    A(valu('v_lshrrev_b32', t2, 1, G))
    A(valu('v_lshl_add_u32', t0, t2, 8, t0))
    A(valu('v_lshl_add_u32', t0, C4, 3, t0))
    A(valu('v_add_u32', t0, t0, t1))
    A(valu('v_lshl_add_u32', vVa, KH, 7, t0))
    A(valu('v_xor_b32', t2, 1, KH))
    A(valu('v_lshl_add_u32', vVb, t2, 7, t0))
    A(valu('v_add_u32', vVa2, UP, vVa))
    A(valu('v_add_u32', vVb2, UP, vVb))
    A(valu('v_lshl_add_u32', t0, KH, 13, vL16))
    A(valu('v_lshl_add_u32', t0, HH, 12, t0))
    for k in range(4):
        A(valu('v_add_u32', vD[k], 96 - 32 * k, t0))
    A(valu('v_lshrrev_b32', t0, 1, G))
    A(valu('v_lshl_add_u32', t0, t0, 4, Q))
    A(valu('v_lshlrev_b32', t0, 4, t0))
    A(valu('v_and_b32', t2, 1, G))
    A(valu('v_lshl_add_u32', t0, t2, 3, t0))
    A(valu('v_sub_u32', t2, vSH, vL16))
    A(valu('v_add_u32', t0, t0, t2))
    A(valu('v_add_u32', t0, 6 * SL, t0))
    A(valu('v_mul_u32_u24', t1, 4224, HH))
    A(valu('v_add_u32', t1, t1, vL16))
    A(valu('v_add_u32', t1, 6 * SL, t1))
    A(valu('v_mul_u32_u24', t2, 8448, KH))
    A(valu('v_sub_u32', t2, vK, t2))
    return ca, c

def kv_mode():
    c = []
    A = c.append
    A(salu('s_mov_b32', SA, sKb)); A(salu('s_mov_b32', off(SA, 1), off(sKb, 1)))
    A(salu('s_mov_b32', SB, sVb)); A(salu('s_mov_b32', off(SB, 1), off(sVb, 1)))
    A(salu('s_mov_b32', sNR, 0 if 'Z' in OPT['xl'] else 524288 + 96))
    A(salu('s_mov_b32', off(SA, 2), sNR)); A(salu('s_mov_b32', off(SB, 2), sNR))
    A(salu('s_mov_b32', sSTEP, 0 if OPT['samekv'] else 16384))
    A(salu('s_mov_b32', sOFF, 3 * 16384))
    A(salu('s_mov_b32', sCNT, 6))
    A(salu('s_mov_b32', sLAST, 0))
    A(salu('s_lshl_b32', sPO, sB, 5)); A(salu('s_add_u32', sPO, sPO, sW)); A(salu('s_lshl_b32', sPO, sPO, 10))
    return c

def w_dma(c):
    q = [setm0(sLDS, UP + (c % 4) * SL)]
    if c: q += [salu('s_add_u32', sWOFF, sWOFF, 262144), salu('s_and_b32', sWOFF, sWOFF, 0x3fffff)]
    else: q += [nop(0)]
    q += [dma(vW[k], SWQ, sWOFF, PC * k, OPT['wpol0'] if c < OPT['wn0'] else OPT['wpol'], tag=f'W{c}' + ('a' if k < 2 else '')) for k in range(4)]
    return q

def x_dma(qtr, pad=True):
    q = []
    for rt in range(5):
        base = (rt * 16384 if rt < 4 else 8 * SL) + qtr * 4096
        q += [setm0(sT3, base)] + ([nop(0)] if pad else []) + [dma(vXdr[rt], SX, sXQ[qtr], 0, OPT['xpol'], tag=f'XD{qtr}')]
    return q

def w_reads(c, tag):
    q = []
    for nt in range(4):
        for rd in range(2):
            x = dsr('ds_read_b64_tr_b16', off(Wf(c % 2, nt), 2 * rd), vT[nt], (c % 4) * SL + rd * 2 * PC, tag=tag)
            x.cost = 6
            q.append(x)
    return q

def x_read(c, rt):
    kp, par = c // 2, c % 2
    if rt < 4: return dsr('ds_read_b128', Xf(c, rt), vXr[par], rt * 16384 + kp * 2048, tag=f'X{c}')
    return dsr('ds_read_b128', Xf(c, rt), vXr4[par], kp * 2048, tag=f'X{c}')

def resolve_partial(prev, body):
    xq = OPT['xq']
    if not xq: return body
    out = []
    for x in body:
        if 'G' in xq and x.kind == 'dma' and x.tag[0] == 'W': x = I(x.text.replace('s[16:19]', 's[56:59]'), 'dma', tag=x.tag) if 'Z' in xq else I('s_nop 0', 'dma', tag=x.tag)
        if 'K' in xq and x.kind == 'dma' and x.tag[0] in 'KV': x = I('s_nop 0', 'dma', tag=x.tag)
        if 'T' in xq and x.kind == 'dsr' and x.tag[0] == 'T': x = I('s_nop 0', 'dsr', tag=x.tag)
        if 'X' in xq and x.kind == 'dsr' and x.tag[0] == 'X': x = I('s_nop 0', 'dsr', tag=x.tag)
        if 'V' in xq and x.kind == 'valu' and ('v_mov_b32' in x.text or ', 0' in x.text): continue
        out.append(x)
    return out

def interleave(dm, fill, n):
    out = []
    fill = list(fill)
    for x in dm:
        out.append(x)
        if x.kind == 'dma':
            k = 0
            while fill and (k < n or fill[0].text.split()[0] in ('s_addc_u32', 's_subb_u32')):
                out.append(fill.pop(0)); k += 1
    return out + fill

KVLATE = []
def qsched2(c, R):
    A = c.append
    w1 = w_dma(1)
    c += w1[:-1]
    s2a, s2b = setup2(R)
    fill = s2a + s2b
    n0 = max(0, len(fill) - 9 * OPT['il'])
    while fill[n0].text.split()[0] in ('s_addc_u32', 's_subb_u32'): n0 += 1
    c += fill[:n0]
    c += stamp('b')
    c += interleave(w1[-1:] + w_dma(2) + w_dma(3), fill[n0:], OPT['il'])
    c += stamp('ab')
    A(need(vm='XD0'))
    c += stamp('b')
    A(bar())
    c += stamp()
    c += w_reads(0, 'T0')
    for rt in range(5): A(x_read(0, rt))
    c += interleave(x_dma(1), [x_read(1, rt) for rt in range(5)], 1)
    mf, memq, valq, pre = [], [], [], {}
    xr = [(cc, rt) for cc in range(2, 16) for rt in range(5)]
    xdone = None
    kvs = [int(v) for v in str(OPT['kvs']).split(',')]
    kvt = [('K', 0), ('V', 0), ('K', 1), ('V', 1), ('K', 2), ('V', 2)]
    xb = OPT['xb']
    for ch in range(16):
        g0 = ch * 20
        pre[g0] = [need(lg=f'T{ch}')] if ch else [need(lg='X0')]
        if ch == 2: pre[g0] = [need(vm='XD1', lg='T2'), bar()]
        if ch == xb: pre[g0] = [need(vm='XD3', lg=f'T{xb}'), bar()]
        if ch == 4: pre[g0] += stamp('b')
        for rt in range(5):
            for dt in range(4):
                mf.append(mfma(Qacc(dt, rt), Wf(ch % 2, dt), Xf(ch, rt), Qacc(dt, rt) if ch else 0))
        D = w_dma(ch + 4) if ch + 4 < 16 else []
        if ch < 2: D += x_dma(ch + 2, False)
        for (wh, tl), k in zip(kvt, kvs):
            if k == ch:
                assert (xdone is not None and ch >= xdone + OPT['xd']) if tl < 2 else ch >= 12 + (wh == 'V')
                D += kv_tile_dma(wh, tl, f'{wh}{tl}')
        nd = sum(x.kind == 'dma' for x in D)
        sp = OPT['sp'] if nd <= 4 else min(OPT['sp'], 2)
        G = [[]]
        for x in D:
            G[-1].append(x)
            if x.kind == 'dma': G.append([])
        G.pop()
        T = w_reads(ch + 1, f'T{ch+1}') if ch + 1 < 16 else []
        Ta = [need(vm=f'W{ch+1}a')] + T[0::2] if T else []
        Tb = [need(vm=f'W{ch+1}')] + T[1::2] if T else []
        ta, tb = (OPT['ta'], OPT['tb']) if ch >= 2 else (0, 0)
        X = []
        lim = 4 if ch < 2 else 8 if ch < xb else 16
        room = min(10, 20 - nd - 6)
        while xr and len(X) < room:
            cc, rt = xr[0]
            if cc >= lim: break
            if cc * 5 + rt >= 64 and (cc * 5 + rt - 64) // 5 >= ch: break
            xr.pop(0); X.append(x_read(cc, rt))
            if not xr: xdone = ch
        q = []
        for k in range(len(G) + 1):
            free = sp - 1
            if k == min(ta, len(G)): q += [(g0, x) for x in Ta]; free -= 2
            if k == min(tb, len(G)): q += [(g0, x) for x in Tb]; free -= 2
            if k:
                while X and (free > 0 or k == len(G)): q.append((g0, X.pop(0))); free -= 1
            if k < len(G): q += [(g0 + max(0, k * sp - 1) if x.kind != 'dma' else g0 + k * sp, x) for x in G[k]]
        q += [(g0, x) for x in X]
        memq += q
        if xdone is not None and ch == xdone + OPT['xd']:
            pre[g0] = [wait(lg=0), bar()] if OPT['xd'] == 1 else pre[g0] + [bar()]
        if ch in (0, 1, 2, 3, 4, 6, 9, 12): pre[g0] += stamp('c')
        if ch in (0, 2, 4, 8, 12): pre[g0] += stamp('d')
    for (wh, tl), k in zip(kvt, kvs):
        if k >= 16: KVLATE.append((k, kv_tile_dma(wh, tl, f'{wh}{tl}')))
    return mf, memq, valq, pre, xdone, []

def qsched1(c, R):
    A = c.append
    w1 = w_dma(1)
    c += w1[:-1]
    s2a, s2b = setup2(R)
    c += s2a + s2b
    c += stamp('b')
    c += w1[-1:] + x_dma(1)
    c += stamp('ab')
    if OPT['diag']:
        A(raw('s_load_dwordx16 s[52:67], s[76:77], 128', wr=regs('s52', 16))); A(wait(lg=0))
        A(salu('s_cmp_lg_u32', 's60', 0)); A(br('s_cbranch_scc1', 'L_diag'))
    A(need(vm='XD0'))
    c += stamp('b')
    A(bar())
    c += stamp()
    c += w_reads(0, 'T0')
    for rt in range(5): A(x_read(0, rt))
    for rt in range(5): A(x_read(1, rt))
    mf, memq, valq, pre = [], [], [], {}
    xr = [(cc, rt) for cc in range(2, 16) for rt in range(5)]
    xdone = None
    kvq = [('K', 0), ('V', 0), ('K', 1), ('V', 1)]
    early = {0: w_dma(2) + w_dma(3), 1: x_dma(2, False) + w_dma(4), 2: x_dma(3, False) + w_dma(5), 3: w_dma(6) + w_dma(7)}
    xper = {0: 5, 1: 5, 2: 5, 3: 5, 4: 10, 5: 10, 6: 10, 7: 10, 8: 10}
    xlim = {0: 4, 1: 4, 2: 8, 3: 8}
    for ch in range(16):
        g0 = ch * 20
        pre[g0] = [need(lg=f'T{ch}')] if ch else [need(lg='X0')]
        if ch == 2: pre[g0] = [need(vm='XD1', lg='T2'), bar()]
        if ch == 4: pre[g0] = [need(vm='XD3', lg='T4'), bar()] + stamp('b')
        for rt in range(5):
            for dt in range(4):
                mf.append(mfma(Qacc(dt, rt), Wf(ch % 2, dt), Xf(ch, rt), Qacc(dt, rt) if ch else 0))
        if ch + 1 < 16:
            memq.append((g0, need(vm=f'W{ch+1}')))
            memq += [(g0, x) for x in w_reads(ch + 1, f'T{ch+1}')]
        if ch in early: memq += [(g0, x) for x in early[ch]]
        elif ch + 4 < 16: memq += [(g0, x) for x in w_dma(ch + 4)]
        elif ch == 12 + OPT['kvlate']: memq += [(g0, x) for x in kv_tile_dma('K', 2, 'K2')]
        elif ch == 13 + OPT['kvlate']: memq += [(g0, x) for x in kv_tile_dma('V', 2, 'V2')]
        n = 0
        while xr and n < xper.get(ch, 11):
            cc, rt = xr[0]
            if cc >= xlim.get(ch, 16): break
            if cc * 5 + rt >= 64 and (cc * 5 + rt - 64) // 5 >= ch: break
            xr.pop(0); memq.append((g0, x_read(cc, rt))); n += 1
            if not xr: xdone = ch
        if xdone is not None and ch == xdone + 1:
            pre[g0] = [wait(lg=0), bar()]
        if ch in (0, 1, 2, 3, 4, 6, 9, 12): pre[g0] += stamp('c')
        if ch in (0, 2, 4, 8, 12): pre[g0] += stamp('d')
        if xdone is not None and ch > xdone and kvq and ch >= OPT['kv0']:
            wh, tl = kvq.pop(0)
            memq += [(g0, x) for x in kv_tile_dma(wh, tl, f'{wh}{tl}')]
    return mf, memq, valq, pre, xdone, kvq

def qphase(R):
    c = []
    A = c.append
    mf, memq, valq, pre, xdone, kvq = (qsched2 if OPT['qs'] else qsched1)(c, R)
    print('xdone', xdone)
    assert not kvq
    for i in range(80): valq.append((0, valu('v_mov_b32', vr(24 + i), 0)))
    for s in vSUM.values(): valq.append((0, valu('v_mov_b32', s, 0)))
    for i in range(80): valq.append((8 * 20 + 4, valu('v_accvgpr_write_b32', ar(i), 0)))
    for i in range(8): valq.append((13 * 20 + 4, valu('v_accvgpr_write_b32', ar(224 + i), 0)))
    valq.append((13 * 20 + 4, valu('v_mov_b32', vPF, 0x3f803f80)))
    for i in range(4): valq.append((13 * 20 + 4, valu('v_accvgpr_write_b32', off(ONES, i), vPF)))
    for k in range(4):
        valq.append((13 * 20 + 4, valu('v_accvgpr_write_b32', ar(aDwo + k), vDwo[k])))
        valq.append((13 * 20 + 4, valu('v_accvgpr_write_b32', ar(aDkv + k), vD[k])))
    for x in [salu('s_mul_i32', sGRP, sGRP, OPT['cstr']), salu('s_add_u32', sGRP, sGRP, OPT['cbase']),
              salu('s_mov_b32', SD, 's76'), salu('s_and_b32', off(SD, 1), 's77', 0xffff),
              salu('s_add_u32', off(SD, 2), sGRP, 4), salu('s_mov_b32', sTODO, 0),
              salu('s_mul_i32', sFL, sW, 4 * OPT['MB']), salu('s_lshl_b32', sT1, sPART, 2), salu('s_add_u32', sFL, sFL, sT1),
              salu('s_add_u32', sFL, sFL, 16 * 81920)]:
        valq.append((13 * 20 + 4, x))
    body = resolve_partial(c, weave(mf, memq, valq, pre, period=20))
    c += body
    c += stamp('acdef')
    A(salu('s_mov_b32', sT1, f32(math.log2(math.e) / math.sqrt(128.0))))
    A(salu('s_mov_b32', sT0, sT1))
    A(nop(5))
    for rt in range(5):
        for dt in range(4):
            a = Qacc(dt, rt)
            for h in range(2):
                A(valu('v_pk_mul_f32', off(a, 2 * h), off(a, 2 * h), ('s[44:45]', ['s44', 's45']), w=2))
        for dt in range(4):
            a = Qacc(dt, rt); d = STG + (rt * 4 + dt) * 2
            for h in range(2):
                A(valu('v_cvt_pk_bf16_f32', vr(d + h), off(a, 2 * h), off(a, 2 * h + 1)))
        for dt in range(4):
            j = rt * 2 + dt // 2
            A(dsw('ds_write_b64', t0, vr(STG + (rt * 4 + dt) * 2), (j // 4) * SL + (j % 4) * 1024 + (dt % 2) * 512, tag='Qw'))
        for k, q in KVLATE:
            if k == 16 + rt: c += q
    for nt in range(4): A(valu('v_subrev_u32', vT[nt], UP, vT[nt]))
    A(need(vm='V0', lg='Qw')); A(bar())
    for k, q in KVLATE:
        if k == 21: c += q
    return c

def kv_frag_reads(i, which):
    j = i % 4; b = i % 2
    q = []
    if which == 'K':
        a = vK if j < 2 else vK2
        for t in range(2):
            for cc in range(4):
                q.append(dsr('ds_read_b128', Kf(b, t, cc), a, (2 * (j % 2)) * SL + t * 512 + cc * 64, tag='Kr'))
    else:
        for ld in range(8):
            a = (vVa if j < 2 else vVa2) if ld < 4 else (vVb if j < 2 else vVb2)
            for rd in range(2):
                q.append(dsr('ds_read_b64_tr_b16', off(Vf(b, ld), 2 * rd), a, (2 * (j % 2) + 1) * SL + rd * 512 + (ld % 4) * 32, tag='Vr'))
    return q

def state_init():
    c = []
    for i in range(32): c.append(valu('v_mov_b32', off(Vf(1, 0), i), 0))
    for i in range(8): c.append(valu('v_mov_b32', off(Sb(-1, 0), i), f32(-1e30)))
    for i in range(4): c.append(valu('v_mov_b32', off(Pb(-2), i), 0))
    c.append(valu('v_mov_b32', 'v231', 1))
    return c

def atom(op, d, voff, srd, soff):
    return I(f'{op} {d}, {voff}, {rng(srd,4)}, {soff} offen sc0 sc1', 'vld', rd=[d, voff] + regs(srd, 4) + ([soff] if isreg(soff) else []), wr=[d])

def flag_addr(d, tmp):
    return [valu('v_lshrrev_b32', tmp, 6, vL16), valu('v_mul_u32_u24', d, OPT['MB'] // 16, vL16), valu('v_lshl_add_u32', d, tmp, 24, d)]

def max_finish():
    c = []
    A = c.append
    for op in ('v_permlane16_swap_b32', 'v_permlane32_swap_b32'):
        for rt in range(5): A(valu('v_mov_b32', off(Mn(rt), 1), Mn(rt)))
        for rt in range(5): A(perm(op, Mn(rt), off(Mn(rt), 1)))
        for rt in range(5): A(valu('v_max_f32', Mn(rt), Mn(rt), off(Mn(rt), 1)))
    for rt in range(5):
        for i in (3, 2, 1, 0): A(valu('v_mul_f32', off(Mn(rt), i), -1.0, Mn(rt)))
    return c

def prologue():
    c = []
    A = c.append
    for cc in range(4): A(dsr('ds_read_b128', Kf(1, 0, cc), t2, cc * 64, tag='Km'))
    for rt in range(5):
        for cc in range(4):
            j = rt * 2 + cc % 2
            A(dsr('ds_read_b128', Qf(rt, cc), t1, (cc // 2) * 8448 + (j // 4) * SL + (j % 4) * 1024, tag=f'Qr{rt}'))
    memq = [(0, x) for x in kv_frag_reads(0, 'K') + kv_frag_reads(0, 'V')]
    for x in memq: x[1].cost = 6
    mf, pre = [], {}
    for rt in range(5):
        pre[rt * 4] = [need(lg=f'Qr{rt}')]
        for cc in range(4): mf.append(mfma(Mn(rt), Kf(1, 0, cc), Qf(rt, cc), Mn(rt) if cc else 0))
    c += weave(mf, memq, [(0, x) for x in state_init() + flag_addr('v230', 'v229') + [valu('v_mov_b32', 'v229', 0)]], pre)
    A(need(vm='V1', lg='Vr')); A(bar())
    c += kv_tile_dma('K', 3, 'K3') + kv_tile_dma('V', 3, 'V3')
    A(atom('buffer_atomic_swap', 'v229', 'v230', SWS, sFL))
    for rt in range(5): A(valu('v_max3_f32', Mn(rt), Mn(rt), off(Mn(rt), 1), off(Mn(rt), 2)))
    for rt in range(5): A(valu('v_max_f32', Mn(rt), Mn(rt), off(Mn(rt), 3)))
    c += max_finish()
    c += stamp('adef')
    if OPT['bst']: A(raw('s_mov_b64 s[98:99], 1'))
    A(br('s_branch', 'L_loop_in'))
    return c

GX = [2, 7, 12, 18, 23, 29, 35, 40]
RX = [0, 1, 3, 4, 5, 6, 9, 10]
TX = [13, 14, 15, 16, 17, 19, 21, 22, 24, 26, 27, 28, 30, 32, 33, 36]

def softmax_items(k):
    rt = k % 5
    E = [valu('v_exp_f32', off(Sb(k, 0), n), off(Sb(k, 0), n)) for n in range(8)]
    C = [valu('v_cvt_pk_bf16_f32', off(Pb(k), n), off(Sb(k, 0), 2 * n), off(Sb(k, 0), 2 * n + 1)) for n in range(4)]
    Ad = [valu('v_add_f32', vSUM[rt], vSUM[rt], off(Sb(k, 0), n)) for n in range(8)] if rt in vSUM else []
    return E, C, Ad

def pv(k, vb, order=range(8)):
    rt = k % 5
    m = [mfma(Oacc(rt, ld), Vf(vb, ld), Pb(k), Oacc(rt, ld)) for ld in order]
    if rt in RS: m.append(mfma(RS[rt], ONES, Pb(k), RS[rt]))
    return m

def block(j):
    out = [cmt(f'block {j}')]
    mem = {}
    for x, i in zip(RX, kv_frag_reads(j + 1, 'K')): mem[x] = i
    for x, i in zip(TX, kv_frag_reads(j + 1, 'V')): mem[x] = i
    for n, x in enumerate(GX):
        mem[x] = dma(vD[n % 4], SA if n < 4 else SB, sOFF, PC * (n % 4), OPT['kvpol'])
    assert len(mem) == 32
    if j == 1 and OPT['lpf']: mem[38] = vld('v228', 1, vL16, SWO, sPO, 0, OPT['opol'])
    sc = {1: [salu('s_add_u32', sOFF, sOFF, sSTEP)], 2: [setm0(sLDS, 2 * j * SL)], 20: [setm0(sLDS, (2 * j + 1) * SL)],
          24: [wait(lg=8)]}
    if j == 2: sc[0] = []
    if j == 1:
        sc[38] = [salu('s_mov_b32', off(SA, 2), sNR)]
    if j == 2:
        sc[10] = [salu('s_mov_b32', off(SB, 2), sNR)]
        if OPT['lpf']: sc[12] = [salu('s_add_u32', sPO, sPO, 4096)]
    if j == 3: sc[39] = [salu('s_sub_u32', sCNT, sCNT, 1)]
    cq, aq = [], []
    xi = ei = 0
    for s in range(5):
        kq, ke, kp = 5 * j + s, 5 * j + s - 1, 5 * j + s - 2
        if OPT['qkord']: mf = [mfma(Sb(kq, t), Kf(j % 2, t, cc), Qf(s, cc), Sb(kq, t) if cc else Mn(s)) for cc in range(4) for t in range(2)]
        else: mf = [mfma(Sb(kq, t), Kf(j % 2, t, cc), Qf(s, cc), Sb(kq, t) if cc else Mn(s)) for t in range(2) for cc in range(4)]
        mf += pv(kp, (j - 1) % 2 if s < 2 else j % 2)
        E, C, Ad = softmax_items(ke)
        for g, m in enumerate(mf):
            if s == 0 and g == 0 and j == 0:
                pass
            out.append(m)
            if g % 2 == 0 and g < 16:
                n = g // 2
                if s == 0 and g == 0:
                    out += [wait(vm=16, lg=0), bar()]
                    if j == 0: out.append(label('L_loop_mid'))
                    if OPT['bst']:
                        out += [raw('v_mov_b32 v242, s100\n    v_cndmask_b32 v243, v243, v242, s[98:99]', 'valu', rd=['s100'], wr=['v243']),
                                raw('s_memtime s[100:101]' if OPT['bst'] == 1 else 's_memrealtime s[100:101]'), raw('s_lshl_b64 s[98:99], s[98:99], 1')]
                out += sc.get(ei, [])
                out.append(E[n]); ei += 1
                if Ad: aq.append(Ad[n])
                if n % 2 == 1: cq.append(C[n // 2])
            else:
                nv = 2
                if xi in mem: out.append(mem[xi]); nv = 1
                xi += 1
                for _ in range(nv):
                    if cq: out.append(cq.pop(0))
                    elif aq: out.append(aq.pop(0))
    assert xi == 42 and ei == 40 and not cq and not aq, (xi, ei, len(cq), len(aq))
    xl = OPT['xl']
    if 'G' in xl: out = [x for x in out if x.kind != 'dma']
    if 'B' in xl: out = [x for x in out if x.kind != 'bar']
    if 'R' in xl: out = [x for x in out if x.kind != 'dsr']
    if 'E' in xl: out = [x for x in out if x.kind != 'trans']
    if 'V' in xl: out = [x for x in out if x.kind != 'valu']
    if 'W' in xl: out = [x for x in out if x.kind != 'wait']
    if 'w' in xl: out = [wait(lg=0) if (x.kind == 'wait' and x.arg[0] == 16) else x for x in out]
    if 'H' in xl:
        n = 0; o2 = []
        for x in out:
            if x.kind == 'dma':
                n += 1
                if n % 2 == 0: continue
            o2.append(x)
        out = [wait(vm=8, lg=0) if (x.kind == 'wait' and x.arg[0] == 16) else x for x in o2]
    return out

def switch_wo():
    c = []
    A = c.append
    A(salu('s_cmp_lg_u32', sLAST, 0)); A(br('s_cbranch_scc1', 'L_epi'))
    A(salu('s_mov_b32', sLAST, 1))
    A(salu('s_mov_b32', sCNT, 0))
    A(salu('s_mov_b32', SA, SWO)); A(salu('s_mov_b32', off(SA, 1), off(SWO, 1))); A(salu('s_mov_b32', off(SA, 2), 262144))
    A(salu('s_add_u32', SB, SWO, 32768)); A(salu('s_addc_u32', off(SB, 1), off(SWO, 1), 0)); A(salu('s_mov_b32', off(SB, 2), 262144 - 32768))
    A(salu('s_mov_b32', sSTEP, 65536))
    A(salu('s_mov_b32', sOFF, -65536 & 0xffffffff))
    A(salu('s_mov_b32', sNR, 0))
    for k in range(4): A(valu('v_accvgpr_read_b32', vD[k], ar(aDwo + k)))
    A(salu('s_or_b32', sT1, sW, sPASS))
    A(br('s_cbranch_scc1', 'L_loop'))
    A(atom('buffer_atomic_add', 'v231', vL16, SD, sGRP))
    if OPT['pf']:
        A(salu('s_lshl_b32', sT1, sB, 15))
        A(salu('s_lshl_b32', sT2, sW, 13))
        A(salu('s_add_u32', sT1, sT1, sT2))
        A(valu('v_lshlrev_b32', t0, 3, vL16))
        for i in range(OPT['pf']): A(vld(off(t1, i), 1, t0, SWO, sT1, 64 * i, OPT['opol']))
    A(br('s_branch', 'L_loop'))
    return c

def epilogue():
    c = [label('L_epi')]
    A = c.append
    if OPT['bst']:
        A(wait(lg=0)); A(raw('v_mov_b32 v242, s100\n    v_cndmask_b32 v243, v243, v242, s[98:99]', 'valu', rd=['s100'], wr=['v243']))
        A(raw('s_memtime s[100:101]' if OPT['bst'] == 1 else 's_memrealtime s[100:101]')); A(raw('s_lshl_b64 s[98:99], s[98:99], 1')); A(wait(lg=0)); A(nop(3))
        A(raw('v_mov_b32 v242, s100\n    v_cndmask_b32 v243, v243, v242, s[98:99]', 'valu', rd=['s100'], wr=['v243'])); A(nop(1))
        A(valu('v_accvgpr_write_b32', 'a248', 'v243'))
    c += stamp('aef')
    A(wait(vm=0))
    A(valu('v_add_u32', t0, UP, vSH))
    A(valu('v_add_u32', t2, 8 * SL, vSH))
    def xw(rt, jd):
        if rt < 4: return dsw('ds_write_b128', t0, Oacc(rt, 4 + jd), rt * SL + jd * 1024, tag='Ow')
        return dsw('ds_write_b128', t2, Oacc(rt, 4 + jd), jd * 1024, tag='Ow')
    E, C, Ad = softmax_items(19)
    order = [4, 5, 6, 7, 0, 1, 2, 3]
    mf = pv(18, 1, order)
    duty = [rfl(sT1, 'v231'), nop(0), salu('s_and_b32', sT2, sT1, 15), salu('s_cmp_eq_u32', sT2, 15), salu('s_cselect_b32', sT1, sT1, 0),
            salu('s_lshr_b32', sT1, sT1, 16), salu('s_or_b32', sTODO, sTODO, sT1)]
    for g, m in enumerate(mf):
        A(m)
        if duty: A(duty.pop(0))
        if g < 8: A(E[g])
        if g >= 2 and g % 2 == 0: A(C[g // 2 - 1])
    ws = [xw(rt, jd) for rt in range(4) for jd in range(4)]
    A(ws.pop(0)); A(ws.pop(0))
    for g, m in enumerate(pv(19, 1, order)):
        A(m); A(ws.pop(0)); A(Ad[g])
    for x in ws: A(x)
    LS = 184
    for rt in RS: A(valu('v_accvgpr_read_b32', vr(LS + rt), RS[rt]))
    for jd in range(4): A(xw(4, jd))
    for op in ('v_permlane16_swap_b32', 'v_permlane32_swap_b32'):
        for rt, s in vSUM.items(): A(valu('v_mov_b32', vr(LS + rt), s))
        A(nop(0))
        for rt, s in vSUM.items(): A(perm(op, s, vr(LS + rt)))
        for rt, s in vSUM.items(): A(valu('v_add_f32', s if op.startswith('v_permlane16') else vr(LS + rt), s, vr(LS + rt)))
    A(salu('s_lshl_b32', sT1, sW, 11))
    A(salu('s_add_u32', sT1, sT1, LX))
    A(salu('s_xor_b32', sT2, sT1, 2048))
    A(valu('v_add_u32', t0, sT1, vL16))
    A(valu('v_add_u32', t2, sT2, vL16))
    A(dsw('ds_write_b128', t0, vr(LS), 0)); A(dsw('ds_write_b32', t0, vr(LS + 4), 1024))
    A(valu('v_add_u32', t0, UP, vSHP))
    A(valu('v_add_u32', t1, 8 * SL, vSHP))
    A(wait(lg=0)); A(bar())
    c += stamp()
    LP = 192
    A(dsr('ds_read_b128', vr(LP), t2, 0, tag='l')); A(dsr('ds_read_b32', vr(LP + 4), t2, 1024, tag='l'))
    def TH(rt, jd): return vr(104 + (rt * 4 + jd) * 4)
    for rt in range(5):
        for jd in range(4):
            if rt < 4: A(dsr('ds_read_b128', TH(rt, jd), t0, rt * SL + jd * 1024, tag=f'Or{rt}'))
            else: A(dsr('ds_read_b128', TH(rt, jd), t1, jd * 1024, tag=f'Or{rt}'))
        if rt == 2:
            A(need(lg='l'))
            for r in range(5): A(valu('v_add_f32', vr(LS + r), vr(LS + r), vr(LP + r)))
            for r in range(5): A(valu('v_rcp_f32', vr(200 + 2 * r), vr(LS + r)))
            A(salu('s_mov_b32', sT1, f32(2.0 ** 24)))
            A(raw('s_mov_b64 s[46:47], 0', wr=['s46', 's47']))
            for r in range(5):
                A(vcmp('v_cmp_nge_f32', 'vcc', sT1, vr(LS + r)))
                A(nop(0))
                A(raw('s_or_b64 s[46:47], s[46:47], vcc', rd=['vcc', 's46', 's47'], wr=['s46', 's47']))
            A(salu('s_or_b32', sT2, sT2, sT3))
            A(salu('s_lshl_b32', sT1, sW, 2))
            A(salu('s_add_u32', sT1, sT1, LX + 8192))
            A(valu('v_mov_b32', vr(LP), sT1))
            A(valu('v_mov_b32', vr(LP + 1), sT2))
            A(dsw('ds_write_b32', vr(LP), vr(LP + 1), 0))
    for rt in range(5):
        A(need(lg=f'Or{rt}'))
        for jd in range(4):
            for h in range(2):
                A(valu('v_pk_add_f32', off(Oacc(rt, jd), 2 * h), off(Oacc(rt, jd), 2 * h), off(TH(rt, jd), 2 * h), w=2))
        for jd in range(4):
            for h in range(2):
                A(valu('v_pk_mul_f32', off(Oacc(rt, jd), 2 * h), off(Oacc(rt, jd), 2 * h), vr(200 + 2 * rt), w=2, mods='op_sel_hi:[1,0]'))
        for jd in range(4):
            for h in range(2):
                A(valu('v_cvt_pk_bf16_f32', vr(STG + rt * 8 + jd * 2 + h), off(Oacc(rt, jd), 2 * h), off(Oacc(rt, jd), 2 * h + 1)))
        for u in range(2):
            j = rt * 2 + u
            A(dsw('ds_write_b128', t0, vr(STG + j * 4), (j // 4) * SL + (j % 4) * 1024))
    A(valu('v_add_u32', t0, UP, vL16))
    A(valu('v_mov_b32', t1, LX + 8192))
    A(wait(lg=0)); A(bar())
    c += stamp('ae')
    return c

def Of(u, rt):
    f = u * 5 + rt
    return ar(4 * f) if f < 20 else ar(160 + 4 * (f - 20))

def ophase():
    c = []
    A = c.append
    def o_read(u, rt):
        wp, ul = u // 2, u % 2
        j = rt * 2 + ul
        return dsr('ds_read_b128', Of(u, rt), t0, (1 - wp % 2) * 8448 + (wp // 2) * 4224 + (j // 4) * SL + (j % 4) * 1024, tag=f'G{u}')
    def wo_dma(ch):
        q = [setm0(sLDS, (ch % 4) * SL), salu('s_mov_b32', sSO, (ch % 8) * 32768 + (ch // 8) * 128)]
        q += [dma(vD[k], SWO, sSO, PC * k, OPT['opol'], tag=f'W{ch}') for k in range(4)]
        return q
    def acc(half, nt, rt): return vr((24 if half == 0 else 104) + (rt * 4 + nt) * 4)
    A(dsr('ds_read_b128', vr(252), t1, 0, tag='vote'))
    c += w_reads(0, 'T0')
    for rt in range(5): A(o_read(0, rt))
    A(need(lg='vote'))
    A(valu('v_or3_b32', vr(252), vr(252), vr(253), vr(254)))
    A(valu('v_or_b32', vr(252), vr(252), vr(255)))
    A(salu('s_lshl_b32', sT2, sPART, 2))
    A(salu('s_add_u32', sT2, sT2, sW))
    A(salu('s_mul_i32', sT2, sT2, 20480))
    A(rfl(sT1, vr(252)))
    A(valu('v_add_u32', t1, sT2, vL16))
    A(salu('s_andn2_b32', sT1, sT1, sPASS))
    if OPT['xl'] or OPT['xq']: A(salu('s_cmp_eq_u32', 0, 1))
    A(br('s_cbranch_scc1', 'L_fallback'))
    for rt in range(5): A(o_read(1, rt))
    sBLK = [0, 's48', 's49', 's50', 's51']
    for i in range(1, 5): A(salu('s_mov_b32', sBLK[i], i * 4096))
    mf, memq, valq, pre = [], [], [], {}
    orr = [(u, rt) for u in range(2, 8) for rt in range(5)]
    def fin(half, rt, ntp, g):
        d = STG + (rt * 2 + ntp) * 4
        v = []
        for q in range(2):
            a = acc(half, 2 * ntp + q, rt)
            for h in range(2): v.append(valu('v_cvt_pk_bf16_f32', vr(d + 2 * q + h), off(a, 2 * h), off(a, 2 * h + 1)))
        blk = half * 10 + rt * 2 + ntp
        st = [vst(vr(d), 4, t1, SWS, sBLK[blk // 4], (blk % 4) * 1024, OPT['stpol'], tag='st')]
        return v, st
    f0 = [fin(0, rt, ntp, 0) for rt in range(5) for ntp in range(2)]
    for ch in range(16):
        g0 = ch * 20; half, u = ch // 8, ch % 8
        pre[g0] = [need(lg=f'T{ch}')] if ch else [need(lg='G0')]
        if ch in (0, 4, 8, 11, 13, 15): pre[g0] += stamp('g')
        if ch == 15: pre[g0 + 10] = stamp('g')
        for rt in range(5):
            for nt in range(4):
                mf.append(mfma(acc(half, nt, rt), Wf(ch % 2, nt), Of(u, rt), acc(half, nt, rt) if u else 0))
        if ch + 1 < 16:
            if ch + 1 >= 4: memq.append((g0, need(vm=f'W{ch+1}')))
            memq += [(g0, x) for x in w_reads(ch + 1, f'T{ch+1}')]
        if ch + 4 < 16: memq += [(g0, x) for x in wo_dma(ch + 4)]
        for _ in range(10):
            if orr: memq.append((g0, o_read(*orr.pop(0))))
        if ch - OPT['f0ch'] in (0, 1):
            for v, st in f0[(ch - OPT['f0ch']) * 5:(ch - OPT['f0ch'] + 1) * 5]: memq += [(g0, x) for x in st]
        if ch == 12: memq.append((g0, vld(t2, 1, vL16, SD, sGRP, 0, 'sc1', tag='cnt')))
    for v, st in f0: valq += [(8 * 20 + 4, x) for x in v]
    valq += [(12 * 20, x) for x in reduce_setup()]
    valq += [(15 * 20 + OPT['fl0'], x) for x in [wait(vm=0), vst(vF1, 1, vFL, SWS, sFL, 0, 'sc1'), rfl(sCNT, t2)]]
    f1 = [fin(1, rt, ntp, 0) for rt in range(5) for ntp in range(2)]
    for n, (v, st) in enumerate(f1[:6]):
        valq += [(15 * 20 + 4 * (n // 2) + 8, x) for x in v + st]
    body, mleft, vleft = weave(mf, memq, valq, pre, flush=False, period=20)
    assert not mleft
    pos = {id(x): i for i, x in enumerate(body)}
    for v, st in f0: assert pos[id(st[-1])] > max(pos[id(x)] for x in v)
    c += body + [x for _, x in vleft]
    for v, st in f1[6:]: c += v + st
    c += stamp('aefg')
    c += reduce_tail()
    return c

SO = SB
A1, A2 = 'v24', 'v28'
vLD, vLD2, vST, vST2, vFL, vPL, vF1, vF2, vP = ['v%d' % i for i in range(32, 41)]
soA, soS = ['s52', 's53', 's54', 's55'], ['s56', 's57', 's58', 's59']
sMB, sOA, sOS, sRL = 's60', 's61', 's62', 's63'
def job_setup(sl, rl):
    c = []
    A = c.append
    A(salu('s_lshr_b32', sT1, sl, 2)); A(salu('s_and_b32', sT2, sl, 3))
    A(salu('s_mul_i32', sMB, sl, OPT['MB'])); A(salu('s_add_u32', sMB, sMB, 16 * 81920))
    A(salu('s_mul_i32', sT3, sT1, 20480)); A(salu('s_lshl_b32', sT0, sT2, 8)); A(salu('s_add_u32', sT3, sT3, sT0))
    A(salu('s_lshl_b32', sT1, sT1, 8)); A(salu('s_lshl_b32', sT2, sT2, 3)); A(salu('s_add_u32', sT1, sT1, sT2))
    A(salu('s_lshl_b32', sT2, rl, 15)); A(salu('s_add_u32', sOA, sT1, sT2))
    A(salu('s_lshl_b32', sT2, rl, 6)); A(salu('s_add_u32', sOS, sT1, sT2)); A(salu('s_add_u32', sOS, sOS, 131072))
    A(salu('s_lshl_b32', sT2, rl, 11)); A(salu('s_add_u32', soA[0], sT3, sT2))
    A(salu('s_lshr_b32', sT2, rl, 1)); A(salu('s_lshl_b32', sT2, sT2, 13)); A(salu('s_lshl_b32', sT0, rl, 10))
    A(salu('s_add_u32', sT2, sT2, sT0)); A(salu('s_add_u32', sT2, sT2, 8192)); A(salu('s_add_u32', soS[0], sT3, sT2))
    for i in range(1, 4):
        A(salu('s_add_u32', soA[i], soA[0], i * 4 * 81920)); A(salu('s_add_u32', soS[i], soS[0], i * 4 * 81920))
    return c

def reduce_setup():
    c = []
    A = c.append
    N, G = 'v41', 'v42'
    A(valu('v_bfe_u32', N, vL16, 4, 4))
    A(valu('v_lshrrev_b32', G, 8, vL16))
    A(salu('s_mul_i32', sT1, sB, 163840)); A(salu('s_lshl_b32', sT2, sBR, 10)); A(salu('s_add_u32', sT1, sT1, sT2))
    if OPT['sout']:
        A(salu('s_add_u32', SO, sT1, 70 << 20)); A(salu('s_add_u32', SO, 's78', SO)); A(salu('s_addc_u32', off(SO, 1), 's79', 0)); A(salu('s_and_b32', off(SO, 1), off(SO, 1), 0xffff))
    else:
        A(salu('s_add_u32', SO, 's68', sT1)); A(salu('s_addc_u32', off(SO, 1), 's69', 0)); A(salu('s_and_b32', off(SO, 1), off(SO, 1), 0xffff))
    A(salu('s_sub_u32', off(SO, 2), 8 * 163840, sT1))
    c += flag_addr(vFL, vPL)
    A(valu('v_lshlrev_b32', vPL, 2, N))
    A(valu('v_mov_b32', vF1, 1)); A(valu('v_mov_b32', vF2, 2))
    A(valu('v_mul_u32_u24', vLD, 81920, G))
    A(valu('v_lshl_add_u32', vLD, N, 4, vLD))
    A(valu('v_add_u32', vLD2, 10240, vLD))
    A(valu('v_lshlrev_b32', vST, 5, G))
    A(valu('v_lshl_add_u32', vST, N, 11, vST))
    A(valu('v_lshrrev_b32', G, 1, G))
    A(valu('v_lshl_add_u32', vST2, G, 28, vST))
    A(valu('v_and_b32', G, 1, N))
    A(valu('v_lshlrev_b32', G, 4, G))
    A(valu('v_mov_b32', 'v43', 0x3f80))
    A(valu('v_lshlrev_b32', G, G, 'v43'))
    A(valu('v_lshrrev_b32', N, 1, N))
    for d in range(8): A(vcmp('v_cmp_eq_u32', f's{52+2*d}', d, N))
    for d in range(8): A(valu('v_cndmask_b32', off(A1, d), 0, G, (f's[{52+2*d}:{53+2*d}]', [f's{52+2*d}', f's{53+2*d}'])))
    c += job_setup(sPART, sW)
    A(salu('s_mov_b32', sRL, 0))
    A(salu('s_mov_b32', sSTEP, 0))
    return c

def reduce_tail():
    c = []
    A = c.append
    poll = lambda: vld(vP, 1, vPL, SWS, sMB, 0, 'sc1')
    def allge(n):
        A(vcmp('v_cmp_le_u32', 'vcc', n, vP)); A(salu('s_add_u32', sSTEP, sSTEP, 4096))
        A(raw('s_cselect_b64 s[44:45], -1, vcc', rd=['vcc'], wr=['s44', 's45']))
        A(raw('s_cmp_eq_u64 s[44:45], -1', rd=['s44', 's45'], wr=['scc']))
    A(poll())
    A(salu('s_and_b32', sT1, sCNT, 15))
    A(wait(vm=0))
    A(vst(vF2, 1, vFL, SWS, sFL, 0, 'sc1'))
    c += stamp('ef')
    if OPT['stamps']: A(salu('s_and_b32', sT1, sCNT, 15))
    A(br('s_cbranch_scc1', 'L_late'))
    A(br('s_branch', 'L_pa1'))
    A(label('L_pa'))
    if OPT['slp']: A(raw(f"s_sleep {OPT['slp']}"))
    A(poll()); A(wait(vm=0))
    A(label('L_pa1'))
    allge(1)
    A(br('s_cbranch_scc0', 'L_pa'))
    def DA(x, i): return vr(60 + (x * 4 + i) * 4)
    def DB(x, i): return vr(104 + (x * 4 + i) * 4)
    def acc(p): return vr(44 + 4 * p)
    for x in range(2):
        for i in range(4): A(vld(DA(x, i), 4, vLD, SWS, soA[i], x * 1024, OPT['ldpol']))
    A(label('L_pb'))
    if OPT['slp']: A(raw(f"s_sleep {OPT['slp']}"))
    A(poll()); A(wait(vm=0))
    allge(2)
    A(br('s_cbranch_scc0', 'L_pb'))
    c += stamp('ef')
    body = []
    for x in range(2):
        for i in range(4): body.append(vld(DB(x, i), 4, vLD2, SWS, soA[i], x * 1024, OPT['ldpol'], tag=f'r{x}{i}'))
    for i in range(4): body.append(vld(DB(2, i), 4, vLD, SWS, soS[i], 0, OPT['ldpol'], tag=f'r2{i}'))
    def fin(p):
        return [valu('v_cvt_pk_bf16_f32', vr(92 + 2 * p + h), off(acc(p), 2 * h), off(acc(p), 2 * h + 1)) for h in range(2)]
    for x in range(2):
        for i in range(4): body.append(mfma(acc(0), A2 if x else A1, DA(x, i), acc(0) if (x or i) else 0))
    body += [nop(7)] + fin(0) + [vst(vr(92), 2, vST, SO, sOA, 0)]
    for x in range(3):
        for i in range(4):
            body.append(need(vm=f'r{x}{i}'))
            body.append(mfma(acc(1 + x // 2), A2 if x == 1 else A1, DB(x, i), acc(1 + x // 2) if (x == 1 or i) else 0))
    body += fin(1) + [vst(vr(94), 2, vST, SO, sOA, 128), salu('s_cmp_eq_u32', sTODO, 0), nop(3)] + fin(2) + [vst(vr(96), 2, vST2, SO, sOS, 0)]
    c += body
    A(br('s_cbranch_scc0', 'L_more'))
    A(label('L_fin'))
    return c

def reduce_rare():
    c = []
    A = c.append
    A(label('L_more'))
    A(raw(f's_ff1_i32_b32 {sOFF}, {sTODO}', rd=[sTODO], wr=[sOFF]))
    c += job_setup(sOFF, sRL)
    A(salu('s_add_u32', sRL, sRL, 1)); A(salu('s_and_b32', sRL, sRL, 3))
    A(br('s_cbranch_scc1', 'L_pa'))
    A(raw(f's_bitset0_b32 {sTODO}, {sOFF}', rd=[sTODO, sOFF], wr=[sTODO]))
    A(br('s_branch', 'L_pa'))
    A(label('L_late'))
    A(salu('s_mov_b32', sNR, OPT['limit']))
    A(label('L_late1'))
    A(vld(vP, 1, vL16, SD, sGRP, 0, 'sc1')); A(wait(vm=0)); A(rfl(sT1, vP)); A(nop(0))
    A(salu('s_and_b32', sT1, sT1, 15))
    A(br('s_cbranch_scc0', 'L_pa'))
    A(salu('s_sub_u32', sNR, sNR, 1))
    A(br('s_cbranch_scc0', 'L_late1'))
    A(salu('s_lshl_b32', sT1, 0x10000, sPART))
    A(valu('v_mov_b32', vP, sT1))
    A(atom('buffer_atomic_or', vP, vL16, SD, sGRP)); A(wait(vm=0)); A(rfl(sT1, vP)); A(nop(0))
    A(salu('s_and_b32', sT1, sT1, 15))
    A(br('s_cbranch_scc0', 'L_pa'))
    A(br('s_branch', 'L_fin'))
    return c

def fallback():
    c = [label('L_fallback')]
    A = c.append
    A(wait(vm=0, lg=0)); A(bar())
    A(salu('s_mov_b32', sPASS, -1))
    c += kv_mode()
    for k in range(4): A(valu('v_accvgpr_read_b32', vD[k], ar(aDkv + k)))
    for rt in range(5): A(valu('v_mov_b32', Mn(rt), 0xff800000))
    A(salu('s_and_b32', sT1, sW, 1))
    A(salu('s_mul_i32', sT1, sT1, 8448))
    A(valu('v_subrev_u32', t2, sT1, vK))
    A(salu('s_mov_b32', sSO, 0))
    A(setm0(sLDS, 0))
    A(label('L_fb_loop'))
    A(nop(0))
    for k in range(4): A(dma(vD[k], SA, sSO, PC * k))
    A(wait(vm=0)); A(bar())
    for hf in range(2):
        for t in range(2):
            for cc in range(4): A(dsr('ds_read_b128', Kf(hf, t, cc), t2, hf * 8448 + t * 512 + cc * 64))
    A(wait(lg=0)); A(bar())
    for rt in range(5):
        for hf in range(2):
            for t in range(2):
                for cc in range(4): A(mfma(Sb(hf, t), Kf(hf, t, cc), Qf(rt, cc), Sb(hf, t) if cc else 0))
        A(nop(7))
        for n in range(0, 16, 2): A(valu('v_max3_f32', Mn(rt), Mn(rt), off(Sb(0, 0), n), off(Sb(0, 0), n + 1)))
    A(salu('s_add_u32', sSO, sSO, 16384))
    A(salu('s_cmp_lt_u32', sSO, 524288))
    A(br('s_cbranch_scc1', 'L_fb_loop'))
    c += max_finish()
    for i in range(4):
        c += kv_tile_dma('K', i, 'x') + kv_tile_dma('V', i, 'x')
    for i in range(80): A(valu('v_mov_b32', vr(24 + i), 0))
    for s in vSUM.values(): A(valu('v_mov_b32', s, 0))
    for i in range(80): A(valu('v_accvgpr_write_b32', ar(i), 0))
    for i in range(8): A(valu('v_accvgpr_write_b32', ar(224 + i), 0))
    A(valu('v_mov_b32', t0, 0x3f803f80))
    for i in range(4): A(valu('v_accvgpr_write_b32', off(ONES, i), t0))
    c += state_init()
    A(wait(vm=0)); A(bar())
    c += kv_frag_reads(0, 'K') + kv_frag_reads(0, 'V')
    A(wait(lg=0)); A(bar())
    A(br('s_branch', 'L_loop_in'))
    return c

def stamps_out():
    if OPT['bst']:
        c = []
        A = c.append
        A(salu('s_add_u32', 's4', 's78', 66 << 20)); A(salu('s_addc_u32', 's5', 's79', 0)); A(salu('s_and_b32', 's5', 's5', 0xffff))
        A(salu('s_mov_b32', 's6', 1 << 20)); A(salu('s_mov_b32', 's7', 0x20000))
        A(salu('s_lshl_b32', sT1, 's2', 10))
        A(valu('v_lshlrev_b32', t0, 2, 'v0'))
        A(valu('v_accvgpr_read_b32', t2, 'a248'))
        A(vst(t2, 1, t0, 's4', sT1, 0))
        return c
    if not OPT['stamps']: return []
    c = []
    A = c.append
    n = stamp_n[0]
    A(wait(vm=0))
    c += stamp('abef')
    n = stamp_n[0]
    if OPT['diag']:
        assert n == 8
        A(salu('s_cmp_lg_u32', sW, 0)); A(br('s_cbranch_scc1', 'L_end'))
        A(salu('s_mov_b32', 's4', 's76')); A(salu('s_and_b32', 's5', 's77', 0xffff)); A(salu('s_mov_b32', 's6', 160)); A(salu('s_mov_b32', 's7', 0x20000))
        A(valu('v_lshrrev_b32', t0, 2, vL16))
        for i in range(8):
            A(salu('s_sub_u32', sT1, f's{82+2*i}', 's82')); A(raw(f'v_writelane_b32 {t1}, {sT1}, {i}', 'valu', rd=[sT1], wr=[t1]))
        for i, (st, inv) in enumerate([(7, 0), (0, 1), (0, 0), (3, 0), (3, 1), (4, 0), (4, 1), (7, 1)]):
            A(salu('s_not_b32' if inv else 's_mov_b32', sT1, f's{82+2*st}')); A(raw(f'v_writelane_b32 {t2}, {sT1}, {i}', 'valu', rd=[sT1], wr=[t2]))
        A(salu('s_mov_b32', sT1, 128))
        A(I(f'buffer_atomic_add {t1}, {t0}, s[4:7], {sT1} offen sc1', 'vst', rd=[t1, t0], arg=[t1]))
        A(salu('s_mov_b32', 's6', 192)); A(salu('s_mov_b32', sT1, 160))
        A(I(f'buffer_atomic_umax {t2}, {t0}, s[4:7], {sT1} offen sc1', 'vst', rd=[t2, t0], arg=[t2]))
        return c
    if OPT['dbg']:
        A(salu('s_mov_b32', 's4', 's76')); A(salu('s_and_b32', 's5', 's77', 0xffff)); A(salu('s_mov_b32', 's6', 256)); A(salu('s_mov_b32', 's7', 0x20000))
        A(salu('s_lshl_b32', sT1, 's2', 2)); A(salu('s_add_u32', sT1, sT1, sW))
        A(salu('s_cmp_lg_u32', sT1, OPT['dbg'])); A(br('s_cbranch_scc1', 'L_end'))
        A(valu('v_mov_b32', t0, 0))
        for i in range(1, n):
            A(salu('s_sub_u32', sT1, f's{82+2*i}', 's82'))
            A(valu('v_mov_b32', t1, sT1))
            A(vst(t1, 1, t0, 's4', 0, 4 * i))
            A(wait(vm=0))
        return c
    if OPT['sout']:
        A(salu('s_mov_b32', 's4', 's68')); A(salu('s_and_b32', 's5', 's69', 0xffff))
        A(raw('s_getreg_b32 s100, hwreg(HW_REG_XCC_ID)')); A(raw('s_getreg_b32 s101, hwreg(HW_REG_HW_ID)'))
    else:
        A(salu('s_add_u32', 's4', 's78', 64 << 20)); A(salu('s_addc_u32', 's5', 's79', 0)); A(salu('s_and_b32', 's5', 's5', 0xffff))
    A(salu('s_mov_b32', 's6', 1 << 20)); A(salu('s_mov_b32', 's7', 0x20000))
    A(salu('s_lshl_b32', sT1, 's2', 2)); A(salu('s_add_u32', sT1, sT1, sW)); A(salu('s_lshl_b32', sT1, sT1, 6))
    if OPT['sout']:
        A(valu('v_mov_b32', t0, 0))
        A(valu('v_mov_b32', t1, 's100')); A(vst(t1, 1, t0, 's4', sT1, 56)); A(wait(vm=0))
        A(valu('v_mov_b32', t1, 's101')); A(vst(t1, 1, t0, 's4', sT1, 60)); A(wait(vm=0))
    A(valu('v_mov_b32', t0, 0))
    for i in range(16 if OPT['stamps'] == 3 else n):
        A(valu('v_mov_b32', t1, f's{82+i}' if OPT['stamps'] == 3 else f's{82+2*i}'))
        A(vst(t1, 1, t0, 's4', sT1, 4 * i))
        A(wait(vm=0))
    return c

def diag_code():
    c = [label('L_diag')]
    A = c.append
    A(wait(vm=0))
    dst = ['s44', 's45', 's46', 's47']
    for d, e in zip(dst, OPT['diag'].split(',')):
        if e[0] == 'm': A(salu('s_lshr_b32', d, f's{52+int(e[1])}', 8))
        elif e[0] == 'x': A(salu('s_add_u32', d, f's{60+int(e[1])}', 's61'))
        elif e[0] == 'n': A(salu('s_sub_u32', d, 's61', f's{60+int(e[1])}'))
        A(salu('s_min_u32', d, d, 20000))
    A(valu('v_mov_b32', 'v10', 0)); A(valu('v_lshlrev_b32', 'v11', 4, vL16))
    for i, (d, ins) in enumerate(zip(dst, [vld('v12', 1, 'v10', SX, 0), vld('v12', 1, 'v10', SX, 0, 0, 'sc1'), mfma('v24', 'v28', 'v28', 'v24'), dsr('ds_read_b32', 'v13', 'v11')])):
        A(label(f'L_dg{i}')); A(ins); A(wait(vm=8, lg=4)); A(salu('s_sub_u32', d, d, 1)); A(br('s_cbranch_scc0', f'L_dg{i}'))
    A(raw('s_endpgm'))
    return c

def kernel1():
    st0 = stamp('abcdefgh')
    pre, R = setup()
    cw = []
    if OPT['cw']:
        cw = [raw('s_getpc_b64 s[74:75]', wr=['s74', 's75']), valu('v_lshlrev_b32', t0, 4, 'v0'),
              I(f'global_load_dword {vPFd}, {t0}, s[74:75]', 'vld', rd=[t0, 's74', 's75'], wr=[vPFd], tag='cw'), wait(vm=0)]
    pre = pre[:2] + cw + st0 + pre[2:]
    part1 = resolve(pre + qphase(R) + prologue())
    blocks = [block(j) for j in range(4)]
    first = [x for x in blocks[0] if x.kind == 'mfma'][0]
    entry = [label('L_loop_in'), first, br('s_branch', 'L_loop_mid')]
    loop = [label('L_loop')] + sum(blocks, []) + [br('s_cbranch_scc0', 'L_loop')]
    sw = switch_wo()
    part3 = resolve(epilogue() + ophase()) + stamps_out() + [label('L_end'), raw('s_endpgm')]
    fb = fallback()
    mid = [i for i, x in enumerate(loop) if x.kind == 'label' and x.arg == 'L_loop_mid'][0]
    tr = part1 + entry + loop[mid:] + loop + sw + loop + sw[:2] + part3
    errs = check(tr, 'k1')
    vb = [i for i, x in enumerate(part3) if x.kind == 'br' and x.arg == 'L_fallback'][0]
    errs += check(part3[:vb + 1] + fb + entry + loop[mid:] + loop, 'fb')
    assert part1[-1].kind == 'br'
    rr = resolve(reduce_rare())
    errs += check(rr, 'rare')
    code = part1[:-1] + entry + [raw('.p2align 6', 'cmt')] + loop + sw + part3 + rr + fb + (diag_code() if OPT['diag'] else [])
    return code, errs

def kernel2():
    c = []
    A = c.append
    A(salu('s_cmp_ge_u32', 's2', 320)); A(br('s_cbranch_scc1', 'L2_end'))
    if OPT['stamps']: A(raw('s_memrealtime s[30:31]'))
    A(raw('s_load_dwordx2 s[4:5], s[0:1], 96', wr=['s4', 's5']))
    if OPT['stamps']: A(raw('s_load_dwordx2 s[40:41], s[0:1], 96'))
    A(raw('s_load_dwordx2 s[8:9], s[0:1], 80', wr=['s8', 's9']))
    A(salu('s_mul_hi_u32', 's12', 's2', 0xcccccccd)); A(salu('s_lshr_b32', 's12', 's12', 4))
    A(salu('s_mul_i32', 's13', 's12', 20)); A(salu('s_sub_u32', 's13', 's2', 's13'))
    A(valu('v_lshrrev_b32', 'v1', 6, 'v0'))
    A(valu('v_lshlrev_b32', 'v2', 4, 'v0'))
    A(rfl('s14', 'v1'))
    A(salu('s_lshl_b32', 's15', 's13', 12))
    A(valu('v_add_u32', 'v2', 's15', 'v2'))
    A(salu('s_mul_i32', 's16', 's12', 16 * 81920))
    A(wait(lg=0))
    A(salu('s_add_u32', 's4', 's4', 's16')); A(salu('s_addc_u32', 's5', 's5', 0)); A(salu('s_and_b32', 's5', 's5', 0xffff))
    A(salu('s_mov_b32', 's6', 16 * 81920)); A(salu('s_mov_b32', 's7', 0x20000))
    for p in range(16):
        A(salu('s_mov_b32', 's17', p * 81920))
        A(vld(vr(16 + 4 * p), 4, 'v2', 's4', 's17', 0, OPT['ldpol'], tag=f'p{p}'))
    A(salu('s_and_b32', 's9', 's9', 0xffff)); A(salu('s_mov_b32', 's10', 8 * 80 * 1024 * 2)); A(salu('s_mov_b32', 's11', 0x20000))
    A(salu('s_lshl_b32', 's15', 's13', 2)); A(salu('s_add_u32', 's15', 's15', 's14'))
    A(salu('s_and_b32', 's18', 's15', 1))
    A(salu('s_lshr_b32', 's15', 's15', 1))
    A(salu('s_mul_i32', 's19', 's15', 205)); A(salu('s_lshr_b32', 's19', 's19', 10))
    A(salu('s_mul_i32', 's20', 's19', 5)); A(salu('s_sub_u32', 's20', 's15', 's20'))
    A(salu('s_and_b32', 's21', 's12', 7))
    A(salu('s_lshr_b32', 's22', 's12', 3))
    A(salu('s_mul_i32', 's21', 's21', 5)); A(salu('s_add_u32', 's21', 's21', 's20')); A(salu('s_lshl_b32', 's21', 's21', 15))
    A(salu('s_lshl_b32', 's22', 's22', 10)); A(salu('s_add_u32', 's21', 's21', 's22'))
    A(salu('s_lshl_b32', 's19', 's19', 7)); A(salu('s_add_u32', 's21', 's21', 's19'))
    A(salu('s_lshl_b32', 's18', 's18', 6)); A(salu('s_add_u32', 's21', 's21', 's18'))
    A(valu('v_and_b32', 'v3', 15, 'v0')); A(valu('v_lshlrev_b32', 'v3', 11, 'v3'))
    A(valu('v_bfe_u32', 'v4', 'v0', 4, 2)); A(valu('v_lshl_add_u32', 'v3', 'v4', 3, 'v3'))
    A(salu('s_mov_b32', 's23', 0xffff0000))
    for p in range(16):
        A(need(vm=f'p{p}'))
        for i in range(4):
            src = vr(16 + 4 * p + i)
            if p == 0:
                A(valu('v_lshlrev_b32', vr(8 + 2 * i), 16, src)); A(valu('v_and_b32', vr(9 + 2 * i), 's23', src))
            else:
                A(valu('v_lshlrev_b32', vr(80 + 2 * i), 16, src)); A(valu('v_and_b32', vr(81 + 2 * i), 's23', src))
        if p:
            for i in range(4): A(valu('v_pk_add_f32', vr(8 + 2 * i), vr(8 + 2 * i), vr(80 + 2 * i), w=2))
    for i in range(4): A(valu('v_cvt_pk_bf16_f32', vr(4 + i), vr(8 + 2 * i), vr(9 + 2 * i)))
    A(vst('v4', 2, 'v3', 's8', 's21', 0)); A(vst('v6', 2, 'v3', 's8', 's21', 32))
    if OPT['stamps']:
        A(wait(vm=0)); A(raw('s_memrealtime s[32:33]')); A(wait(lg=0))
        A(salu('s_add_u32', 's40', 's40', 65 << 20)); A(salu('s_addc_u32', 's41', 's41', 0)); A(salu('s_and_b32', 's41', 's41', 0xffff))
        A(salu('s_mov_b32', 's42', 1 << 20)); A(salu('s_mov_b32', 's43', 0x20000))
        A(salu('s_lshl_b32', 's34', 's2', 2)); A(salu('s_add_u32', 's34', 's34', 's14')); A(salu('s_lshl_b32', 's34', 's34', 3))
        A(valu('v_mov_b32', 'v1', 0)); A(valu('v_mov_b32', 'v10', 's30')); A(valu('v_mov_b32', 'v11', 's32'))
        A(vst('v10', 2, 'v1', 's40', 's34', 0))
    A(label('L2_end')); A(raw('s_endpgm'))
    c = resolve(c)
    return c, check(c, 'k2')

def desc(name, vg, acc):
    return f""".p2align 6
.amdhsa_kernel {name}
  .amdhsa_next_free_vgpr {vg}
  .amdhsa_next_free_sgpr 102
  .amdhsa_accum_offset {acc}
  .amdhsa_group_segment_fixed_size 0
  .amdhsa_kernarg_size 104
  .amdhsa_user_sgpr_count 2
  .amdhsa_user_sgpr_kernarg_segment_ptr 1
  .amdhsa_system_sgpr_workgroup_id_x 1
.end_amdhsa_kernel
"""

def main():
    assert (LX // 2048) % 2 == 0 or True
    k1, e1 = kernel1()
    k2, e2 = kernel2()
    for e in e1 + e2: print('HAZARD', e)
    K1, K2 = NAME + '_kernel', 'reduce_parts_kernel'
    hdr = open('cdna_kernels/' + NAME + '.s.ref').read().split('; Override launch')[0]
    s = hdr
    s += f'; @launch grid=(256,1,1) block=(256,1,1) lds=163840\n'
    s += '.amdgcn_target "amdgcn-amd-amdhsa--gfx950"\n.text\n'
    for n, k in ((K1, k1),):
        s += f'.globl {n}\n.p2align 8\n.type {n},@function\n{n}:\n' + render(k)
    s += 'L_code_end:\n'
    s += '.section .rodata,"a"\n' + desc(K1, 512, 256)
    open(sys.argv[1], 'w').write(s)
    print('instrs', len(k1), len(k2), 'errors', len(e1) + len(e2))
main()
```
